```python
import torch

def _softmax(x, axis=-1):
    return torch.softmax(x, dim=axis)
def _gelu(x):
    return torch.nn.functional.gelu(x, approximate="tanh")
def _silu(x):
    return torch.nn.functional.silu(x)
def _sigmoid(x):
    return torch.sigmoid(x)
def _layernorm(x, axis=-1, eps=1e-5):
    m = x.mean(dim=axis, keepdim=True)
    v = x.var(dim=axis, keepdim=True, unbiased=False)
    return (x - m) / torch.sqrt(v + eps)
def _scatter_add(tgt, idx, src, axis=0):
    return tgt.clone().index_add_(axis, idx, src)
def _segment_sum(src, seg, n):
    out = torch.zeros((n,) + src.shape[1:], dtype=src.dtype)
    return out.index_add_(0, seg, src)
def _pad(x, pw):
    flat = tuple(v for pair in reversed(pw) for v in pair)
    return torch.nn.functional.pad(x, flat)

kernel_name = 'sequential_preLN__spectral_fnet__dense_activation_relu__prompt'

def setup_inputs():

    _w = (lambda a: (lambda t: t.to(torch.bfloat16) if t.is_floating_point() else t)(torch.as_tensor(a)))
    def _A_setup():
        B, S, D = 1, 2048, 512
        ns = torch.arange(S)[:, None] * torch.arange(S)[None, :]
        nd = torch.arange(D)[:, None] * torch.arange(D)[None, :]
        Ws_re = torch.cos(-2.0 * torch.pi * ns / S).to(float)
        Ws_im = torch.sin(-2.0 * torch.pi * ns / S).to(float)
        Wd_re = torch.cos(-2.0 * torch.pi * nd / D).to(float)
        Wd_im = torch.sin(-2.0 * torch.pi * nd / D).to(float)
        return {
            "x": _w((lambda *s: torch.randn(*s, dtype=torch.bfloat16) * 0.05)(B, S, D)),
            "dft_seq_re": _w(Ws_re),
            "dft_seq_im": _w(Ws_im),
            "dft_hid_re": _w(Wd_re),
            "dft_hid_im": _w(Wd_im),
        }
    _A_in = _A_setup()

    def _B_setup():
        B, S, D, Dff = 1, 2048, 512, 1792
        return {
            "x": _w((lambda *s: torch.randn(*s, dtype=torch.bfloat16) * 0.05)(B, S, D)),
            "w1": _w((lambda *s: torch.randn(*s, dtype=torch.bfloat16) * 0.4)(D, Dff)),
            "w2": _w((lambda *s: torch.randn(*s, dtype=torch.bfloat16) * 0.4)(Dff, D)),
        }
    _B_in = _B_setup()

    return {
        "A_x": _A_in["x"],
        "A_dft_seq_re": _A_in["dft_seq_re"],
        "A_dft_seq_im": _A_in["dft_seq_im"],
        "A_dft_hid_re": _A_in["dft_hid_re"],
        "A_dft_hid_im": _A_in["dft_hid_im"],
        "B_x": _B_in["x"],
        "B_w1": _B_in["w1"],
        "B_w2": _B_in["w2"],
    }

def reference(A_x, A_dft_seq_re, A_dft_seq_im, A_dft_hid_re, A_dft_hid_im, B_x, B_w1, B_w2):
    def _A_ref(x, dft_seq_re, dft_seq_im, dft_hid_re, dft_hid_im):
        a = torch.einsum("bsd,ed->bse", x, dft_hid_re)
        b = torch.einsum("bsd,ed->bse", x, dft_hid_im)
        y = torch.einsum("ts,bse->bte", dft_seq_re, a) - torch.einsum("ts,bse->bte", dft_seq_im, b)
        return y

    def _B_ref(x, w1, w2):
        h = torch.einsum("bsd,df->bsf", x, w1)
        zero = torch.zeros_like(h)
        h = torch.maximum(h, zero)
        return torch.einsum("bsf,fd->bsd", h, w2)

    x = A_x
    h = x + _A_ref(_layernorm(x, axis=-1), A_dft_seq_re, A_dft_seq_im, A_dft_hid_re, A_dft_hid_im)
    h2 = h + _B_ref(_layernorm(h, axis=-1), B_w1, B_w2)
    return h2
```

```python
import sys

NAME = "sequential_preLN__spectral_fnet__dense_activation_relu__prompt"

ZA_OFF = 0
ZA_SZ = 1 << 20
Z512_OFF = 1 << 20
Z512_SZ = 2048
CSP_OFF = (1 << 20) + (64 << 10)
CSP_SZ = 32 * 1792 * 4
CSUM_OFF = (1 << 20) + (512 << 10)
CSUM_SZ = 1792 * 4
STAT_OFF = (1 << 20) + (640 << 10)
STAT_SZ = 2048 * 128
H_OFF = 2 << 20
H_SZ = 2 << 20
H1_OFF = 4 << 20
H1_SZ = 2048 * 1792 * 2

OOB = 0x7FFF0000


class Asm:
    def __init__(self):
        self.lines = []

    def __call__(self, s):
        for ln in s.strip("\n").split("\n"):
            self.lines.append("    " + ln.strip())

    def label(self, s):
        self.lines.append(s + ":")

    def raw(self, s):
        self.lines.append(s)

    def c(self, s):
        self.lines.append("    ; " + s)

    def nop(self, n):
        while n > 0:
            k = min(n, 16)
            self.lines.append(f"    s_nop {k-1}")
            n -= k

    def text(self):
        return "\n".join(self.lines) + "\n"


def vr(b, n=1):
    return f"v{b}" if n == 1 else f"v[{b}:{b+n-1}]"


def ar(b, n=1):
    return f"a{b}" if n == 1 else f"a[{b}:{b+n-1}]"


def sr(b, n=1):
    return f"s{b}" if n == 1 else f"s[{b}:{b+n-1}]"


def srd(a, d, lo, hi, size, off=0):
    if off:
        a(f"s_add_u32 s{d}, s{lo}, {off}")
        a(f"s_addc_u32 s{d+1}, s{hi}, 0")
    else:
        a(f"s_mov_b32 s{d}, s{lo}")
        a(f"s_mov_b32 s{d+1}, s{hi}")
    a(f"s_mov_b32 s{d+2}, {size}")
    a(f"s_mov_b32 s{d+3}, 0x20000")


def mfma(a, d, x, y, c=None):
    a(f"v_mfma_f32_16x16x32_bf16 {d}, {x}, {y}, {d if c is None else c}")


def treduce4(a, r0, r1, r2, r3):
    a(f"v_permlane32_swap_b32 v{r0}, v{r2}")
    a(f"v_permlane32_swap_b32 v{r1}, v{r3}")
    a.nop(1)
    a(f"v_add_f32 v{r0}, v{r0}, v{r2}")
    a(f"v_add_f32 v{r1}, v{r1}, v{r3}")
    a.nop(2)
    a(f"v_permlane16_swap_b32 v{r0}, v{r1}")
    a.nop(1)
    a(f"v_add_f32 v{r0}, v{r0}, v{r1}")


def kernel_head(a, name):
    a.raw(f".globl {name}")
    a.raw(".p2align 8")
    a.raw(f".type {name},@function")
    a.label(name)


def descriptor(name, vgpr, accum, sgpr=100):
    return f""".amdhsa_kernel {name}
  .amdhsa_next_free_vgpr {vgpr}
  .amdhsa_next_free_sgpr {sgpr}
  .amdhsa_accum_offset {accum}
  .amdhsa_group_segment_fixed_size 0
  .amdhsa_kernarg_size 88
  .amdhsa_user_sgpr_count 2
  .amdhsa_user_sgpr_kernarg_segment_ptr 1
  .amdhsa_system_sgpr_workgroup_id_x 1
.end_amdhsa_kernel
"""


K1_LDS = 57344


def gen_k1(a, cfg):
    kernel_head(a, "k1_kernel")
    sW, sSB, sE = 3, 36, 37
    a("""
    s_cmp_ge_u32 s2, 256
    s_cbranch_scc1 K1_end
    s_load_dwordx2 s[4:5], s[0:1], 0
    s_load_dwordx4 s[8:11], s[0:1], 24
    s_load_dwordx2 s[6:7], s[0:1], 48
    s_load_dwordx2 s[32:33], s[0:1], 80
    v_lshrrev_b32 v1, 6, v0
    v_and_b32 v0, 63, v0
    v_lshrrev_b32 v2, 4, v0
    v_readfirstlane_b32 s3, v1
    v_and_b32 v3, 15, v0
    """)
    a(f"""
    s_and_b32 s34, s2, 7
    s_lshl_b32 s34, s34, 2
    s_bfe_u32 s35, s2, 0x20003
    s_add_u32 s{sSB}, s34, s35
    s_lshr_b32 s{sE}, s2, 5
    s_cmp_eq_u32 s3, 4
    s_cbranch_scc1 K1_helper
    """)
    a(f"""
    s_lshl_b32 s34, s3, 8
    v_lshl_add_u32 v4, v2, 4, s34
    s_lshl_b32 s35, s{sSB}, 4
    v_add_u32 v5, s35, v3
    v_cmp_eq_u32 vcc, 0, v5
    v_sub_u32 v6, 0x800, v5
    v_add_u32 v7, 0x400, v5
    v_sub_u32 v8, 0x400, v5
    v_mov_b32 v9, 0x200
    v_mov_b32 v10, 0x600
    v_cndmask_b32 v6, v6, v9, vcc
    v_cndmask_b32 v8, v8, v10, vcc
    v_lshl_add_u32 v5, v5, 10, v4
    v_lshl_add_u32 v6, v6, 10, v4
    v_lshl_add_u32 v7, v7, 10, v4
    v_lshl_add_u32 v8, v8, 10, v4
    v_lshl_add_u32 v4, v3, 10, v4
    v_cmp_eq_u32 vcc, 0, v3
    """)
    for lam in range(4):
        a(f"""
        s_xor_b32 s34, s3, {lam}
        s_and_b32 s35, s34, 1
        s_lshl_b32 s35, s35, 14
        s_lshl_b32 s38, s{sE}, 15
        s_add_u32 s35, s35, s38
        s_or_b32 s38, s34, s{sE}
        s_cmp_eq_u32 s38, 0
        s_cselect_b32 s38, 0x40000, 0
        v_mov_b32 v13, s38
        v_cndmask_b32 v13, 0, v13, vcc
        v_add3_u32 v{9+lam}, v4, v13, s35
        """)
    a("s_waitcnt lgkmcnt(0)")
    srd(a, 12, 4, 5, 2048 * 1024)
    for lam in range(4):
        d = 16 + 4 * lam
        a(f"""
        s_xor_b32 s34, s3, {lam}
        s_cmp_ge_u32 s34, 2
        s_cselect_b32 s{d}, s10, s8
        s_cselect_b32 s{d+1}, s11, s9
        s_mov_b32 s{d+2}, {512*1024}
        s_mov_b32 s{d+3}, 0x20000
        """)
    XF, GF, ACC = 16, 80, 144
    xf = lambda c, ks: XF + (c * 4 + ks) * 4
    gf = lambda lam, ks: GF + (lam * 4 + ks) * 4
    acc = lambda c, lam: ACC + (c * 4 + lam) * 4
    for ks in range(4):
        for c in range(4):
            a(f"buffer_load_dwordx4 {vr(xf(c,ks),4)}, v{5+c}, s[12:15], 0 offen offset:{ks*64}")
        for lam in range(4):
            a(f"buffer_load_dwordx4 {vr(gf(lam,ks),4)}, v{9+lam}, s[{16+4*lam}:{19+4*lam}], 0 offen offset:{ks*64}")
    SUM, SQ, CS = 208, 212, 216
    for r in range(12):
        a(f"v_mov_b32 v{SUM+r}, 0")
    a("s_mov_b32 s40, 0x3f803f80")
    for lam in range(1, 4):
        a(f"""
        s_xor_b32 s34, s3, {lam}
        s_mul_i32 s34, s34, 12288
        s_add_u32 s34, s34, {(lam-1)*4096}
        v_lshl_add_u32 v{220+lam}, v0, 4, s34
        """)
    a(f"""
    s_lshl_b32 s34, s3, 10
    s_add_u32 s34, s34, 49152
    v_lshl_add_u32 v220, v0, 4, s34
    """)
    for ks in range(4):
        a(f"s_waitcnt vmcnt({24-8*ks})")
        dots = []
        for c in range(4):
            for d in range(4):
                dots.append(f"v_dot2c_f32_bf16 v{SUM+c}, s40, v{xf(c,ks)+d}")
                dots.append(f"v_dot2c_f32_bf16 v{SQ+c}, v{xf(c,ks)+d}, v{xf(c,ks)+d}")
        for lam in range(4):
            for d in range(4):
                dots.append(f"v_dot2c_f32_bf16 v{CS+lam}, s40, v{gf(lam,ks)+d}")
        for lam in (1, 2, 3, 0):
            for c in range(4):
                mfma(a, vr(acc(c, lam), 4), vr(xf(c, ks), 4), vr(gf(lam, ks), 4), "0" if ks == 0 else None)
                for _ in range(3):
                    a(dots.pop(0))
    a.nop(3)
    treduce4(a, SUM, SUM + 1, SUM + 2, SUM + 3)
    treduce4(a, SQ, SQ + 1, SQ + 2, SQ + 3)
    treduce4(a, CS, CS + 1, CS + 2, CS + 3)
    a(f"v_mov_b32 v{SUM+1}, v{SQ}")
    a(f"v_mov_b32 v{SUM+2}, v{CS}")
    for lam in range(1, 4):
        for c in range(4):
            a(f"ds_write_b128 v{220+lam}, {vr(acc(c,lam),4)} offset:{c*1024}")
    a(f"ds_write_b96 v220, {vr(SUM,3)}")
    a(f"""
    s_mul_i32 s34, s3, 12288
    v_lshl_add_u32 v224, v0, 4, s34
    v_lshlrev_b32 v225, 4, v0
    """)
    for v in range(4):
        a(f"""
        s_xor_b32 s34, s3, {v}
        s_lshl_b32 s34, s34, 8
        s_add_u32 s34, s34, {49152 + v*1024 + 8}
        v_lshl_add_u32 v{226+v}, v3, 4, s34
        """)
    a(f"""
    s_lshl_b32 s34, s3, 10
    s_add_u32 s34, s34, 53248
    v_lshl_add_u32 v230, v0, 2, s34
    v_lshl_add_u32 v231, v2, 4, s34
    s_cmp_ge_u32 s3, 2
    s_cselect_b32 s41, -1.0, 1.0
    s_waitcnt lgkmcnt(0)
    s_barrier
    """)
    ST = XF
    for v in range(4):
        a(f"ds_read_b64 {vr(ST+2*v,2)}, v225 offset:{49152 + v*1024}")
    CSR = XF + 8
    for v in range(4):
        a(f"ds_read_b32 v{CSR+v}, v{226+v}")
    RD = 32
    for slot in range(3):
        for c in range(4):
            a(f"ds_read_b128 {vr(RD+(slot*4+c)*4,4)}, v224 offset:{slot*4096+c*1024}")
    a(f"""
    s_waitcnt lgkmcnt(12)
    v_add_f32 v{ST}, v{ST}, v{ST+2}
    v_add_f32 v{ST+1}, v{ST+1}, v{ST+3}
    v_add_f32 v{ST+4}, v{ST+4}, v{ST+6}
    v_add_f32 v{ST+5}, v{ST+5}, v{ST+7}
    v_add_f32 v{ST}, v{ST}, v{ST+4}
    v_add_f32 v{ST+1}, v{ST+1}, v{ST+5}
    v_mul_f32 v{ST}, 0x3b000000, v{ST}
    v_mul_f32 v{ST+1}, 0x3b000000, v{ST+1}
    v_fma_f32 v{ST+1}, -v{ST}, v{ST}, v{ST+1}
    v_max_f32 v{ST+1}, 0, v{ST+1}
    v_add_f32 v{ST+1}, 0x3727c5ac, v{ST+1}
    v_rsq_f32 v{ST+1}, v{ST+1}
    v_add_f32 v{CSR}, v{CSR}, v{CSR+1}
    v_add_f32 v{CSR+2}, v{CSR+2}, v{CSR+3}
    v_add_f32 v{CSR}, v{CSR}, v{CSR+2}
    """)
    a(f"""
    v_and_b32 v{ST+2}, 1, v2
    v_cmp_eq_u32 vcc, 1, v{ST+2}
    v_mul_f32 v{ST+3}, s41, v{ST+1}
    v_and_b32 v{ST+4}, 0x1f, v0
    v_cndmask_b32 v{ST+3}, v{ST+1}, v{ST+3}, vcc
    v_or_b32 v{ST+4}, s{sSB}, v{ST+4}
    s_lshl_b32 s34, s{sSB}, 5
    v_and_b32 v{ST+4}, 0x1f, v0
    v_or_b32 v{ST+4}, s34, v{ST+4}
    v_cmp_eq_u32 vcc, 16, v{ST+4}
    s_nop 1
    v_cndmask_b32 v{ST+3}, v{ST+3}, 0, vcc
    ds_write_b32 v230, v{ST+3}
    ds_write_b32 v230, v{ST} offset:256
    ds_write_b32 v230, v{ST+1} offset:512
    s_waitcnt lgkmcnt(0)
    """)
    KK, MM = 80, 96
    for c in range(4):
        a(f"ds_read_b128 {vr(KK+4*c,4)}, v231 offset:{c*64}")
        a(f"ds_read_b128 {vr(MM+4*c,4)}, v231 offset:{256+c*64}")
    for c in range(4):
        for r in range(0, 4, 2):
            d = acc(c, 0) + r
            a(f"v_pk_add_f32 {vr(RD+c*4+r,2)}, {vr(RD+c*4+r,2)}, {vr(RD+16+c*4+r,2)}")
            a(f"v_pk_add_f32 {vr(d,2)}, {vr(d,2)}, {vr(RD+32+c*4+r,2)}")
            a(f"v_pk_add_f32 {vr(d,2)}, {vr(d,2)}, {vr(RD+c*4+r,2)}")
    srd(a, 44, 32, 33, ZA_SZ, ZA_OFF)
    a(f"""
    s_lshr_b32 s34, s3, 1
    s_lshl_b32 s34, s34, 19
    s_and_b32 s35, s3, 1
    s_lshl_b32 s38, s{sE}, 1
    s_add_u32 s35, s35, s38
    s_lshl_b32 s35, s35, 14
    s_add_u32 s34, s34, s35
    s_lshl_b32 s35, s{sSB}, 9
    s_add_u32 s34, s34, s35
    v_lshrrev_b32 v112, 1, v2
    v_and_b32 v113, 1, v2
    v_lshlrev_b32 v112, 8, v112
    v_lshl_add_u32 v112, v113, 3, v112
    v_lshl_add_u32 v112, v3, 4, v112
    v_add_u32 v112, s34, v112
    s_mov_b32 s35, 0x40000
    s_waitcnt lgkmcnt(0)
    """)
    for c in range(4):
        for r in range(4):
            d = acc(c, 0) + r
            a(f"v_fma_f32 v{d}, -v{MM+4*c+r}, v{CSR}, v{d}")
    EE, FF = 116, 120
    for r in range(4):
        a(f"v_mul_f32 v{EE+r}, v{KK+r}, v{acc(0,0)+r}")
        a(f"v_mul_f32 v{FF+r}, v{KK+8+r}, v{acc(2,0)+r}")
        a(f"v_fmac_f32 v{EE+r}, v{KK+4+r}, v{acc(1,0)+r}")
        a(f"v_fmac_f32 v{FF+r}, v{KK+12+r}, v{acc(3,0)+r}")
    O0, O1 = 124, 128
    for r in range(4):
        a(f"v_add_f32 v{O0+r}, v{EE+r}, v{FF+r}")
        a(f"v_sub_f32 v{O1+r}, v{EE+r}, v{FF+r}")
    a(f"""
    v_cvt_pk_bf16_f32 v132, v{O0}, v{O0+1}
    v_cvt_pk_bf16_f32 v133, v{O0+2}, v{O0+3}
    v_cvt_pk_bf16_f32 v134, v{O1}, v{O1+1}
    v_cvt_pk_bf16_f32 v135, v{O1+2}, v{O1+3}
    buffer_store_dwordx2 v[132:133], v112, s[44:47], 0 offen
    buffer_store_dwordx2 v[134:135], v112, s[44:47], s35 offen
    s_cmp_lg_u32 s{sSB}, 0
    s_cbranch_scc1 K1_end
    """)
    srd(a, 48, 32, 33, Z512_SZ, Z512_OFF)
    a(f"""
    s_lshl_b32 s34, s3, 10
    s_add_u32 s34, s34, {53248 + 512}
    v_mov_b32 v136, s34
    ds_read_b32 v137, v136 offset:64
    ds_read_b32 v138, v136 offset:192
    s_lshr_b32 s34, s3, 1
    s_lshl_b32 s34, s34, 10
    s_and_b32 s35, s3, 1
    s_lshl_b32 s35, s35, 6
    s_add_u32 s34, s34, s35
    s_lshl_b32 s35, s{sE}, 7
    s_add_u32 s34, s34, s35
    v_lshl_add_u32 v139, v3, 2, s34
    s_waitcnt lgkmcnt(0)
    v_mul_f32 v138, s41, v138
    v_mul_f32 v137, v137, v{acc(1,0)}
    v_fmac_f32 v137, v138, v{acc(3,0)}
    s_mov_b64 exec, 0xffff
    buffer_store_dword v137, v139, s[48:51], 0 offen
    s_branch K1_end
    """)
    a.label("K1_helper")
    a(f"""
    s_and_b32 s34, s2, 7
    s_mul_i32 s34, s34, {28*16}
    s_lshr_b32 s35, s2, 3
    s_mul_i32 s38, s35, {16*3584}
    s_add_u32 s34, s34, s38
    v_lshl_add_u32 v4, v0, 4, s34
    s_and_b32 s34, s2, 7
    s_mul_i32 s34, s34, {28*32}
    s_mul_i32 s38, s35, {1792*4}
    s_add_u32 s34, s34, s38
    v_lshl_add_u32 v5, v0, 5, s34
    s_mov_b32 s40, 0x00003f80
    s_mov_b32 s41, 0x3f800000
    s_waitcnt lgkmcnt(0)
    """)
    srd(a, 12, 6, 7, 512 * 3584)
    srd(a, 16, 32, 33, CSP_SZ, CSP_OFF)
    a("s_mov_b64 exec, 0xfffffff")
    a("s_mov_b32 s34, 0")
    for r in range(16):
        a(f"buffer_load_dwordx4 {vr(16+4*r,4)}, v4, s[12:15], s34 offen")
        if r < 15:
            a(f"s_add_u32 s34, s34, 3584")
    for r in range(8):
        a(f"v_mov_b32 v{8+r}, 0")
    for r in range(16):
        a(f"s_waitcnt vmcnt({15-r})")
        for d in range(4):
            a(f"v_dot2c_f32_bf16 v{8+2*d}, s40, v{16+4*r+d}")
            a(f"v_dot2c_f32_bf16 v{9+2*d}, s41, v{16+4*r+d}")
    a.nop(3)
    a("buffer_store_dwordx4 v[8:11], v5, s[16:19], 0 offen")
    a("buffer_store_dwordx4 v[12:15], v5, s[16:19], 0 offen offset:16")
    a.label("K1_end")
    a("s_endpgm")
    return descriptor("k1_kernel", 232, 232)


K2_LDS = 4 * 6144 + 8192


def gen_k2(a, cfg):
    kernel_head(a, "k2_kernel")
    sP, sT, sE, sPT = 36, 37, 38, 39
    a("""
    s_cmp_ge_u32 s2, 256
    s_cbranch_scc1 K2_end
    s_load_dwordx2 s[4:5], s[0:1], 0
    s_load_dwordx4 s[8:11], s[0:1], 8
    s_load_dwordx2 s[32:33], s[0:1], 80
    v_lshrrev_b32 v1, 6, v0
    v_and_b32 v0, 63, v0
    v_lshrrev_b32 v2, 4, v0
    v_readfirstlane_b32 s3, v1
    v_and_b32 v3, 15, v0
    """)
    a(f"""
    s_and_b32 s34, s2, 7
    s_lshl_b32 s34, s34, 2
    s_bfe_u32 s35, s2, 0x20003
    s_add_u32 s{sPT}, s34, s35
    s_lshr_b32 s{sP}, s{sPT}, 4
    s_and_b32 s{sT}, s{sPT}, 15
    s_lshr_b32 s{sE}, s2, 5
    s_cmp_eq_u32 s3, 4
    s_cbranch_scc1 K2_helper
    """)
    a(f"""
    s_and_b32 s40, s3, 1
    s_lshr_b32 s41, s3, 1
    s_lshl_b32 s34, s{sT}, 6
    s_add_u32 s34, s34, s{sP}
    v_lshl_add_u32 v4, v3, 1, s34
    s_lshl_b32 s35, s3, 8
    v_lshl_add_u32 v5, v2, 4, s35
    v_lshl_add_u32 v6, v4, 12, v5
    s_lshl_b32 s42, s40, 17
    s_xor_b32 s43, s42, 0x20000
    """)
    a(f"""
    s_lshl_b32 s34, s3, 12
    v_lshl_add_u32 v7, v0, 4, s34
    s_lshl_b32 s34, s{sP}, 18
    s_lshl_b32 s35, s{sE}, 15
    s_add_u32 s34, s34, s35
    s_lshl_b32 s35, s41, 14
    s_add_u32 s44, s34, s35
    s_xor_b32 s35, s35, 0x4000
    s_add_u32 s45, s34, s35
    s_add_u32 s46, s44, 0x80000
    s_add_u32 s47, s45, 0x80000
    """)
    a(f"""
    v_add_u32 v8, {1024*4096}, v5
    v_mov_b32 v9, {OOB}
    v_or_b32 v10, s{sPT}, v3
    v_cmp_eq_u32 vcc, 0, v10
    s_lshl_b32 s34, s40, 5
    v_add_u32 v11, s34, v4
    v_cndmask_b32 v8, v9, v8, vcc
    """)
    a(f"""
    v_cmp_eq_u32 vcc, 0, v11
    v_sub_u32 v12, 0x800, v11
    v_mov_b32 v13, 0x400
    s_lshl_b32 s34, s{sE}, 6
    s_lshl_b32 s35, s41, 5
    s_add_u32 s34, s34, s35
    v_cndmask_b32 v12, v12, v13, vcc
    v_lshl_add_u32 v13, v2, 3, s34
    """)
    a(f"""
    v_sub_u32 v14, 1016, v13
    v_lshl_add_u32 v15, v11, 10, v13
    v_lshl_add_u32 v16, v11, 10, v14
    v_lshl_add_u32 v17, v12, 10, v13
    v_lshl_add_u32 v18, v12, 10, v14
    v_lshlrev_b32 v19, 10, v11
    v_lshlrev_b32 v20, 10, v12
    v_lshlrev_b32 v21, 12, v11
    v_mov_b32 v22, {1024*4096}
    v_lshlrev_b32 v23, 1, v13
    v_cndmask_b32 v22, v21, v22, vcc
    s_lshl_b32 s34, s{sP}, 10
    v_add_u32 v23, s34, v23
    s_waitcnt lgkmcnt(0)
    """)
    srd(a, 12, 8, 9, 2048 * 4096)
    srd(a, 16, 10, 11, 2048 * 4096)
    srd(a, 20, 32, 33, ZA_SZ, ZA_OFF)
    srd(a, 24, 4, 5, 2048 * 1024)
    srd(a, 28, 32, 33, Z512_SZ, Z512_OFF)
    a(f"""
    s_cmp_eq_u32 s{sP}, 0
    s_cselect_b32 s48, s8, s10
    s_cselect_b32 s49, s9, s11
    s_mov_b32 s50, {2048*4096}
    s_mov_b32 s51, 0x20000
    """)
    CF, SF, AF, BF, XFR = 32, 64, 96, 128, 160
    fr = lambda base, loc, ks: base + (loc * 4 + ks) * 4
    ACC = 176
    accP = lambda u, t: ACC + (u * 2 + t) * 4
    accQ = lambda u, t: ACC + 16 + (u * 2 + t) * 4
    accX = lambda u: ACC + 32 + u * 4
    for ks in range(4):
        for t in range(2):
            a(f"buffer_load_dwordx4 {vr(fr(CF,t,ks),4)}, v6, s[12:15], s{42+t} offen offset:{ks*64}")
        for u in range(2):
            a(f"buffer_load_dwordx4 {vr(fr(AF,u,ks),4)}, v7, s[20:23], s{44+u} offen offset:{ks*1024}")
        for t in range(2):
            a(f"buffer_load_dwordx4 {vr(fr(SF,t,ks),4)}, v6, s[16:19], s{42+t} offen offset:{ks*64}")
        for u in range(2):
            a(f"buffer_load_dwordx4 {vr(fr(BF,u,ks),4)}, v7, s[20:23], s{46+u} offen offset:{ks*1024}")
        a(f"buffer_load_dwordx4 {vr(XFR+4*ks,4)}, v8, s[12:15], 0 offen offset:{ks*64}")
    XD0, XM0, XD1, XM1 = 216, 218, 222, 224
    X256a, X256b, CF0, CF1, Z5 = 227, 228, 229, 230, 232
    a(f"""
    buffer_load_dwordx2 {vr(XD0,2)}, v15, s[24:27], 0 offen
    buffer_load_dwordx3 {vr(XM0,3)}, v16, s[24:27], 0 offen
    buffer_load_dwordx2 {vr(XD1,2)}, v17, s[24:27], 0 offen
    buffer_load_dwordx3 {vr(XM1,3)}, v18, s[24:27], 0 offen
    buffer_load_ushort v{X256a}, v19, s[24:27], 0 offen offset:512
    buffer_load_ushort v{X256b}, v20, s[24:27], 0 offen offset:512
    buffer_load_ushort v{CF0}, v21, s[48:51], 0 offen offset:1024
    buffer_load_ushort v{CF1}, v22, s[48:51], 0 offen offset:1024
    buffer_load_dwordx4 {vr(Z5,4)}, v23, s[28:31], 0 offen
    """)
    NEP = 9
    for lam in range(1, 4):
        a(f"""
        s_xor_b32 s34, s3, {lam}
        s_mul_i32 s34, s34, 6144
        s_add_u32 s34, s34, {(lam-1)*2048}
        v_lshl_add_u32 v{24+lam}, v0, 4, s34
        """)
    a(f"""
    s_lshl_b32 s34, s41, 12
    s_lshl_b32 s35, s3, 10
    s_add_u32 s35, s35, 24576
    s_add_u32 s52, s34, s35
    s_xor_b32 s34, s34, 0x1000
    s_add_u32 s53, s34, s35
    v_lshl_add_u32 v28, v0, 4, s52
    v_lshl_add_u32 v29, v0, 4, s53
    s_mul_i32 s34, s3, 6144
    v_lshl_add_u32 v24, v0, 4, s34
    s_lshl_b32 s34, s41, 12
    s_add_u32 s34, s34, 24576
    v_lshl_add_u32 v30, v0, 4, s34
    """)
    for ks in range(4):
        a(f"s_waitcnt vmcnt({27-9*ks+NEP})")
        c0 = "0" if ks == 0 else None
        for (u, t) in ((0, 1), (1, 0), (1, 1), (0, 0)):
            mfma(a, vr(accP(u, t), 4), vr(fr(AF, u, ks), 4), vr(fr(CF, t, ks), 4), c0)
            mfma(a, vr(accQ(u, t), 4), vr(fr(BF, u, ks), 4), vr(fr(SF, t, ks), 4), c0)
        for u in range(2):
            mfma(a, vr(accX(u), 4), vr(fr(AF, u, ks), 4), vr(XFR + 4 * ks, 4), c0)
    a.nop(4)
    for lam in range(1, 4):
        u, t = lam >> 1, lam & 1
        a(f"ds_write_b128 v{24+lam}, {vr(accP(u,t),4)}")
        a(f"ds_write_b128 v{24+lam}, {vr(accQ(u,t),4)} offset:1024")
    a(f"ds_write_b128 v28, {vr(accX(0),4)}")
    a(f"ds_write_b128 v29, {vr(accX(1),4)}")
    srd(a, 56, 32, 33, H_SZ, H_OFF)
    srd(a, 60, 32, 33, STAT_SZ, STAT_OFF)
    a(f"""
    s_lshl_b32 s34, s{sPT}, 16
    s_lshl_b32 s35, s40, 14
    s_add_u32 s34, s34, s35
    s_lshl_b32 s35, s{sE}, 10
    s_add_u32 s34, s34, s35
    s_lshl_b32 s35, s41, 3
    s_add_u32 s34, s34, s35
    v_lshl_add_u32 v32, v0, 4, s34
    s_mov_b32 s64, 0x2000
    s_mov_b32 s65, 0x8000
    s_mov_b32 s66, 0xa000
    """)
    a(f"""
    s_lshl_b32 s34, s{sPT}, 13
    s_lshl_b32 s35, s40, 11
    s_add_u32 s34, s34, s35
    s_lshl_b32 s35, s{sE}, 4
    s_add_u32 s34, s34, s35
    s_lshl_b32 s35, s41, 3
    s_add_u32 s34, s34, s35
    v_lshrrev_b32 v33, 1, v2
    v_and_b32 v34, 1, v2
    v_lshlrev_b32 v33, 12, v33
    v_lshl_add_u32 v33, v34, 2, v33
    v_lshl_add_u32 v33, v3, 7, v33
    v_add_u32 v33, s34, v33
    s_cmp_eq_u32 s{sP}, 0
    s_cselect_b32 s67, 1.0, -1.0
    s_mov_b32 s68, 0x3f803f80
    s_mov_b32 s69, 0xffff0000
    s_waitcnt lgkmcnt(0)
    s_barrier
    """)
    RD = 64
    for slot in range(3):
        a(f"ds_read_b128 {vr(RD+slot*8,4)}, v24 offset:{slot*2048}")
        a(f"ds_read_b128 {vr(RD+slot*8+4,4)}, v24 offset:{slot*2048+1024}")
    XR = 96
    for v in range(4):
        a(f"ds_read_b128 {vr(XR+4*v,4)}, v30 offset:{v*1024}")
    a("s_waitcnt vmcnt(0)")
    XU = 112
    for mir, (xd, xm, x256) in enumerate(((XD0, XM0, X256a), (XD1, XM1, X256b))):
        b = XU + mir * 8
        a(f"""
        v_lshlrev_b32 v{b}, 16, v{xd}
        v_and_b32 v{b+1}, s69, v{xd}
        v_lshlrev_b32 v{b+2}, 16, v{xd+1}
        v_and_b32 v{b+3}, s69, v{xd+1}
        v_lshlrev_b32 v{b+4}, 16, v{xm+2}
        v_and_b32 v{b+5}, s69, v{xm+1}
        v_lshlrev_b32 v{b+6}, 16, v{xm+1}
        v_and_b32 v{b+7}, s69, v{xm}
        v_lshlrev_b32 v{x256}, 16, v{x256}
        """)
    a(f"""
    v_cmp_eq_u32 s[70:71], 0, v13
    v_lshlrev_b32 v{CF0}, 16, v{CF0}
    v_lshlrev_b32 v{CF1}, 16, v{CF1}
    v_cmp_eq_u32 vcc, 0, v11
    v_cndmask_b32 v{XU+4}, v{XU+4}, v{X256a}, s[70:71]
    v_cndmask_b32 v{XU+12}, v{XU+12}, v{X256b}, s[70:71]
    s_waitcnt lgkmcnt(4)
    """)
    P, Q = accP(0, 0), accQ(0, 0)
    for r in (0, 2):
        a(f"v_pk_add_f32 {vr(RD+r,2)}, {vr(RD+r,2)}, {vr(RD+8+r,2)}")
        a(f"v_pk_add_f32 {vr(RD+4+r,2)}, {vr(RD+4+r,2)}, {vr(RD+12+r,2)}")
        a(f"v_pk_add_f32 {vr(P+r,2)}, {vr(P+r,2)}, {vr(RD+16+r,2)}")
        a(f"v_pk_add_f32 {vr(Q+r,2)}, {vr(Q+r,2)}, {vr(RD+20+r,2)}")
        a(f"v_pk_add_f32 {vr(P+r,2)}, {vr(P+r,2)}, {vr(RD+r,2)}")
        a(f"v_pk_add_f32 {vr(Q+r,2)}, {vr(Q+r,2)}, {vr(RD+4+r,2)}")
    a("s_waitcnt lgkmcnt(0)")
    for r in (0, 2):
        a(f"v_pk_add_f32 {vr(XR+r,2)}, {vr(XR+r,2)}, {vr(XR+4+r,2)}")
        a(f"v_pk_add_f32 {vr(XR+8+r,2)}, {vr(XR+8+r,2)}, {vr(XR+12+r,2)}")
        a(f"v_pk_add_f32 {vr(XR+r,2)}, {vr(XR+r,2)}, {vr(XR+8+r,2)}")
    P1 = 128
    for r in range(4):
        a(f"v_cndmask_b32 v{P1+r}, v{P+r}, v{XR+r}, vcc")
    EX0, EX1, Y = 132, 136, 140
    for r in range(4):
        a(f"v_mul_f32 v{EX0+r}, v{CF0}, v{Z5+r}")
        a(f"v_mul_f32 v{EX1+r}, v{CF1}, v{Z5+r}")
    for r in range(4):
        a(f"v_sub_f32 v{Y+r}, v{P+r}, v{Q+r}")
        a(f"v_add_f32 v{Y+4+r}, v{P+r}, v{Q+r}")
        a(f"v_add_f32 v{Y+8+r}, v{P1+r}, v{Q+r}")
        a(f"v_sub_f32 v{Y+12+r}, v{P1+r}, v{Q+r}")
    for r in range(4):
        a(f"v_fmac_f32 v{Y+r}, s67, v{EX0+r}")
        a(f"v_add_f32 v{Y+4+r}, v{Y+4+r}, v{EX0+r}")
        a(f"v_add_f32 v{Y+8+r}, v{Y+8+r}, v{EX1+r}")
        a(f"v_fmac_f32 v{Y+12+r}, s67, v{EX1+r}")
    a(f"v_cndmask_b32 v{Y}, v{Y}, 0, s[70:71]")
    a(f"v_cndmask_b32 v{Y+8}, v{Y+8}, 0, s[70:71]")
    for r in range(0, 16, 2):
        a(f"v_pk_add_f32 {vr(Y+r,2)}, {vr(Y+r,2)}, {vr(XU+r,2)}")
    HP = 156
    for r in range(8):
        a(f"v_cvt_pk_bf16_f32 v{HP+r}, v{Y+2*r}, v{Y+2*r+1}")
    S = 164
    for r in range(4):
        a(f"v_mov_b32 v{S+r}, 0")
    a(f"""
    buffer_store_dwordx2 {vr(HP,2)}, v32, s[56:59], 0 offen
    buffer_store_dwordx2 {vr(HP+2,2)}, v32, s[56:59], s64 offen
    buffer_store_dwordx2 {vr(HP+4,2)}, v32, s[56:59], s65 offen
    buffer_store_dwordx2 {vr(HP+6,2)}, v32, s[56:59], s66 offen
    """)
    for mir in range(2):
        for d in range(4):
            a(f"v_dot2c_f32_bf16 v{S+2*mir}, s68, v{HP+4*mir+d}")
            a(f"v_dot2c_f32_bf16 v{S+2*mir+1}, v{HP+4*mir+d}, v{HP+4*mir+d}")
    a.nop(3)
    treduce4(a, S, S + 1, S + 2, S + 3)
    a(f"buffer_store_dword v{S}, v33, s[60:63], 0 offen")
    a("s_branch K2_end")
    a.label("K2_helper")
    a(f"""
    s_cmp_ge_u32 s2, 28
    s_cbranch_scc1 K2_end
    s_lshl_b32 s34, s2, 8
    v_lshl_add_u32 v4, v0, 2, s34
    s_waitcnt lgkmcnt(0)
    """)
    srd(a, 12, 32, 33, CSP_SZ, CSP_OFF)
    srd(a, 16, 32, 33, CSUM_SZ, CSUM_OFF)
    a("s_mov_b32 s34, 0")
    for r in range(32):
        a(f"buffer_load_dword v{8+r}, v4, s[12:15], s34 offen")
        if r < 31:
            a(f"s_add_u32 s34, s34, {1792*4}")
    a("s_waitcnt vmcnt(0)")
    n = 32
    while n > 1:
        n //= 2
        for r in range(n):
            a(f"v_add_f32 v{8+r}, v{8+r}, v{8+n+r}")
    a("buffer_store_dword v8, v4, s[16:19], 0 offen")
    a.label("K2_end")
    a("s_endpgm")
    return descriptor("k2_kernel", 236, 236)


G1_LDS = 512 * 224


def gen_g1(a, cfg):
    kernel_head(a, "g1_kernel")
    sRB, sCB = 36, 37
    a("""
    s_cmp_ge_u32 s2, 256
    s_cbranch_scc1 G1_end
    s_load_dwordx2 s[6:7], s[0:1], 48
    s_load_dwordx2 s[32:33], s[0:1], 80
    v_lshrrev_b32 v1, 6, v0
    v_and_b32 v0, 63, v0
    v_lshrrev_b32 v2, 4, v0
    v_readfirstlane_b32 s3, v1
    v_and_b32 v3, 15, v0
    s_and_b32 s34, s2, 7
    s_lshr_b32 s35, s2, 3
    """)
    if cfg["g1map"] == 0:
        a(f"""
        s_lshl_b32 s{sRB}, s34, 1
        s_and_b32 s38, s35, 1
        s_add_u32 s{sRB}, s{sRB}, s38
        s_lshr_b32 s{sCB}, s35, 1
        """)
    else:
        a(f"""
        s_lshr_b32 s{sRB}, s34, 1
        s_lshl_b32 s{sRB}, s{sRB}, 2
        s_and_b32 s38, s35, 3
        s_add_u32 s{sRB}, s{sRB}, s38
        s_and_b32 s{sCB}, s34, 1
        s_lshl_b32 s{sCB}, s{sCB}, 3
        s_lshr_b32 s38, s35, 2
        s_add_u32 s{sCB}, s{sCB}, s38
        """)
    a(f"""
    v_mul_u32_u24 v4, 0x4925, v0
    v_lshrrev_b32 v4, 18, v4
    v_mul_u32_u24 v5, 14, v4
    v_sub_u32 v5, v0, v5
    s_mul_i32 s38, s{sCB}, 224
    v_lshl_add_u32 v5, v5, 4, s38
    v_mul_u32_u24 v6, 3584, v4
    v_add_u32 v7, v5, v6
    v_sub_u32 v8, {3*3584}, v6
    v_add_u32 v8, v5, v8
    v_sub_u32 v9, {256*3584}, v6
    v_cmp_eq_u32 vcc, 0, v4
    v_add_u32 v9, v5, v9
    s_nop 0
    v_cndmask_b32 v9, v9, v5, vcc
    """)
    a(f"""
    s_cmp_eq_u32 s3, 0
    s_cselect_b64 s[40:41], -1, 0
    v_cndmask_b32 v9, v8, v9, s[40:41]
    """)
    a(f"""
    s_lshl_b32 s34, s{sRB}, 17
    s_lshl_b32 s35, s3, 15
    s_add_u32 s34, s34, s35
    v_lshl_add_u32 v10, v0, 4, s34
    v_add_u32 v11, 0x4000, v10
    """)
    a(f"""
    s_lshl_b32 s34, s{sRB}, 14
    s_lshl_b32 s35, s3, 12
    s_add_u32 s34, s34, s35
    v_lshl_add_u32 v12, v3, 7, s34
    v_lshl_add_u32 v12, v2, 5, v12
    """)
    a(f"""
    s_and_b32 s42, s{sCB}, 1
    s_lshl_b32 s43, s42, 4
    s_cmp_eq_u32 s42, 0
    s_cselect_b32 s44, 96, 0
    s_mul_i32 s34, s{sCB}, 112
    s_add_u32 s35, s34, s43
    s_lshl_b32 s35, s35, 2
    v_lshl_add_u32 v13, v2, 4, s35
    s_add_u32 s35, s34, s44
    s_lshl_b32 s35, s35, 2
    v_lshl_add_u32 v14, v2, 4, s35
    """)
    a(f"""
    v_lshrrev_b32 v15, 2, v0
    v_mul_u32_u24 v15, 224, v15
    v_and_b32 v16, 3, v0
    v_lshl_add_u32 v15, v16, 3, v15
    s_lshl_b32 s34, s43, 1
    s_lshl_b32 s35, s44, 1
    v_add_u32 v16, s34, v15
    v_add_u32 v17, s35, v15
    v_add_u32 v18, {8*7168}, v16
    v_add_u32 v19, {8*7168}, v17
    s_waitcnt lgkmcnt(0)
    """)
    srd(a, 12, 6, 7, 512 * 3584)
    srd(a, 16, 32, 33, H_SZ, H_OFF)
    srd(a, 20, 32, 33, STAT_SZ, STAT_OFF)
    srd(a, 24, 32, 33, CSUM_SZ, CSUM_OFF)
    srd(a, 28, 32, 33, H1_SZ, H1_OFF)
    STT = 20
    CSV = 36
    ACC = 64
    WF = 120
    acc = lambda u, mt: ACC + (u * 2 + mt) * 4
    wf = lambda b, u: WF + (b * 7 + u) * 4
    hf = lambda mt, ks: (ks * 2 + mt) * 4
    for mt in range(2):
        for h in range(2):
            a(f"buffer_load_dwordx4 {vr(STT+mt*8+h*4,4)}, v12, s[20:23], 0 offen offset:{mt*2048+h*16}")
    for u in range(6):
        a(f"buffer_load_dwordx4 {vr(CSV+4*u,4)}, v13, s[24:27], 0 offen offset:{u*64}")
    a(f"buffer_load_dwordx4 {vr(CSV+24,4)}, v14, s[24:27], 0 offen")
    a(f"""
    s_mul_i32 s45, s3, {16*3584}
    s_mul_i32 s46, s3, {16*224}
    s_sub_u32 s47, {(768-256-3)*3584}, s45
    s_cmp_eq_u32 s3, 0
    s_cselect_b32 s48, {256*3584}, s47
    s_mov_b32 s50, -1
    s_mov_b32 s51, 0x00ffffff
    s_mov_b32 s52, 4096
    s_mov_b32 s53, 8192
    s_mov_b32 s54, 12288
    """)
    for ph in range(8):
        a("s_mov_b64 exec, s[50:51]")
        for q in range(4):
            a(f"s_add_u32 m0, s46, {ph*64*224 + q*896}")
            if ph < 4:
                a(f"s_add_u32 s49, s45, {(ph*64+q*4)*3584}")
                a("buffer_load_dwordx4 v7, s[12:15], s49 offen lds")
            elif ph == 4 and q == 0:
                a("s_nop 0")
                a("buffer_load_dwordx4 v9, s[12:15], s48 offen lds")
            else:
                a(f"s_sub_u32 s49, s47, {((ph-4)*64+q*4)*3584}")
                a("buffer_load_dwordx4 v8, s[12:15], s49 offen lds")
        a("s_mov_b64 exec, -1")
        for ks in (2 * ph, 2 * ph + 1):
            so = "0" if ks < 4 else f"s{51 + ks//4}"
            for mt in range(2):
                a(f"buffer_load_dwordx4 {ar(hf(mt,ks),4)}, v{10+mt}, s[16:19], {so} offen offset:{(ks%4)*1024}")
    a("s_waitcnt vmcnt(63)")
    a("s_waitcnt vmcnt(56)")
    MEAN, RSTD = 176, 178
    for mt in range(2):
        b = STT + mt * 8
        a(f"""
        v_pk_add_f32 {vr(b,2)}, {vr(b,2)}, {vr(b+2,2)}
        v_pk_add_f32 {vr(b+4,2)}, {vr(b+4,2)}, {vr(b+6,2)}
        v_pk_add_f32 {vr(b,2)}, {vr(b,2)}, {vr(b+4,2)}
        """)
    vals = [STT, STT + 1, STT + 8, STT + 9]
    tmp = [STT + 2, STT + 3, STT + 10, STT + 11]
    for swap in ("v_permlane32_swap_b32", "v_permlane16_swap_b32"):
        for v, t in zip(vals, tmp):
            a(f"v_mov_b32 v{t}, v{v}")
        a.nop(2)
        for v, t in zip(vals, tmp):
            a(f"{swap} v{v}, v{t}")
        a.nop(1)
        for v, t in zip(vals, tmp):
            a(f"v_add_f32 v{v}, v{v}, v{t}")
    for mt in range(2):
        b = STT + mt * 8
        a(f"""
        v_mul_f32 v{MEAN+mt}, 0xbb000000, v{b}
        v_mul_f32 v{b+1}, 0x3b000000, v{b+1}
        v_fma_f32 v{b+1}, -v{MEAN+mt}, v{MEAN+mt}, v{b+1}
        v_max_f32 v{b+1}, 0, v{b+1}
        v_add_f32 v{b+1}, 0x3727c5ac, v{b+1}
        v_rsq_f32 v{RSTD+2*mt}, v{b+1}
        """)
    a("s_barrier")

    def trreads(ks, u):
        b = ks & 1
        base = (16 if u < 6 else 17) + (2 if ks >= 8 else 0)
        off = (ks % 8) * 7168 + (u * 32 if u < 6 else 0)
        a(f"ds_read_b64_tr_b16 {vr(wf(b,u),2)}, v{base} offset:{off}")
        a(f"ds_read_b64_tr_b16 {vr(wf(b,u)+2,2)}, v{base} offset:{off+3584}")

    for u in range(7):
        trreads(0, u)
    for u in range(7):
        for mt in range(2):
            for r in range(4):
                a(f"v_mul_f32 v{acc(u,mt)+r}, v{MEAN+mt}, v{CSV+4*u+r}")
    a(f"v_mov_b32 v{RSTD+1}, v{RSTD}")
    a(f"v_mov_b32 v{RSTD+3}, v{RSTD+2}")
    for ks in range(16):
        nxt = ks + 1
        if nxt < 16 and nxt % 2 == 0:
            ph = nxt // 2
            a(f"s_waitcnt vmcnt({56 - 8*ph})")
            a("s_barrier")
        for u in range(7):
            if nxt < 16:
                trreads(nxt, u)
                a("s_waitcnt lgkmcnt(14)")
            else:
                a(f"s_waitcnt lgkmcnt({12-2*u})")
            for mt in range(2):
                mfma(a, vr(acc(u, mt), 4), vr(wf(ks & 1, u), 4), ar(hf(mt, ks), 4))
    a(f"""
    s_lshl_b32 s34, s{sRB}, 3
    s_lshl_b32 s35, s3, 1
    s_add_u32 s34, s34, s35
    s_mul_i32 s34, s34, 57344
    s_mul_i32 s35, s{sCB}, 7
    s_add_u32 s38, s35, s42
    s_lshl_b32 s38, s38, 9
    s_add_u32 s38, s38, s34
    v_lshl_add_u32 v20, v0, 4, s38
    s_cmp_eq_u32 s42, 0
    s_cselect_b32 s38, 6, 0
    s_add_u32 s35, s35, s38
    s_lshr_b32 s38, s35, 1
    s_lshl_b32 s38, s38, 10
    s_and_b32 s35, s35, 1
    s_lshl_b32 s35, s35, 3
    s_add_u32 s38, s38, s35
    s_add_u32 s38, s38, s34
    v_lshl_add_u32 v21, v0, 4, s38
    s_mov_b32 s39, 57344
    """)
    a.nop(4)
    OUT = 120
    k = 0
    for mt in range(2):
        for v in range(4):
            us = (2 * v, 2 * v + 1) if v < 3 else (6,)
            o = OUT + k * 4
            k += 1
            for n, u in enumerate(us):
                d = acc(u, mt)
                a(f"v_pk_mul_f32 {vr(d,2)}, {vr(d,2)}, {vr(RSTD+2*mt,2)}")
                a(f"v_pk_mul_f32 {vr(d+2,2)}, {vr(d+2,2)}, {vr(RSTD+2*mt,2)}")
                a(f"v_cvt_pk_bf16_f32 v{o+2*n}, v{d}, v{d+1}")
                a(f"v_cvt_pk_bf16_f32 v{o+2*n+1}, v{d+2}, v{d+3}")
                a(f"v_pk_max_i16 v{o+2*n}, v{o+2*n}, 0")
                a(f"v_pk_max_i16 v{o+2*n+1}, v{o+2*n+1}, 0")
            so = "0" if mt == 0 else "s39"
            if v < 3:
                a(f"buffer_store_dwordx4 {vr(o,4)}, v20, s[28:31], {so} offen offset:{v*1024}")
            else:
                a(f"buffer_store_dwordx2 {vr(o,2)}, v21, s[28:31], {so} offen")
    a.label("G1_end")
    a("s_endpgm")
    return descriptor("g1_kernel", 184 + 128, 184)


G2_SLOTS = 8
G2_LDS = 4 * G2_SLOTS * 4096


def gen_g2(a, cfg):
    kernel_head(a, "g2_kernel")
    sRB, sNB = 36, 37
    DEPTH = 7
    a("""
    s_cmp_ge_u32 s2, 256
    s_cbranch_scc1 G2_end
    s_load_dwordx4 s[4:7], s[0:1], 56
    s_load_dwordx2 s[32:33], s[0:1], 80
    v_lshrrev_b32 v1, 6, v0
    v_and_b32 v0, 63, v0
    v_lshrrev_b32 v2, 4, v0
    v_readfirstlane_b32 s3, v1
    v_and_b32 v3, 15, v0
    s_and_b32 s34, s2, 7
    s_lshr_b32 s35, s2, 3
    """)
    if cfg["g2map"] == 0:
        a(f"""
        s_lshl_b32 s{sRB}, s34, 2
        s_and_b32 s38, s35, 3
        s_add_u32 s{sRB}, s{sRB}, s38
        s_lshr_b32 s{sNB}, s35, 2
        """)
    else:
        a(f"""
        s_lshr_b32 s{sRB}, s34, 1
        s_lshl_b32 s{sRB}, s{sRB}, 3
        s_and_b32 s38, s35, 7
        s_add_u32 s{sRB}, s{sRB}, s38
        s_and_b32 s{sNB}, s34, 1
        s_lshl_b32 s{sNB}, s{sNB}, 2
        s_lshr_b32 s38, s35, 3
        s_add_u32 s{sNB}, s{sNB}, s38
        """)
    a(f"""
    v_bfe_u32 v4, v0, 1, 2
    v_xor_b32 v4, v4, v2
    v_and_b32 v5, 1, v0
    v_lshl_or_b32 v4, v4, 1, v5
    v_lshrrev_b32 v5, 3, v0
    v_lshlrev_b32 v5, 10, v5
    v_lshl_add_u32 v4, v4, 4, v5
    s_lshl_b32 s34, s{sNB}, 7
    s_mul_i32 s35, s3, {448*1024}
    s_add_u32 s34, s34, s35
    v_add_u32 v4, s34, v4
    v_add_u32 v5, 7168, v4
    v_add_u32 v6, {2*7168}, v4
    v_add_u32 v7, {3*7168}, v4
    """)
    for lm in range(4):
        a(f"""
        s_xor_b32 s34, s3, {lm}
        s_lshl_b32 s35, s{sRB}, 2
        s_add_u32 s34, s34, s35
        s_mul_i32 s34, s34, 57344
        s_mul_i32 s35, s3, {14*1024}
        s_add_u32 s34, s34, s35
        v_lshl_add_u32 v{8+lm}, v0, 4, s34
        """)
    a(f"""
    v_lshrrev_b32 v16, 2, v0
    v_bfe_u32 v17, v0, 3, 2
    v_and_b32 v18, 3, v0
    s_mul_i32 s40, s3, {G2_SLOTS*4096}
    v_lshl_add_u32 v16, v16, 7, s40
    v_lshl_add_u32 v16, v18, 3, v16
    """)
    for u in range(4):
        a(f"v_xor_b32 v18, {u}, v17")
        a(f"v_lshl_add_u32 v{12+u}, v18, 5, v16")
    a(f"""
    s_lshl_b32 s34, s{sRB}, 2
    s_add_u32 s34, s34, s3
    s_lshl_b32 s41, s34, 14
    v_lshl_add_u32 v16, v3, 4, s41
    s_cmp_ge_u32 s{sNB}, 4
    s_cbranch_scc1 G2_res_mirror
    s_lshl_b32 s34, s{sNB}, 11
    v_lshl_add_u32 v17, v2, 8, v16
    v_add_u32 v17, s34, v17
    v_mov_b32 v18, {OOB}
    v_mov_b32 v19, {OOB}
    v_mov_b32 v20, {OOB}
    v_mov_b32 v21, {OOB}
    s_branch G2_res_done
    """)
    a.label("G2_res_mirror")
    a(f"""
    s_sub_u32 s34, 11, s{sNB}
    s_lshl_b32 s34, s34, 11
    v_sub_u32 v18, 3, v2
    v_lshl_add_u32 v17, v18, 8, v16
    v_add_u32 v17, s34, v17
    v_cmp_eq_u32 vcc, 0, v2
    v_add_u32 v22, s34, v16
    """)
    for u in range(4):
        hb = 3 - u
        off_n = (hb >> 1) * 1024 + (hb & 1) * 8 + 256
        hb2 = 4 - u
        off_0 = (hb2 >> 1) * 1024 + (hb2 & 1) * 8
        a(f"v_add_u32 v{18+u}, {off_n}, v17")
        a(f"v_add_u32 v23, {off_0}, v22")
        if u == 0:
            a(f"""
            v_add_u32 v24, {32*256}, v16
            s_cmp_eq_u32 s{sNB}, 4
            s_cselect_b64 s[42:43], -1, 0
            v_cndmask_b32 v23, v23, v24, s[42:43]
            """)
        a(f"v_cndmask_b32 v{18+u}, v{18+u}, v23, vcc")
    a.label("G2_res_done")
    a("s_waitcnt lgkmcnt(0)")
    srd(a, 12, 4, 5, 1792 * 1024)
    srd(a, 16, 32, 33, H1_SZ, H1_OFF)
    srd(a, 20, 32, 33, H_SZ, H_OFF)
    srd(a, 24, 6, 7, 2048 * 1024)
    RES, RE1 = 24, 32
    a(f"""
    buffer_load_dwordx4 {vr(RES,4)}, v17, s[20:23], 0 offen
    buffer_load_dwordx4 {vr(RES+4,4)}, v17, s[20:23], 0 offen offset:1024
    """)
    for u in range(4):
        a(f"buffer_load_ushort v{RE1+u}, v{18+u}, s[20:23], 0 offen")
    ACC = 40
    WF = 104
    acc = lambda u, lm: ACC + (u * 4 + lm) * 4
    wf = lambda b, u: WF + (b * 4 + u) * 4
    hf = lambda lm, ks: (ks * 4 + lm) * 4
    a("""
    s_mov_b32 s52, 4096
    s_mov_b32 s53, 8192
    s_mov_b32 s54, 12288
    """)

    def issue(ks):
        slot = ks % G2_SLOTS
        a(f"s_add_u32 m0, s40, {slot*4096}")
        a(f"s_mov_b32 s44, {ks*32*1024}")
        for i in range(4):
            a(f"buffer_load_dwordx4 v{4+i}, s[12:15], s44 offen offset:{i*1024} lds")
        so = "0" if ks < 4 else f"s{51 + ks//4}"
        for lm in range(4):
            a(f"buffer_load_dwordx4 {ar(hf(lm,ks),4)}, v{8+lm}, s[16:19], {so} offen offset:{(ks%4)*1024}")

    def trreads(ks, u):
        off = (ks % G2_SLOTS) * 4096
        b = ks & 1
        a(f"ds_read_b64_tr_b16 {vr(wf(b,u),2)}, v{12+u} offset:{off}")
        a(f"ds_read_b64_tr_b16 {vr(wf(b,u)+2,2)}, v{12+u} offset:{off+2048}")

    NK = 14
    for ks in range(DEPTH):
        issue(ks)
    issued = DEPTH
    a(f"s_waitcnt vmcnt({8*(issued-1)})")
    for u in range(4):
        trreads(0, u)
    for ks in range(NK):
        nxt = ks + 1
        if nxt < NK:
            a(f"s_waitcnt vmcnt({8*(issued-1-nxt)})")
        for u in range(4):
            if nxt < NK:
                trreads(nxt, u)
                a("s_waitcnt lgkmcnt(8)")
            else:
                a(f"s_waitcnt lgkmcnt({6-2*u})")
            for lm in (1, 2, 3, 0):
                mfma(a, vr(acc(u, lm), 4), vr(wf(ks & 1, u), 4), ar(hf(lm, ks), 4), "0" if ks == 0 else None)
            if u == 0 and issued < NK:
                issue(issued)
                issued += 1
    a(f"v_lshl_add_u32 v16, v0, 4, s40")
    for lm in range(1, 4):
        a(f"""
        s_xor_b32 s34, s3, {lm}
        s_mul_i32 s34, s34, {G2_SLOTS*4096}
        s_add_u32 s34, s34, {(lm-1)*4096}
        v_lshl_add_u32 v{16+lm}, v0, 4, s34
        """)
    a.nop(2)
    for lm in range(1, 4):
        for u in range(4):
            a(f"ds_write_b128 v16, {vr(acc(u,lm),4)} offset:{(lm-1)*4096+u*1024}")
    a(f"""
    s_lshr_b32 s34, s{sRB}, 4
    s_and_b32 s35, s{sRB}, 15
    s_lshl_b32 s35, s35, 6
    s_add_u32 s34, s34, s35
    s_and_b32 s35, s3, 1
    s_lshl_b32 s35, s35, 5
    s_add_u32 s34, s34, s35
    v_lshl_add_u32 v20, v3, 1, s34
    v_cmp_eq_u32 vcc, 0, v20
    v_sub_u32 v21, 0x800, v20
    v_mov_b32 v22, 0x400
    s_cmp_ge_u32 s3, 2
    s_cselect_b64 s[42:43], -1, 0
    v_cndmask_b32 v21, v21, v22, vcc
    v_cndmask_b32 v20, v20, v21, s[42:43]
    s_lshl_b32 s34, s{sNB}, 7
    v_lshl_add_u32 v21, v2, 5, s34
    v_lshl_add_u32 v20, v20, 10, v21
    s_mov_b32 s45, 0xffff0000
    """)
    RU = 104
    a(f"""
    s_cmp_ge_u32 s{sNB}, 4
    s_cbranch_scc1 G2_unp_mirror
    """)
    for u in range(4):
        s = RES + 2 * u
        a(f"""
        v_lshlrev_b32 v{RU+4*u}, 16, v{s}
        v_and_b32 v{RU+4*u+1}, s45, v{s}
        v_lshlrev_b32 v{RU+4*u+2}, 16, v{s+1}
        v_and_b32 v{RU+4*u+3}, s45, v{s+1}
        """)
    a("s_branch G2_unp_done")
    a.label("G2_unp_mirror")
    for u in range(4):
        s = RES + 2 * (3 - u)
        a(f"""
        v_lshlrev_b32 v{RU+4*u}, 16, v{RE1+u}
        v_and_b32 v{RU+4*u+1}, s45, v{s+1}
        v_lshlrev_b32 v{RU+4*u+2}, 16, v{s+1}
        v_and_b32 v{RU+4*u+3}, s45, v{s}
        """)
    a.label("G2_unp_done")
    for u in range(4):
        for r in (0, 2):
            a(f"v_pk_add_f32 {vr(acc(u,0)+r,2)}, {vr(acc(u,0)+r,2)}, {vr(RU+4*u+r,2)}")
    a("""
    s_waitcnt lgkmcnt(0)
    s_barrier
    """)
    RD = 120
    for lm in range(1, 4):
        for u in range(4):
            a(f"ds_read_b128 {vr(RD+((lm-1)*4+u)*4,4)}, v{16+lm} offset:{u*1024}")
    for lm in range(1, 4):
        a(f"s_waitcnt lgkmcnt({8-4*(lm-1)})")
        for u in range(4):
            for r in (0, 2):
                a(f"v_pk_add_f32 {vr(acc(u,0)+r,2)}, {vr(acc(u,0)+r,2)}, {vr(RD+((lm-1)*4+u)*4+r,2)}")
    O = 104
    for u in range(4):
        a(f"v_cvt_pk_bf16_f32 v{O+2*u}, v{acc(u,0)}, v{acc(u,0)+1}")
        a(f"v_cvt_pk_bf16_f32 v{O+2*u+1}, v{acc(u,0)+2}, v{acc(u,0)+3}")
    a.nop(2)
    for d in range(2):
        a(f"v_permlane32_swap_b32 v{O+d}, v{O+4+d}")
        a(f"v_permlane32_swap_b32 v{O+2+d}, v{O+6+d}")
    a.nop(2)
    for d in range(2):
        a(f"v_permlane16_swap_b32 v{O+d}, v{O+2+d}")
        a(f"v_permlane16_swap_b32 v{O+4+d}, v{O+6+d}")
    a.nop(2)
    a(f"buffer_store_dwordx4 {vr(O,4)}, v20, s[24:27], 0 offen")
    a(f"buffer_store_dwordx4 {vr(O+4,4)}, v20, s[24:27], 0 offen offset:16")
    a.label("G2_end")
    a("s_endpgm")
    return descriptor("g2_kernel", 168 + 224, 168)


HEADER = f"""; FNet (2-D real DFT mixing) + ReLU FFN block, pre-LN, for gfx950.  Generated by a hand-written generator script.
"""


def main():
    cfg = {"g1map": 0, "g2map": 0}
    out = f"cdna_kernels/{NAME}.s"
    for arg in sys.argv[1:]:
        if "=" in arg:
            k, v = arg.split("=")
            cfg[k] = int(v)
        else:
            out = arg
    a = Asm()
    a.raw(HEADER.rstrip("\n"))
    a.raw(f"; @launch kernel=k1_kernel grid=(256,1,1) block=(320,1,1) lds={K1_LDS}")
    a.raw(f"; @launch kernel=k2_kernel grid=(256,1,1) block=(320,1,1) lds={K2_LDS}")
    a.raw(f"; @launch kernel=g1_kernel grid=(256,1,1) block=(256,1,1) lds={G1_LDS}")
    a.raw(f"; @launch kernel=g2_kernel grid=(256,1,1) block=(256,1,1) lds={G2_LDS}")
    a.raw('.amdgcn_target "amdgcn-amd-amdhsa--gfx950"')
    a.raw(".text")
    descs = [gen_k1(a, cfg), gen_k2(a, cfg), gen_g1(a, cfg), gen_g2(a, cfg)]
    a.raw('.section .rodata,"a"')
    for d in descs:
        a.raw(".p2align 6")
        a.raw(d.rstrip("\n"))
    open(out, "w").write(a.text())


if __name__ == "__main__":
    main()
```

```python
import sys

NAME = "sequential_preLN__spectral_fnet__dense_activation_relu__prompt"

ZA_OFF = 0
ZA_SZ = 1 << 20
Z512_OFF = 1 << 20
Z512_SZ = 2048
CNT_OFF = (1 << 20) + (64 << 10)
CNT_SZ = 96 * 256
STAT_OFF = (1 << 20) + (640 << 10)
STAT_SZ = 2048 * 128
H_OFF = 2 << 20
H_SZ = 2 << 20
H1_OFF = 4 << 20
H1_SZ = 2048 * 1792 * 2
STAMP_OFF = 16 << 20
OOB = 0x7FFF0000

LDS_TOTAL = 163840
L_XA, L_GA, L_SA, L_TR = 0, 32768, 65536, 98304
L_RING, L_BX = 114688, 147456


class Asm:
    def __init__(self):
        self.lines = []
        self.vm = []
        self.diag = 0
        self.nstamp = 0

    def __call__(self, s):
        for ln in s.strip("\n").split("\n"):
            ln = ln.strip()
            if ln:
                self.lines.append("    " + ln)

    def label(self, s):
        self.lines.append(s + ":")

    def raw(self, s):
        self.lines.append(s)

    def c(self, s):
        self.lines.append("    ; " + s)

    def nop(self, n):
        while n > 0:
            k = min(n, 16)
            self.lines.append(f"    s_nop {k-1}")
            n -= k

    def vmem(self, tag, s):
        self(s)
        self.vm.append(tag)

    def vwait(self, *tags):
        last = -1
        for i, t in enumerate(self.vm):
            if t in tags:
                last = i
        if last < 0:
            return
        n = len(self.vm) - 1 - last
        self(f"s_waitcnt vmcnt({min(n, 63)})")
        self.vm = self.vm[last + 1:] if n <= 63 else self.vm[len(self.vm) - 63:]

    def vwait_all(self):
        self("s_waitcnt vmcnt(0)")
        self.vm = []

    def stamp(self):
        if not self.diag:
            return
        n = self.nstamp
        self.nstamp += 1
        self("s_memtime s[98:99]")
        self("s_waitcnt lgkmcnt(0)")
        self(f"v_writelane_b32 v255, s98, {n}")

    def text(self):
        return "\n".join(self.lines) + "\n"


def vr(b, n=1):
    return f"v{b}" if n == 1 else f"v[{b}:{b+n-1}]"


def ar(b, n=1):
    return f"a{b}" if n == 1 else f"a[{b}:{b+n-1}]"


def srd(a, d, lo, hi, size, off=0):
    if off:
        a(f"s_add_u32 s{d}, s{lo}, {off}")
        a(f"s_addc_u32 s{d+1}, s{hi}, 0")
    else:
        a(f"s_mov_b32 s{d}, s{lo}")
        a(f"s_mov_b32 s{d+1}, s{hi}")
    a(f"s_mov_b32 s{d+2}, {size}")
    a(f"s_mov_b32 s{d+3}, 0x20000")


def mfma(a, d, x, y, c=None):
    a(f"v_mfma_f32_16x16x32_bf16 {d}, {x}, {y}, {d if c is None else c}")


def treduce4(a, r0, r1, r2, r3):
    a(f"v_permlane32_swap_b32 v{r0}, v{r2}")
    a(f"v_permlane32_swap_b32 v{r1}, v{r3}")
    a.nop(1)
    a(f"v_add_f32 v{r0}, v{r0}, v{r2}")
    a(f"v_add_f32 v{r1}, v{r1}, v{r3}")
    a.nop(2)
    a(f"v_permlane16_swap_b32 v{r0}, v{r1}")
    a.nop(1)
    a(f"v_add_f32 v{r0}, v{r0}, v{r1}")


def allreduce_g(a, vals, tmps):
    for swap in ("v_permlane32_swap_b32", "v_permlane16_swap_b32"):
        for v, t in zip(vals, tmps):
            a(f"v_mov_b32 v{t}, v{v}")
        a.nop(2)
        for v, t in zip(vals, tmps):
            a(f"{swap} v{v}, v{t}")
        a.nop(1)
        for v, t in zip(vals, tmps):
            a(f"v_add_f32 v{v}, v{v}, v{t}")


def transpose4(a, r0, r1, r2, r3):
    a(f"v_permlane32_swap_b32 v{r0}, v{r2}")
    a(f"v_permlane32_swap_b32 v{r1}, v{r3}")
    a.nop(2)
    a(f"v_permlane16_swap_b32 v{r0}, v{r1}")
    a(f"v_permlane16_swap_b32 v{r2}, v{r3}")


sW = 3
sRB, sC16, sSB, sE4, sPT, sE, sP, sT = 4, 5, 6, 7, 8, 9, 10, 11
R_X, R_CR, R_CI, R_DR, R_DI, R_W1, R_W2, R_OUT = 12, 16, 20, 24, 28, 32, 36, 40
R_ZA, R_Z5, R_CNT, R_ST, R_H, R_H1, R_DBG, R_CF = 44, 48, 52, 56, 60, 64, 68, 72
T0, T1, T2, T3 = 76, 77, 78, 79
sK4, sK8, sK12 = 80, 81, 82
sONES, sHI = 83, 84
sA, sB, sC, sD, sF, sG = 85, 86, 87, 88, 89, 90
sEX = 92
sM = 94
sWS = 96

vL, vG, vI, vL16 = 0, 1, 2, 3


def R(b):
    return f"s[{b}:{b+3}]"


def poll(a, name, vaddr, vtmp, lanes_mask, target):
    a(f"""
    s_cmp_lg_u32 s{sW}, 0
    s_cbranch_scc1 {name}_done
    s_mov_b64 exec, {lanes_mask}
    s_mov_b32 s{T0}, 0
    """)
    a.label(f"{name}_loop")
    a(f"""
    buffer_load_dword v{vtmp}, v{vaddr}, {R(R_CNT)}, 0 offen sc1
    s_add_u32 s{T0}, s{T0}, 1
    s_cmp_ge_u32 s{T0}, 0x40000
    s_cbranch_scc1 {name}_exit
    s_waitcnt vmcnt(0)
    v_cmp_gt_u32 vcc, {target}, v{vtmp}
    s_cbranch_vccnz {name}_loop
    """)
    a.label(f"{name}_exit")
    a("s_mov_b64 exec, -1")
    a.label(f"{name}_done")
    a("s_barrier")


def arrive(a, name, vaddr, vtmp, lanes_mask):
    a(f"""
    s_cmp_lg_u32 s{sW}, 0
    s_cbranch_scc1 {name}_skip
    v_mov_b32 v{vtmp}, 1
    s_mov_b64 exec, {lanes_mask}
    buffer_atomic_add v{vtmp}, v{vaddr}, {R(R_CNT)}, 0 offen sc1
    s_mov_b64 exec, -1
    """)
    a.label(f"{name}_skip")


def gen(a, cfg):
    kname = NAME + "_kernel"
    a.raw(f".globl {kname}")
    a.raw(".p2align 8")
    a.raw(f".type {kname},@function")
    a.label(kname)
    a("""
    s_cmp_ge_u32 s2, 256
    s_cbranch_scc1 L_end
    s_load_dwordx16 s[12:27], s[0:1], 0
    s_load_dwordx4 s[28:31], s[0:1], 64
    s_load_dwordx2 s[96:97], s[0:1], 80
    v_lshrrev_b32 v4, 6, v0
    v_and_b32 v0, 63, v0
    v_lshrrev_b32 v1, 4, v0
    v_readfirstlane_b32 s3, v4
    v_and_b32 v2, 15, v0
    v_lshlrev_b32 v3, 4, v0
    """)
    if a.diag:
        a("v_mov_b32 v255, 0")
    a.stamp()
    a(f"""
    s_and_b32 s{T0}, s2, 7
    s_lshr_b32 s{T1}, s2, 3
    s_and_b32 s{T2}, s{T1}, 1
    s_lshl_b32 s{sRB}, s{T0}, 1
    s_add_u32 s{sRB}, s{sRB}, s{T2}
    s_lshr_b32 s{sC16}, s{T1}, 1
    s_lshl_b32 s{sSB}, s{T0}, 3
    s_and_b32 s{T2}, s{T1}, 7
    s_add_u32 s{sSB}, s{sSB}, s{T2}
    s_lshr_b32 s{sE4}, s{T1}, 3
    s_and_b32 s{T2}, s{sC16}, 1
    s_lshl_b32 s{sPT}, s{sRB}, 1
    s_add_u32 s{sPT}, s{sPT}, s{T2}
    s_lshr_b32 s{sE}, s{sC16}, 1
    s_lshr_b32 s{sP}, s{sPT}, 4
    s_and_b32 s{sT}, s{sPT}, 15
    s_mov_b32 s{sK4}, 4096
    s_mov_b32 s{sK8}, 8192
    s_mov_b32 s{sK12}, 12288
    s_mov_b32 s{sONES}, 0x3f803f80
    s_mov_b32 s{sHI}, 0xffff0000
    s_mov_b32 s{sEX}, -1
    s_mov_b32 s{sEX+1}, 0x00ffffff
    """)
    a(f"""
    s_lshl_b32 s{T0}, s{sE4}, 6
    s_lshl_b32 s{T1}, s{sW}, 4
    s_add_u32 s{T0}, s{T0}, s{T1}
    """)
    for n in range(4):
        a(f"""
        v_add_u32 v4, {4*n}, v{vG}
        v_xor_b32 v5, v4, v{vI}
        v_add_u32 v4, s{T0}, v4
        v_lshlrev_b32 v5, 4, v5
        v_lshl_add_u32 v{8+n}, v4, 10, v5
        """)
        if n == 0:
            a(f"""
            v_cmp_eq_u32 vcc, 0, v4
            v_add_u32 v12, 0x40000, v8
            s_nop 0
            v_cndmask_b32 v12, v8, v12, vcc
            """)
    a("s_waitcnt lgkmcnt(0)")
    a.stamp()
    srd(a, R_DBG, 30, 31, 256)
    a(f"""
    s_cmp_eq_u32 s{sP}, 0
    s_cselect_b32 s{R_CF}, s14, s16
    s_cselect_b32 s{R_CF+1}, s15, s17
    s_mov_b32 s{R_CF+2}, {2048*4096}
    s_mov_b32 s{R_CF+3}, 0x20000
    """)
    srd(a, R_OUT, 28, 29, 2048 * 1024)
    srd(a, R_W2, 26, 27, 1792 * 1024)
    srd(a, R_W1, 24, 25, 512 * 3584)
    srd(a, R_DI, 20, 21, 512 * 1024)
    srd(a, R_DR, 18, 19, 512 * 1024)
    srd(a, R_CI, 16, 17, 2048 * 4096)
    srd(a, R_CR, 14, 15, 2048 * 4096)
    a(f"s_mov_b32 s{R_X+2}, {2048*1024}")
    a(f"s_mov_b32 s{R_X+3}, 0x20000")
    srd(a, R_CNT, sWS, sWS + 1, CNT_SZ, CNT_OFF)
    a(f"""
    s_lshl_b32 s{T3}, s2, 2
    s_add_u32 s{T3}, s{T3}, s{sW}
    s_cmp_lg_u32 s{T3}, 3
    s_cbranch_scc1 L_noleader
    v_lshlrev_b32 v4, 8, v{vL}
    v_mov_b32 v5, 0
    s_mov_b32 s{T0}, 16384
    buffer_store_dword v5, v4, {R(R_CNT)}, 0 offen sc1
    buffer_store_dword v5, v4, {R(R_CNT)}, s{T0} offen sc1
    """)
    a.label("L_noleader")
    a(f"""
    s_and_b32 s{T0}, s{sW}, 1
    s_lshl_b32 s{T1}, s{T0}, 2
    s_lshr_b32 s{T2}, s{sW}, 1
    s_add_u32 s{T1}, s{T1}, s{T2}
    s_lshl_b32 s{T2}, s{sSB}, 3
    s_add_u32 s{sA}, s{T1}, s{T2}
    s_lshl_b32 s{sB}, s{T0}, 7
    s_lshl_b32 s{sC}, s{sW}, 13
    v_xor_b32 v13, s{sB}, v{vL16}
    """)
    for q in range(8):
        r = q & 3
        add = 2 * (q >> 2)
        if r == 0:
            a(f"s_add_u32 s{T0}, s{sA}, {add}")
        elif r == 1:
            a(f"s_sub_u32 s{T0}, {2048-add}, s{sA}")
            if add == 0:
                a(f"s_cmp_eq_u32 s{sA}, 0\ns_cselect_b32 s{T0}, 512, s{T0}")
        elif r == 2:
            a(f"s_add_u32 s{T0}, s{sA}, {1024+add}")
        else:
            a(f"s_sub_u32 s{T0}, {1024-add}, s{sA}")
            if add == 0:
                a(f"s_cmp_eq_u32 s{sA}, 0\ns_cselect_b32 s{T0}, 1536, s{T0}")
        a(f"""
        s_lshl_b32 s{T0}, s{T0}, 10
        s_add_u32 m0, s{sC}, {L_XA + q*1024}
        v_xor_b32 v4, {q*16}, v13
        """)
        a.vmem("A", f"buffer_load_dwordx4 v4, {R(R_X)}, s{T0} offen lds")
    for typ in range(2):
        for n in range(4):
            a(f"s_add_u32 m0, s{sC}, {L_GA + typ*4096 + n*1024}")
            a("s_nop 0")
            v = 12 if (typ == 0 and n == 0) else 8 + n
            a.vmem("A", f"buffer_load_dwordx4 v{v}, {R(R_DI if typ else R_DR)}, 0 offen lds")
    srd(a, R_ZA, sWS, sWS + 1, ZA_SZ, ZA_OFF)
    srd(a, R_Z5, sWS, sWS + 1, Z512_SZ, Z512_OFF)
    srd(a, R_ST, sWS, sWS + 1, STAT_SZ, STAT_OFF)
    srd(a, R_H, sWS, sWS + 1, H_SZ, H_OFF)
    srd(a, R_H1, sWS, sWS + 1, H1_SZ, H1_OFF)
    a.stamp()
    a(f"""
    s_cmp_lg_u32 s{T3}, 3
    s_cbranch_scc1 L_noleader2
    s_waitcnt vmcnt(16)
    v_mov_b32 v4, 1
    v_mov_b32 v5, 0
    s_mov_b64 exec, 1
    buffer_store_dword v4, v5, {R(R_DBG)}, 0 offen sc1
    s_mov_b64 exec, -1
    """)
    a.label("L_noleader2")

    a(f"""
    s_lshl_b32 s{T0}, s{sT}, 6
    s_add_u32 s{T0}, s{T0}, s{sP}
    s_and_b32 s{T1}, s{sW}, 1
    s_lshl_b32 s{T1}, s{T1}, 5
    s_add_u32 s{T0}, s{T0}, s{T1}
    s_lshl_b32 s{sD}, s{T0}, 12
    s_lshl_b32 s{sF}, s{sW}, 14
    s_cmp_ge_u32 s{sW}, 2
    s_cselect_b32 s{sM}, s{R_CI}, s{R_CR}
    s_cselect_b32 s{sM+1}, s{R_CI+1}, s{R_CR+1}
    """)
    a(f"""
    s_mov_b32 s{R_DR}, s{sM}
    s_mov_b32 s{R_DR+1}, s{sM+1}
    s_mov_b32 s{R_DR+2}, {2048*4096}
    """)

    def trig_dma(q):
        a(f"""
        s_add_u32 s{T0}, s{sD}, {q*8192}
        s_add_u32 m0, s{sF}, {L_TR + q*1024}
        v_xor_b32 v4, {q*16}, v{vL16}
        """)
        a.vmem("T", f"buffer_load_dwordx4 v4, {R(R_DR)}, s{T0} offen lds")

    a(f"""
    v_mul_u32_u24 v4, 0x4925, v{vL}
    v_lshrrev_b32 v4, 18, v4
    v_mul_u32_u24 v5, 14, v4
    v_sub_u32 v5, v{vL}, v5
    s_mul_i32 s{T0}, s{sC16}, 224
    v_lshl_add_u32 v5, v5, 4, s{T0}
    v_mul_u32_u24 v6, 3584, v4
    v_add_u32 v14, v5, v6
    v_sub_u32 v15, {3*3584}, v6
    v_add_u32 v15, v5, v15
    v_sub_u32 v16, {256*3584}, v6
    v_cmp_eq_u32 vcc, 0, v4
    v_add_u32 v16, v5, v16
    s_cmp_eq_u32 s{sW}, 0
    s_cselect_b64 s[{sM}:{sM+1}], -1, 0
    v_cndmask_b32 v16, v16, v5, vcc
    s_mul_i32 s{sG}, s{sW}, {4*3584}
    v_cndmask_b32 v16, v15, v16, s[{sM}:{sM+1}]
    s_mul_i32 s91, s{sW}, 896
    """)

    def w1_dma(ks):
        a(f"s_mov_b64 exec, s[{sEX}:{sEX+1}]")
        a(f"s_add_u32 m0, s91, {ks*7168}")
        a(f"s_add_u32 s{T0}, s{sG}, {16*ks*3584}")
        a.vmem("W1", f"buffer_load_dwordx4 v14, {R(R_W1)}, s{T0} offen lds")
        a(f"s_add_u32 m0, s91, {ks*7168 + 3584}")
        a(f"s_sub_u32 s{T0}, {(509-16*ks)*3584}, s{sG}")
        if ks == 0:
            a(f"s_cmp_eq_u32 s{sW}, 0\ns_cselect_b32 s{T0}, {256*3584}, s{T0}")
        a.vmem("W1", f"buffer_load_dwordx4 v{16 if ks == 0 else 15}, {R(R_W1)}, s{T0} offen lds")
        a("s_mov_b64 exec, -1")

    bg = [lambda q=q: trig_dma(q) for q in range(16)] + [lambda ks=ks: w1_dma(ks) for ks in (10, 11, 12)]

    def bg_issue(n):
        for _ in range(n):
            if bg:
                bg.pop(0)()

    bg_issue(cfg["bg0"])

    a(f"""
    v_lshrrev_b32 v4, 2, v{vI}
    v_xor_b32 v4, s{sW}, v4
    v_and_b32 v5, 3, v{vI}
    v_xor_b32 v5, v5, v{vG}
    v_lshlrev_b32 v5, 4, v5
    s_add_u32 s{T0}, s{sC}, {L_GA}
    """)
    for kp in range(4):
        a(f"""
        v_xor_b32 v6, {kp}, v4
        v_lshl_add_u32 v6, v6, 6, v5
        v_lshl_add_u32 v{17+kp}, v{vI}, 10, v6
        v_lshl_add_u32 v6, v{vI}, 8, v6
        v_add_u32 v{21+kp}, s{T0}, v6
        """)
    GF = 32
    XFB = 64
    ACC = 128
    gf = lambda typ, kp: GF + (typ * 4 + kp) * 4
    xf = lambda b, Q, tau: XFB + b * 32 + (Q * 2 + tau) * 4
    acc = lambda Q, tau, typ: ACC + ((Q * 2 + tau) * 2 + typ) * 4
    ST = 192
    for r in range(6):
        a(f"v_mov_b32 v{ST+r}, 0")
    SIG, C1, S1, CSM = 200, 202, 204, 206
    a(f"""
    v_and_b32 v4, 1, v{vI}
    v_lshlrev_b32 v5, 31, v4
    v_or_b32 v{SIG}, 1.0, v5
    v_and_b32 v5, 2, v{vI}
    v_lshlrev_b32 v5, 30, v5
    v_or_b32 v5, 1.0, v5
    v_cmp_eq_u32 vcc, 0, v4
    v_mov_b32 v{SIG+1}, v{SIG}
    v_and_b32 v6, 3, v{vI}
    v_cndmask_b32 v{C1}, 0, v5, vcc
    v_cndmask_b32 v{S1}, v5, 0, vcc
    v_cmp_eq_u32 vcc, 0, v6
    v_mov_b32 v{C1+1}, v{C1}
    v_mov_b32 v{S1+1}, v{S1}
    v_cndmask_b32 v{CSM}, 0, 4.0, vcc
    """)
    a.vwait("A")
    a("s_barrier")
    a.stamp()
    for typ in range(2):
        for kp in range(4):
            a(f"ds_read_b128 {vr(gf(typ,kp),4)}, v{21+kp} offset:{typ*4096}")

    def xreads(kp):
        for Q in range(4):
            for tau in range(2):
                a(f"ds_read_b128 {vr(xf(kp&1,Q,tau),4)}, v{17+kp} offset:{L_XA + Q*256 + tau*16384}")

    xreads(0)
    for kp in range(4):
        if kp < 3:
            a("s_waitcnt lgkmcnt(0)")
            xreads(kp + 1)
        else:
            a("s_waitcnt lgkmcnt(0)")
        fill = []
        if kp == 0:
            for Q in range(4):
                for tau in range(2):
                    for d in range(4):
                        x = xf(0, Q, tau) + d
                        fill.append(f"v_dot2c_f32_bf16 v{ST+2*tau}, s{sONES}, v{x}")
                        fill.append(f"v_dot2c_f32_bf16 v{ST+2*tau+1}, v{x}, v{x}")
        elif kp == 1:
            for typ in range(2):
                for k2 in range(4):
                    for d in range(4):
                        fill.append(f"v_dot2c_f32_bf16 v{ST+4+typ}, s{sONES}, v{gf(typ,k2)+d}")
        per = (len(fill) + 15) // 16
        for Q in range(4):
            for tau in range(2):
                for typ in range(2):
                    mfma(a, vr(acc(Q, tau, typ), 4), vr(xf(kp & 1, Q, tau), 4), vr(gf(typ, kp), 4), "0" if kp == 0 else None)
                    for _ in range(per):
                        if fill:
                            a(fill.pop(0))
            if kp >= 1:
                bg_issue(cfg["bgA"])
        if kp == 1:
            a.nop(3)
            treduce4(a, ST, ST + 1, ST + 2, ST + 3)
            a(f"""
            s_lshl_b32 s{T0}, s{sW}, 2
            s_add_u32 s{T0}, s{T0}, {L_SA}
            v_add_u32 v4, s{T0}, v{vL16}
            ds_write_b32 v4, v{ST}
            """)
            allreduce_g(a, [ST + 4, ST + 5], [ST + 6, ST + 7])
            a(f"v_mul_f32 v{ST+4}, v{CSM}, v{ST+4}")
            a(f"v_mul_f32 v{ST+5}, v{CSM}, v{ST+5}")
    a("s_waitcnt lgkmcnt(0)")
    a("s_barrier")
    a.stamp()
    a(f"""
    v_and_b32 v4, 1, v{vG}
    v_lshlrev_b32 v4, 9, v4
    v_lshl_add_u32 v4, v{vI}, 4, v4
    v_add_u32 v4, {L_SA}, v4
    ds_read_b128 v[64:67], v4
    ds_read_b128 v[68:71], v4 offset:256
    s_lshl_b32 s{T0}, s{sW}, 9
    s_add_u32 s{T0}, s{T0}, {L_SA+1024}
    v_and_b32 v5, 31, v{vL}
    v_lshl_add_u32 v5, v5, 2, s{T0}
    v_lshl_add_u32 v6, v{vG}, 4, s{T0}
    """)
    bg += [lambda ks=ks: w1_dma(ks) for ks in range(9)]
    bg_issue(cfg["bgA2"])
    for tau in range(2):
        for r in (0, 2):
            C = [acc(Q, tau, 0) + r for Q in range(4)]
            I = [acc(Q, tau, 1) + r for Q in range(4)]
            t0, t1, t2, t3 = 72, 74, 76, 78
            a(f"""
            v_pk_add_f32 {vr(t0,2)}, {vr(C[1],2)}, {vr(C[3],2)}
            v_pk_add_f32 {vr(t1,2)}, {vr(I[1],2)}, {vr(I[3],2)} neg_lo:[0,1] neg_hi:[0,1]
            v_pk_add_f32 {vr(t2,2)}, {vr(I[1],2)}, {vr(I[3],2)}
            v_pk_add_f32 {vr(t3,2)}, {vr(C[3],2)}, {vr(C[1],2)} neg_lo:[0,1] neg_hi:[0,1]
            v_pk_fma_f32 {vr(C[0],2)}, {vr(SIG,2)}, {vr(C[2],2)}, {vr(C[0],2)}
            v_pk_fma_f32 {vr(I[0],2)}, {vr(SIG,2)}, {vr(I[2],2)}, {vr(I[0],2)}
            v_pk_fma_f32 {vr(C[0],2)}, {vr(C1,2)}, {vr(t0,2)}, {vr(C[0],2)}
            v_pk_fma_f32 {vr(I[0],2)}, {vr(C1,2)}, {vr(t2,2)}, {vr(I[0],2)}
            v_pk_fma_f32 {vr(C[0],2)}, {vr(S1,2)}, {vr(t1,2)}, {vr(C[0],2)}
            v_pk_fma_f32 {vr(I[0],2)}, {vr(S1,2)}, {vr(t3,2)}, {vr(I[0],2)}
            """)
    a(f"""
    s_waitcnt lgkmcnt(0)
    v_add_f32 v64, v64, v65
    v_add_f32 v66, v66, v67
    v_add_f32 v68, v68, v69
    v_add_f32 v70, v70, v71
    v_add_f32 v64, v64, v66
    v_add_f32 v68, v68, v70
    v_mul_f32 v64, 0x3b000000, v64
    v_mul_f32 v68, 0x3b000000, v68
    v_fma_f32 v68, -v64, v64, v68
    v_max_f32 v68, 0, v68
    v_add_f32 v68, 0x3727c5ac, v68
    v_rsq_f32 v68, v68
    s_lshl_b32 s{T0}, s{sSB}, 6
    v_and_b32 v65, 0x1d, v{vL}
    v_or_b32 v65, s{T0}, v65
    v_cmp_eq_u32 vcc, 1, v65
    ds_write_b32 v5, v64 offset:128
    ds_write_b32 v5, v68 offset:256
    v_cndmask_b32 v69, v68, 0, vcc
    ds_write_b32 v5, v69
    s_waitcnt lgkmcnt(0)
    """)
    KK, MM = 80, 88
    for tau in range(2):
        a(f"ds_read_b128 {vr(KK+4*tau,4)}, v6 offset:{tau*64}")
        a(f"ds_read_b128 {vr(MM+4*tau,4)}, v6 offset:{128+tau*64}")
    a(f"ds_read_b128 v[96:99], v6 offset:256")
    a(f"""
    s_lshl_b32 s{T0}, s{sE4}, 2
    s_add_u32 s{T0}, s{T0}, s{sW}
    s_lshl_b32 s{T0}, s{T0}, 14
    s_lshl_b32 s{T1}, s{sSB}, 8
    s_add_u32 s{T0}, s{T0}, s{T1}
    v_lshl_add_u32 v7, v{vI}, 4, s{T0}
    v_lshl_add_u32 v7, v{vG}, 18, v7
    s_waitcnt lgkmcnt(0)
    """)
    OZ = 100
    for tau in range(2):
        for typ in range(2):
            d = acc(0, tau, typ)
            for r in range(4):
                a(f"v_fma_f32 v{d+r}, -v{MM+4*tau+r}, v{ST+4+typ}, v{d+r}")
            sg = "-" if typ else ""
            e, f = 108, 109
            a(f"""
            v_mul_f32 v{e}, v{KK+4*tau}, v{d}
            v_mul_f32 v{f}, v{KK+4*tau+2}, v{d+2}
            v_fma_f32 v{e}, {sg}v{KK+4*tau+1}, v{d+1}, v{e}
            v_fma_f32 v{f}, {sg}v{KK+4*tau+3}, v{d+3}, v{f}
            v_add_f32 v{OZ+(typ*2+0)*2+tau}, v{e}, v{f}
            v_sub_f32 v{OZ+(typ*2+1)*2+tau}, v{e}, v{f}
            """)
    for arr in range(4):
        a(f"v_cvt_pk_bf16_f32 v{112+arr}, v{OZ+2*arr}, v{OZ+2*arr+1}")
    a.nop(2)
    transpose4(a, 112, 113, 114, 115)
    a.nop(1)
    a.vmem("SZ", f"buffer_store_dwordx4 v[112:115], v7, {R(R_ZA)}, 0 offen sc1")
    a(f"""
    s_cmp_lg_u32 s{sSB}, 0
    s_cbranch_scc1 L_noex
    v_mul_f32 v108, v97, v{acc(0,0,0)+1}
    v_mul_f32 v109, v97, v{acc(0,0,1)+1}
    v_fma_f32 v108, v99, v{acc(0,0,0)+3}, v108
    v_fma_f32 v109, -v99, v{acc(0,0,1)+3}, v109
    s_lshl_b32 s{T0}, s{sE4}, 8
    s_lshl_b32 s{T1}, s{sW}, 6
    s_add_u32 s{T0}, s{T0}, s{T1}
    v_lshl_add_u32 v110, v{vI}, 2, s{T0}
    s_mov_b64 exec, 0xffff
    buffer_store_dword v108, v110, {R(R_Z5)}, 0 offen sc1
    buffer_store_dword v109, v110, {R(R_Z5)}, 0 offen offset:1024 sc1
    s_mov_b64 exec, -1
    s_waitcnt vmcnt(0)
    """)
    a.label("L_noex")
    a.stamp()
    bg_issue(cfg["bgA3"])
    vT, vROW1, vJ2 = 26, 27, 28
    a(f"""
    s_lshr_b32 s{sA}, s{sW}, 1
    s_and_b32 s{sB}, s{sW}, 1
    s_lshl_b32 s{T0}, s{sT}, 6
    s_add_u32 s{T0}, s{T0}, s{sP}
    s_lshl_b32 s{T1}, s{sA}, 5
    s_add_u32 s{T0}, s{T0}, s{T1}
    v_lshl_add_u32 v{vT}, v{vI}, 1, s{T0}
    v_cmp_eq_u32 vcc, 0, v{vT}
    v_sub_u32 v{vROW1}, 0x800, v{vT}
    v_mov_b32 v4, 0x400
    s_lshl_b32 s{T0}, s{sE}, 6
    s_lshl_b32 s{T1}, s{sB}, 5
    s_add_u32 s{T0}, s{T0}, s{T1}
    v_cndmask_b32 v{vROW1}, v{vROW1}, v4, vcc
    v_lshl_add_u32 v{vJ2}, v{vG}, 3, s{T0}
    v_sub_u32 v5, 1016, v{vJ2}
    v_lshl_add_u32 v8, v{vT}, 10, v{vJ2}
    v_lshl_add_u32 v9, v{vT}, 10, v5
    v_lshl_add_u32 v10, v{vROW1}, 10, v{vJ2}
    v_lshl_add_u32 v11, v{vROW1}, 10, v5
    v_lshlrev_b32 v12, 10, v{vT}
    v_lshlrev_b32 v13, 10, v{vROW1}
    v_lshlrev_b32 v6, 12, v{vT}
    v_mov_b32 v7, {1024*4096}
    v_cndmask_b32 v7, v6, v7, vcc
    """)
    XD0, XM0, XD1, XM1 = 208, 210, 214, 216
    X256a, X256b, CF0, CF1 = 219, 220, 221, 222
    a.vmem("BX", f"buffer_load_dwordx2 {vr(XD0,2)}, v8, {R(R_X)}, 0 offen")
    a.vmem("BX", f"buffer_load_dwordx3 {vr(XM0,3)}, v9, {R(R_X)}, 0 offen")
    a.vmem("BX", f"buffer_load_dwordx2 {vr(XD1,2)}, v10, {R(R_X)}, 0 offen")
    a.vmem("BX", f"buffer_load_dwordx3 {vr(XM1,3)}, v11, {R(R_X)}, 0 offen")
    a.vmem("BX", f"buffer_load_ushort v{X256a}, v12, {R(R_X)}, 0 offen offset:512")
    a.vmem("BX", f"buffer_load_ushort v{X256b}, v13, {R(R_X)}, 0 offen offset:512")
    a.vmem("BX", f"buffer_load_ushort v{CF0}, v6, {R(R_CF)}, 0 offen offset:1024")
    a.vmem("BX", f"buffer_load_ushort v{CF1}, v7, {R(R_CF)}, 0 offen offset:1024")
    vC1a, vC1p, vC2 = 29, 30, 31
    a(f"""
    s_lshl_b32 s{T0}, s{sE4}, 2
    s_and_b32 s{T1}, s{sSB}, 3
    s_add_u32 s{T0}, s{T0}, s{T1}
    s_lshl_b32 s{T0}, s{T0}, 10
    v_lshl_add_u32 v{vC1a}, v{vL}, 8, s{T0}
    s_lshr_b32 s{T0}, s{sE}, 1
    s_lshl_b32 s{T0}, s{T0}, 12
    s_and_b32 s{T1}, s{sPT}, 3
    s_lshl_b32 s{T1}, s{T1}, 8
    s_add_u32 s{T0}, s{T0}, s{T1}
    v_lshl_add_u32 v{vC1p}, v{vL}, 10, s{T0}
    s_lshl_b32 s{T0}, s{sRB}, 8
    s_add_u32 s{T0}, s{T0}, {64*256}
    v_mov_b32 v{vC2}, s{T0}
    """)
    a(f"""
    s_cmp_lg_u32 s{sW}, 0
    s_cbranch_scc1 L_rdy_done
    v_mov_b32 v4, 0
    s_mov_b64 exec, 1
    s_mov_b32 s{T0}, 0
    """)
    a.label("L_rdy_loop")
    a(f"""
    buffer_load_dword v5, v4, {R(R_DBG)}, 0 offen sc1
    s_add_u32 s{T0}, s{T0}, 1
    s_cmp_ge_u32 s{T0}, 0x40000
    s_cbranch_scc1 L_rdy_exit
    s_waitcnt vmcnt(0)
    v_cmp_eq_u32 vcc, 0, v5
    s_cbranch_vccnz L_rdy_loop
    """)
    a.label("L_rdy_exit")
    a("s_mov_b64 exec, -1")
    a.label("L_rdy_done")
    a.vwait("SZ", "T")
    a("s_barrier")
    arrive(a, "L_ar1", vC1a, 4, "0xf")
    a.stamp()
    bg_issue(100)
    a(f"""
    v_lshrrev_b32 v4, 2, v{vI}
    v_and_b32 v5, 3, v{vI}
    v_xor_b32 v5, v5, v{vG}
    v_lshlrev_b32 v5, 4, v5
    v_lshl_add_u32 v5, v{vI}, 10, v5
    s_mul_i32 s{T0}, s{sA}, {32768+16384}
    s_add_u32 s{T0}, s{T0}, {L_TR}
    s_lshl_b32 s{T1}, s{sA}, 15
    s_sub_u32 s{T1}, 16384, s{T1}
    v_add_u32 v5, s{T0}, v5
    """)
    for k3 in range(4):
        a(f"""
        v_xor_b32 v6, {k3}, v4
        v_lshl_add_u32 v{8+k3}, v6, 6, v5
        v_add_u32 v{17+k3}, s{T1}, v{8+k3}
        """)
    tf = lambda tl, ks: (tl * 16 + ks) * 4
    for tl in range(2):
        for ks in range(16):
            base = (8 if tl == 0 else 17) + (ks & 3)
            a(f"ds_read_b128 {ar(tf(tl,ks),4)}, v{base} offset:{(ks>>2)*256}")
    a(f"""
    v_bfe_u32 v4, v{vL}, 1, 2
    v_xor_b32 v4, v4, v{vG}
    v_and_b32 v5, 1, v{vL}
    v_lshl_or_b32 v4, v4, 1, v5
    v_lshrrev_b32 v5, 3, v{vL}
    v_lshlrev_b32 v5, 10, v5
    v_lshl_add_u32 v4, v4, 4, v5
    s_lshl_b32 s{T0}, s{sE}, 7
    s_mul_i32 s{T1}, s{sW}, {448*1024}
    s_add_u32 s{T0}, s{T0}, s{T1}
    v_add_u32 v240, s{T0}, v4
    v_add_u32 v241, 7168, v240
    v_add_u32 v242, {2*7168}, v240
    v_add_u32 v243, {3*7168}, v240
    v_lshrrev_b32 v4, 2, v{vL}
    v_bfe_u32 v5, v{vL}, 3, 2
    v_and_b32 v6, 3, v{vL}
    v_lshlrev_b32 v4, 7, v4
    v_lshl_add_u32 v4, v6, 3, v4
    """)
    for u in range(4):
        a(f"v_xor_b32 v6, {u}, v5")
        a(f"v_lshl_add_u32 v{244+u}, v6, 5, v4")
    a(f"""
    s_lshl_b32 s{sF}, s{sW}, 13
    s_add_u32 s{sF}, s{sF}, {L_RING}
    s_waitcnt lgkmcnt(0)
    s_barrier
    """)
    for ks in (9, 13, 14, 15):
        w1_dma(ks)

    def w2_dma(ks, sbase, off, tag):
        a(f"s_add_u32 m0, s{sbase}, {off}")
        a(f"s_mov_b32 s{T0}, {ks*32*1024}")
        for i in range(4):
            a.vmem(tag, f"buffer_load_dwordx4 v{240+i}, {R(R_W2)}, s{T0} offen offset:{i*1024} lds")

    W2R = 128
    w2r = lambda ks, u: W2R + (ks * 4 + u) * 4
    for u in range(4):
        a(f"v_add_u32 v{248+u}, s{sF}, v{244+u}")

    def w2_to_regs(ks, slot):
        for u in range(4):
            a(f"ds_read_b64_tr_b16 {ar(w2r(ks,u),2)}, v{248+u} offset:{slot*4096}")
            a(f"ds_read_b64_tr_b16 {ar(w2r(ks,u)+2,2)}, v{248+u} offset:{slot*4096+2048}")

    w2_dma(0, sF, 0, "W2a")
    w2_dma(1, sF, 4096, "W2a")
    a(f"""
    s_lshl_b32 s{T0}, s{sA}, 1
    s_add_u32 s{T0}, s{T0}, s{sP}
    s_lshl_b32 s{T0}, s{T0}, 18
    s_lshl_b32 s{T1}, s{sE}, 1
    s_add_u32 s{T1}, s{T1}, s{sB}
    s_lshl_b32 s{T1}, s{T1}, 14
    s_add_u32 s{T0}, s{T0}, s{T1}
    v_add_u32 v8, s{T0}, v{vL16}
    v_lshlrev_b32 v9, 1, v{vJ2}
    s_lshl_b32 s{T0}, s{sP}, 10
    v_add_u32 v9, s{T0}, v9
    v_mov_b32 v32, 0xbf803f80
    v_mov_b32 v33, 0xbf803f80
    v_mov_b32 v34, 0xbf803f80
    v_mov_b32 v35, 0xbf803f80
    """)
    a.vwait("BX")
    XU = 224
    for mir, (xd, xm, x256) in enumerate(((XD0, XM0, X256a), (XD1, XM1, X256b))):
        b = XU + mir * 8
        a(f"""
        v_lshlrev_b32 v{b}, 16, v{xd}
        v_and_b32 v{b+1}, s{sHI}, v{xd}
        v_lshlrev_b32 v{b+2}, 16, v{xd+1}
        v_and_b32 v{b+3}, s{sHI}, v{xd+1}
        v_lshlrev_b32 v{b+4}, 16, v{xm+2}
        v_and_b32 v{b+5}, s{sHI}, v{xm+1}
        v_lshlrev_b32 v{b+6}, 16, v{xm+1}
        v_and_b32 v{b+7}, s{sHI}, v{xm}
        v_lshlrev_b32 v{x256}, 16, v{x256}
        """)
    a(f"""
    v_cmp_eq_u32 s[{sM}:{sM+1}], 0, v{vJ2}
    v_lshlrev_b32 v{CF0}, 16, v{CF0}
    v_lshlrev_b32 v{CF1}, 16, v{CF1}
    s_nop 0
    v_cndmask_b32 v{XU+4}, v{XU+4}, v{X256a}, s[{sM}:{sM+1}]
    v_cndmask_b32 v{XU+12}, v{XU+12}, v{X256b}, s[{sM}:{sM+1}]
    """)
    a.stamp()
    poll(a, "L_p1", vC1p, 4, "0xf", 16)
    a.stamp()
    ZF = 64
    Z5 = 36
    for ks in range(16):
        so = "0" if ks < 4 else f"s{sK4 - 1 + ks//4}"
        a.vmem(f"Z{ks}", f"buffer_load_dwordx4 {vr(ZF+4*ks,4)}, v8, {R(R_ZA)}, {so} offen offset:{(ks%4)*1024} sc1")
    a.vmem("Z5", f"buffer_load_dwordx4 {vr(Z5,4)}, v9, {R(R_Z5)}, 0 offen sc1")
    BA0, BA1, BAX = 40, 44, 48
    a(f"""
    s_lshl_b32 s{T0}, s{sPT}, 16
    s_lshl_b32 s{T1}, s{sA}, 14
    s_add_u32 s{T0}, s{T0}, s{T1}
    s_lshl_b32 s{T1}, s{sE}, 1
    s_add_u32 s{T1}, s{T1}, s{sB}
    s_lshl_b32 s{T2}, s{T1}, 10
    s_add_u32 s{T0}, s{T0}, s{T2}
    v_add_u32 v10, s{T0}, v{vL16}
    s_lshl_b32 s{T0}, s{sPT}, 13
    s_lshl_b32 s{T2}, s{sA}, 11
    s_add_u32 s{T0}, s{T0}, s{T2}
    s_lshl_b32 s{T1}, s{T1}, 3
    s_add_u32 s{T0}, s{T0}, s{T1}
    v_lshrrev_b32 v11, 1, v{vG}
    v_and_b32 v12, 1, v{vG}
    v_lshlrev_b32 v11, 12, v11
    v_lshl_add_u32 v11, v12, 2, v11
    v_lshl_add_u32 v11, v{vI}, 7, v11
    v_add_u32 v11, s{T0}, v11
    s_lshl_b32 s{T0}, s{sW}, 10
    s_add_u32 s{T0}, s{T0}, {L_BX}
    v_add_u32 v12, s{T0}, v{vL16}
    s_xor_b32 s{T0}, s{T0}, 0x800
    v_add_u32 v13, s{T0}, v{vL16}
    s_cmp_eq_u32 s{sP}, 0
    s_cselect_b32 s{sC}, 1.0, -1.0
    s_cmp_eq_u32 s{sA}, 0
    s_cselect_b32 s{sD}, 1.0, -1.0
    s_mov_b32 s{sG}, 0x8000
    """)
    for ks in range(16):
        a.vwait(f"Z{ks}")
        c0 = "0" if ks == 0 else None
        mfma(a, vr(BA1, 4), vr(ZF + 4 * ks, 4), ar(tf(1, ks), 4), c0)
        mfma(a, vr(BA0, 4), vr(ZF + 4 * ks, 4), ar(tf(0, ks), 4), c0)
        mfma(a, vr(BAX, 4), vr(ZF + 4 * ks, 4), "v[32:35]", c0)
    a.nop(6)
    a(f"ds_write_b128 v12, {vr(BA1,4)}")
    a.vwait("Z5")
    EX0, EX1, Y = 52, 56, 128
    for r in range(4):
        a(f"v_mul_f32 v{EX0+r}, v{CF0}, v{Z5+r}")
        a(f"v_mul_f32 v{EX1+r}, v{CF1}, v{Z5+r}")
    a(f"""
    v_cmp_eq_u32 vcc, 0, v{vT}
    s_waitcnt lgkmcnt(0)
    s_barrier
    ds_read_b128 v[60:63], v13
    s_waitcnt lgkmcnt(0)
    """)
    a.stamp()
    for r in range(4):
        a(f"v_sub_f32 v{Y+r}, v{BA0+r}, v{60+r}")
        a(f"v_add_f32 v{Y+4+r}, v{BA0+r}, v{60+r}")
    for r in range(4):
        a(f"v_mul_f32 v{Y+r}, s{sD}, v{Y+r}")
        a(f"v_cndmask_b32 v{Y+8+r}, v{Y+4+r}, v{BAX+r}, vcc")
    for r in range(4):
        a(f"v_cndmask_b32 v{Y+12+r}, v{Y+r}, v{BAX+r}, vcc")
    for r in range(4):
        a(f"v_fmac_f32 v{Y+r}, s{sC}, v{EX0+r}")
        a(f"v_add_f32 v{Y+4+r}, v{Y+4+r}, v{EX0+r}")
        a(f"v_add_f32 v{Y+8+r}, v{Y+8+r}, v{EX1+r}")
        a(f"v_fmac_f32 v{Y+12+r}, s{sC}, v{EX1+r}")
    a(f"v_cndmask_b32 v{Y}, v{Y}, 0, s[{sM}:{sM+1}]")
    a(f"v_cndmask_b32 v{Y+8}, v{Y+8}, 0, s[{sM}:{sM+1}]")
    for r in range(0, 16, 2):
        a(f"v_pk_add_f32 {vr(Y+r,2)}, {vr(Y+r,2)}, {vr(XU+r,2)}")
    HP, S = 144, 152
    for r in range(8):
        a(f"v_cvt_pk_bf16_f32 v{HP+r}, v{Y+2*r}, v{Y+2*r+1}")
    for r in range(4):
        a(f"v_mov_b32 v{S+r}, 0")
    a.vmem("SH", f"buffer_store_dwordx4 {vr(HP,4)}, v10, {R(R_H)}, 0 offen sc1")
    a.vmem("SH", f"buffer_store_dwordx4 {vr(HP+4,4)}, v10, {R(R_H)}, s{sG} offen sc1")
    for mir in range(2):
        for d in range(4):
            a(f"v_dot2c_f32_bf16 v{S+2*mir}, s{sONES}, v{HP+4*mir+d}")
            a(f"v_dot2c_f32_bf16 v{S+2*mir+1}, v{HP+4*mir+d}, v{HP+4*mir+d}")
    a.nop(3)
    treduce4(a, S, S + 1, S + 2, S + 3)
    a.vmem("SH", f"buffer_store_dword v{S}, v11, {R(R_ST)}, 0 offen sc1")
    a.stamp()
    w2_to_regs(0, 0)
    w2_to_regs(1, 1)
    a(f"""
    s_and_b32 s{sA}, s{sC16}, 1
    s_lshl_b32 s{T0}, s{sA}, 5
    s_cmp_eq_u32 s{sA}, 0
    s_cselect_b32 s{T1}, 192, 0
    v_lshrrev_b32 v4, 2, v{vL}
    v_mul_u32_u24 v4, 224, v4
    v_and_b32 v5, 3, v{vL}
    v_lshl_add_u32 v4, v5, 3, v4
    v_add_u32 v16, s{T0}, v4
    v_add_u32 v17, s{T1}, v4
    v_add_u32 v18, {8*7168}, v16
    v_add_u32 v19, {8*7168}, v17
    s_lshl_b32 s{T0}, s{sRB}, 17
    s_lshl_b32 s{T1}, s{sW}, 15
    s_add_u32 s{T0}, s{T0}, s{T1}
    v_add_u32 v10, s{T0}, v{vL16}
    v_add_u32 v11, 0x4000, v10
    s_lshl_b32 s{T0}, s{sRB}, 14
    s_lshl_b32 s{T1}, s{sW}, 12
    s_add_u32 s{T0}, s{T0}, s{T1}
    v_lshl_add_u32 v12, v{vI}, 7, s{T0}
    v_lshl_add_u32 v12, v{vG}, 5, v12
    v_mov_b32 v32, s{sONES}
    v_mov_b32 v33, s{sONES}
    v_mov_b32 v34, s{sONES}
    v_mov_b32 v35, s{sONES}
    s_waitcnt lgkmcnt(0)
    """)
    w2_dma(2, sF, 0, "W2b")
    w2_dma(3, sF, 4096, "W2b")
    a.vwait("SH", "W1")
    a("s_barrier")
    arrive(a, "L_ar2", vC2, 4, "1")
    a.stamp()
    CSV = 36
    CACC = 64
    WF = 120
    cacc = lambda u, mt: CACC + (u * 2 + mt) * 4
    wf = lambda b, u: WF + (b * 7 + u) * 4
    hf = lambda mt, ks: (ks * 2 + mt) * 4

    def trreads(ks, u):
        b = ks & 1
        base = (16 if u < 6 else 17) + (2 if ks >= 8 else 0)
        off = (ks % 8) * 7168 + (u * 32 if u < 6 else 0)
        a(f"ds_read_b64_tr_b16 {vr(wf(b,u),2)}, v{base} offset:{off}")
        a(f"ds_read_b64_tr_b16 {vr(wf(b,u)+2,2)}, v{base} offset:{off+3584}")

    for u in range(7):
        trreads(0, u)
    for ks in range(16):
        nxt = (ks + 1)
        for u in range(7):
            trreads(nxt % 16, u)
            a("s_waitcnt lgkmcnt(14)")
            mfma(a, vr(CSV + 4 * u, 4), vr(wf(ks & 1, u), 4), "v[32:35]", "0" if ks == 0 else None)
    a.vwait("W2b")
    w2_to_regs(2, 0)
    w2_to_regs(3, 1)
    a.stamp()
    poll(a, "L_p2", vC2, 4, "1", 16)
    a.stamp()
    STT = 176
    for mt in range(2):
        for h in range(2):
            a.vmem("ST", f"buffer_load_dwordx4 {vr(STT+mt*8+h*4,4)}, v12, {R(R_ST)}, 0 offen offset:{mt*2048+h*16} sc1")

    def hload(ks):
        so = "0" if ks < 4 else f"s{sK4 - 1 + ks//4}"
        for mt in range(2):
            a.vmem(f"H{ks}", f"buffer_load_dwordx4 {ar(hf(mt,ks),4)}, v{10+mt}, {R(R_H)}, {so} offen offset:{(ks%4)*1024} sc1")

    HD = cfg["hdepth"]
    for ks in range(HD):
        hload(ks)
    a.vwait("ST")
    MEAN, RSTD = 192, 194
    for mt in range(2):
        b = STT + mt * 8
        a(f"""
        v_pk_add_f32 {vr(b,2)}, {vr(b,2)}, {vr(b+2,2)}
        v_pk_add_f32 {vr(b+4,2)}, {vr(b+4,2)}, {vr(b+6,2)}
        v_pk_add_f32 {vr(b,2)}, {vr(b,2)}, {vr(b+4,2)}
        """)
    allreduce_g(a, [STT, STT + 1, STT + 8, STT + 9], [STT + 2, STT + 3, STT + 10, STT + 11])
    for mt in range(2):
        b = STT + mt * 8
        a(f"""
        v_mul_f32 v{MEAN+mt}, 0xbb000000, v{b}
        v_mul_f32 v{b+1}, 0x3b000000, v{b+1}
        v_fma_f32 v{b+1}, -v{MEAN+mt}, v{MEAN+mt}, v{b+1}
        v_max_f32 v{b+1}, 0, v{b+1}
        v_add_f32 v{b+1}, 0x3727c5ac, v{b+1}
        v_rsq_f32 v{RSTD+2*mt}, v{b+1}
        """)
    for u in range(7):
        for mt in range(2):
            for r in range(4):
                a(f"v_mul_f32 v{cacc(u,mt)+r}, v{MEAN+mt}, v{CSV+4*u+r}")
    a(f"v_mov_b32 v{RSTD+1}, v{RSTD}")
    a(f"v_mov_b32 v{RSTD+3}, v{RSTD+2}")
    a("s_waitcnt lgkmcnt(0)")
    for ks in range(16):
        nxt = ks + 1
        a.vwait(f"H{ks}")
        for u in range(7):
            if nxt < 16:
                trreads(nxt, u)
                a("s_waitcnt lgkmcnt(14)")
            else:
                a(f"s_waitcnt lgkmcnt({12-2*u})")
            for mt in range(2):
                mfma(a, vr(cacc(u, mt), 4), vr(wf(ks & 1, u), 4), ar(hf(mt, ks), 4))
            if u == 0 and ks + HD < 16:
                hload(ks + HD)
    a("s_barrier")
    a.stamp()
    a(f"""
    s_lshl_b32 s{T0}, s{sRB}, 3
    s_lshl_b32 s{T1}, s{sW}, 1
    s_add_u32 s{T0}, s{T0}, s{T1}
    s_mul_i32 s{T0}, s{T0}, 57344
    s_mul_i32 s{T1}, s{sC16}, 7
    s_add_u32 s{T2}, s{T1}, s{sA}
    s_lshl_b32 s{T2}, s{T2}, 9
    s_add_u32 s{T2}, s{T2}, s{T0}
    v_add_u32 v20, s{T2}, v{vL16}
    s_cmp_eq_u32 s{sA}, 0
    s_cselect_b32 s{T2}, 6, 0
    s_add_u32 s{T1}, s{T1}, s{T2}
    s_lshr_b32 s{T2}, s{T1}, 1
    s_lshl_b32 s{T2}, s{T2}, 10
    s_and_b32 s{T1}, s{T1}, 1
    s_lshl_b32 s{T1}, s{T1}, 3
    s_add_u32 s{T2}, s{T2}, s{T1}
    s_add_u32 s{T2}, s{T2}, s{T0}
    v_add_u32 v21, s{T2}, v{vL16}
    s_mov_b32 s{sG}, 57344
    s_mul_i32 s{sF}, s{sW}, 40960
    """)
    OUT = 120
    k = 0
    for mt in range(2):
        for v in range(4):
            us = (2 * v, 2 * v + 1) if v < 3 else (6,)
            o = OUT + k * 4
            k += 1
            for n, u in enumerate(us):
                d = cacc(u, mt)
                a(f"v_pk_mul_f32 {vr(d,2)}, {vr(d,2)}, {vr(RSTD+2*mt,2)}")
                a(f"v_pk_mul_f32 {vr(d+2,2)}, {vr(d+2,2)}, {vr(RSTD+2*mt,2)}")
                a(f"v_cvt_pk_bf16_f32 v{o+2*n}, v{d}, v{d+1}")
                a(f"v_cvt_pk_bf16_f32 v{o+2*n+1}, v{d+2}, v{d+3}")
                a(f"v_pk_max_i16 v{o+2*n}, v{o+2*n}, 0")
                a(f"v_pk_max_i16 v{o+2*n+1}, v{o+2*n+1}, 0")
            so = "0" if mt == 0 else f"s{sG}"
            if v < 3:
                a.vmem("S1", f"buffer_store_dwordx4 {vr(o,4)}, v20, {R(R_H1)}, {so} offen offset:{v*1024} sc1")
            else:
                a.vmem("S1", f"buffer_store_dwordx2 {vr(o,2)}, v21, {R(R_H1)}, {so} offen sc1")
    a.stamp()
    NPRE = 4
    nd0 = cfg["d0"]
    for ks in range(NPRE, NPRE + nd0):
        w2_dma(ks, sF, (ks - NPRE) * 4096, f"W{ks}")
    for lm in range(4):
        a(f"""
        s_xor_b32 s{T0}, s{sW}, {lm}
        s_lshl_b32 s{T1}, s{sPT}, 2
        s_add_u32 s{T0}, s{T0}, s{T1}
        s_mul_i32 s{T0}, s{T0}, 57344
        s_mul_i32 s{T1}, s{sW}, {14*1024}
        s_add_u32 s{T0}, s{T0}, s{T1}
        v_add_u32 v{8+lm}, s{T0}, v{vL16}
        """)
    for u in range(4):
        a(f"v_add_u32 v{248+u}, s{sF}, v{244+u}")
    a(f"v_add_u32 v{vC2}, {16*256}, v{vC2}")
    a(f"""
    s_lshl_b32 s{T0}, s{sPT}, 2
    s_add_u32 s{T0}, s{T0}, s{sW}
    s_lshl_b32 s{T0}, s{T0}, 14
    v_lshl_add_u32 v16, v{vI}, 4, s{T0}
    s_cmp_ge_u32 s{sE}, 4
    s_cbranch_scc1 L_res_mirror
    s_lshl_b32 s{T0}, s{sE}, 12
    v_lshl_add_u32 v17, v{vG}, 8, v16
    v_add_u32 v17, s{T0}, v17
    v_mov_b32 v18, {OOB}
    v_mov_b32 v19, {OOB}
    s_branch L_res_done
    """)
    a.label("L_res_mirror")
    a(f"""
    s_lshl_b32 s{T0}, s{sE}, 2
    s_sub_u32 s{T0}, 28, s{T0}
    s_lshl_b32 s{T0}, s{T0}, 10
    s_add_u32 s{T0}, s{T0}, 8
    v_sub_u32 v18, 3, v{vG}
    v_lshl_add_u32 v17, v18, 8, v16
    v_add_u32 v17, s{T0}, v17
    v_add_u32 v18, 256, v17
    v_add_u32 v19, {256+3072}, v17
    v_add_u32 v22, 8, v16
    v_or_b32 v23, s{sE}, v{vL16}
    v_and_b32 v23, 0x307, v23
    v_cmp_eq_u32 vcc, 4, v23
    s_nop 1
    v_cndmask_b32 v19, v19, v22, vcc
    """)
    a.label("L_res_done")
    RES, RE1 = 176, 184
    for up in range(4):
        a.vmem("RES", f"buffer_load_dwordx2 {vr(RES+2*up,2)}, v17, {R(R_H)}, 0 offen offset:{up*1024} sc1")
    for up in range(3):
        a.vmem("RES", f"buffer_load_ushort v{RE1+up}, v18, {R(R_H)}, 0 offen offset:{up*1024} sc1")
    a.vmem("RES", f"buffer_load_ushort v{RE1+3}, v19, {R(R_H)}, 0 offen sc1")
    a.vwait("S1")
    a("s_barrier")
    arrive(a, "L_ar3", vC2, 4, "1")
    a.stamp()
    for ks in range(NPRE + nd0, 14):
        w2_dma(ks, sF, (ks - NPRE) * 4096, f"W{ks}")
    a(f"""
    s_lshl_b32 s{T0}, s{sT}, 6
    s_add_u32 s{T0}, s{T0}, s{sP}
    s_and_b32 s{T1}, s{sW}, 1
    s_lshl_b32 s{T1}, s{T1}, 5
    s_add_u32 s{T0}, s{T0}, s{T1}
    v_lshl_add_u32 v20, v{vI}, 1, s{T0}
    v_cmp_eq_u32 vcc, 0, v20
    v_sub_u32 v21, 0x800, v20
    v_mov_b32 v22, 0x400
    s_cmp_ge_u32 s{sW}, 2
    s_cselect_b64 s[{sM}:{sM+1}], -1, 0
    v_cndmask_b32 v21, v21, v22, vcc
    v_cndmask_b32 v20, v20, v21, s[{sM}:{sM+1}]
    s_lshl_b32 s{T0}, s{sE}, 7
    v_lshl_add_u32 v21, v{vG}, 5, s{T0}
    v_lshl_add_u32 v20, v20, 10, v21
    """)
    a.vwait("RES")
    RU = 192
    a(f"""
    s_cmp_ge_u32 s{sE}, 4
    s_cbranch_scc1 L_unp_mirror
    """)
    for u in range(4):
        s = RES + 2 * u
        a(f"""
        v_lshlrev_b32 v{RU+4*u}, 16, v{s}
        v_and_b32 v{RU+4*u+1}, s{sHI}, v{s}
        v_lshlrev_b32 v{RU+4*u+2}, 16, v{s+1}
        v_and_b32 v{RU+4*u+3}, s{sHI}, v{s+1}
        """)
    a("s_branch L_unp_done")
    a.label("L_unp_mirror")
    for u in range(4):
        s = RES + 2 * (3 - u)
        a(f"""
        v_lshlrev_b32 v{RU+4*u}, 16, v{RE1+3-u}
        v_and_b32 v{RU+4*u+1}, s{sHI}, v{s+1}
        v_lshlrev_b32 v{RU+4*u+2}, 16, v{s+1}
        v_and_b32 v{RU+4*u+3}, s{sHI}, v{s}
        """)
    a.label("L_unp_done")
    a.stamp()
    poll(a, "L_p3", vC2, 4, "1", 16)
    a.stamp()
    DACC = 40
    DWF = 104
    dacc = lambda u, lm: DACC + (u * 4 + lm) * 4
    dwf = lambda b, u: DWF + (b * 4 + u) * 4
    h1f = lambda lm, ks: ((ks % 8) * 4 + lm) * 4

    def h1load(ks):
        so = "0" if ks < 4 else f"s{sK4 - 1 + ks//4}"
        for lm in range(4):
            a.vmem(f"G{ks}", f"buffer_load_dwordx4 {ar(h1f(lm,ks),4)}, v{8+lm}, {R(R_H1)}, {so} offen offset:{(ks%4)*1024} sc1")

    def dtr(ks, u):
        off = (ks - NPRE) * 4096
        a(f"ds_read_b64_tr_b16 {vr(dwf(ks&1,u),2)}, v{248+u} offset:{off}")
        a(f"ds_read_b64_tr_b16 {vr(dwf(ks&1,u)+2,2)}, v{248+u} offset:{off+2048}")

    DD = cfg["ddepth"]
    for ks in range(DD):
        h1load(ks)
    for ks in range(14):
        nxt = ks + 1
        a.vwait(f"G{ks}")
        for u in range(4):
            if NPRE <= nxt < 14:
                dtr(nxt, u)
                if ks >= NPRE:
                    a("s_waitcnt lgkmcnt(8)")
            elif nxt == 14:
                a(f"s_waitcnt lgkmcnt({6-2*u})")
            w = ar(w2r(ks, u), 4) if ks < NPRE else vr(dwf(ks & 1, u), 4)
            for lm in (1, 2, 3, 0):
                mfma(a, vr(dacc(u, lm), 4), w, ar(h1f(lm, ks), 4), "0" if ks == 0 else None)
            if u == 0 and ks + DD < 14:
                h1load(ks + DD)
    a.stamp()
    a(f"v_add_u32 v16, s{sF}, v{vL16}")
    for lm in range(1, 4):
        a(f"""
        s_xor_b32 s{T0}, s{sW}, {lm}
        s_mul_i32 s{T0}, s{T0}, 40960
        s_add_u32 s{T0}, s{T0}, {(lm-1)*4096}
        v_add_u32 v{16+lm}, s{T0}, v{vL16}
        """)
    for lm in range(1, 4):
        for u in range(4):
            a(f"ds_write_b128 v16, {vr(dacc(u,lm),4)} offset:{(lm-1)*4096+u*1024}")
    for u in range(4):
        for r in (0, 2):
            a(f"v_pk_add_f32 {vr(dacc(u,0)+r,2)}, {vr(dacc(u,0)+r,2)}, {vr(RU+4*u+r,2)}")
    a("""
    s_waitcnt lgkmcnt(0)
    s_barrier
    """)
    RD = 120
    for lm in range(1, 4):
        for u in range(4):
            a(f"ds_read_b128 {vr(RD+((lm-1)*4+u)*4,4)}, v{16+lm} offset:{u*1024}")
    for lm in range(1, 4):
        a(f"s_waitcnt lgkmcnt({8-4*(lm-1)})")
        for u in range(4):
            for r in (0, 2):
                a(f"v_pk_add_f32 {vr(dacc(u,0)+r,2)}, {vr(dacc(u,0)+r,2)}, {vr(RD+((lm-1)*4+u)*4+r,2)}")
    O = 104
    for u in range(4):
        a(f"v_cvt_pk_bf16_f32 v{O+2*u}, v{dacc(u,0)}, v{dacc(u,0)+1}")
        a(f"v_cvt_pk_bf16_f32 v{O+2*u+1}, v{dacc(u,0)+2}, v{dacc(u,0)+3}")
    a.nop(2)
    for d in range(2):
        a(f"v_permlane32_swap_b32 v{O+d}, v{O+4+d}")
        a(f"v_permlane32_swap_b32 v{O+2+d}, v{O+6+d}")
    a.nop(2)
    for d in range(2):
        a(f"v_permlane16_swap_b32 v{O+d}, v{O+2+d}")
        a(f"v_permlane16_swap_b32 v{O+4+d}, v{O+6+d}")
    a.nop(2)
    a(f"buffer_store_dwordx4 {vr(O,4)}, v20, {R(R_OUT)}, 0 offen")
    a(f"buffer_store_dwordx4 {vr(O+4,4)}, v20, {R(R_OUT)}, 0 offen offset:16")
    if a.diag:
        a("s_waitcnt vmcnt(0)")
        a.stamp()
        srd(a, R_ZA, sWS, sWS + 1, 1 << 20, STAMP_OFF)
        a(f"""
        s_lshl_b32 s{T0}, s2, 2
        s_add_u32 s{T0}, s{T0}, s{sW}
        s_lshl_b32 s{T0}, s{T0}, 8
        v_lshl_add_u32 v4, v{vL}, 2, s{T0}
        buffer_store_dword v255, v4, {R(R_ZA)}, 0 offen
        """)
    a.label("L_end")
    a("s_endpgm")
    return f""".amdhsa_kernel {kname}
  .amdhsa_next_free_vgpr 448
  .amdhsa_next_free_sgpr 100
  .amdhsa_accum_offset 256
  .amdhsa_group_segment_fixed_size 0
  .amdhsa_kernarg_size 88
  .amdhsa_user_sgpr_count 2
  .amdhsa_user_sgpr_kernarg_segment_ptr 1
  .amdhsa_system_sgpr_workgroup_id_x 1
.end_amdhsa_kernel
"""


HEADER = """; FNet (2-D real DFT mixing) + ReLU FFN block, pre-LN, for gfx950.  Emitted by a hand-written generator script.
"""


def main():
    cfg = {"bg0": 4, "bgA": 1, "bgA2": 3, "bgA3": 0, "hdepth": 5, "ddepth": 4, "d0": 2, "diag": 0}
    out = f"cdna_kernels/{NAME}.s"
    for arg in sys.argv[1:]:
        if "=" in arg:
            k, v = arg.split("=")
            cfg[k] = int(v)
        else:
            out = arg
    assert cfg["bg0"] + 12 * cfg["bgA"] + cfg["bgA2"] + cfg["bgA3"] >= 16, "trig DMAs must be issued before the first publish"
    a = Asm()
    a.diag = cfg["diag"]
    a.raw(HEADER.rstrip("\n"))
    a.raw(f"; @launch grid=(256,1,1) block=(256,1,1) lds={LDS_TOTAL}")
    a.raw('.amdgcn_target "amdgcn-amd-amdhsa--gfx950"')
    a.raw(".text")
    d = gen(a, cfg)
    a.raw('.section .rodata,"a"')
    a.raw(".p2align 6")
    a.raw(d.rstrip("\n"))
    open(out, "w").write(a.text())


if __name__ == "__main__":
    main()
```

```python
import sys
from gen2 import (Asm, vr, srd, mfma, treduce4, allreduce_g, transpose4, NAME, ZA_OFF, ZA_SZ, Z512_OFF, Z512_SZ,
                  CNT_OFF, CNT_SZ, STAT_OFF, STAT_SZ, H_OFF, H_SZ, H1_OFF, H1_SZ, STAMP_OFF, OOB, HEADER)

LDS_TOTAL = 163840
L_XA, L_GA, L_SA, L_XT, L_TR = 0, 32768, 65536, 81920, 98304
L_BX, L_CS = 147456, 151552

sW = 3
sRB, sC16, sSB, sE4, sPT, sE, sP, sT = 4, 5, 6, 7, 8, 9, 10, 11
R_X, R_CR, R_CI, R_DR, R_DI, R_W1, R_W2, R_OUT = 12, 16, 20, 24, 28, 32, 36, 40
R_ZA, R_Z5, R_CNT, R_ST, R_H, R_H1, R_DBG, R_CF = 44, 48, 52, 56, 60, 64, 68, 72
T0, T1, T2, T3 = 76, 77, 78, 79
sK4, sK8, sK12 = 80, 81, 82
sONES, sHI = 83, 84
sA, sB, sC, sD, sF, sG, sH = 85, 86, 87, 88, 89, 90, 91
sEX = 92
sRC, sRD, sCUR = 98, 99, 100
sM = 94
sWS = 96
vL, vG, vI, vL16 = 0, 1, 2, 3


def R(b):
    return f"s[{b}:{b+3}]"


def poll(a, name, vaddr, vtmp, lanes_mask, target):
    a(f"""
    s_cmp_lg_u32 s{sW}, 0
    s_cbranch_scc1 {name}_done
    s_mov_b64 exec, {lanes_mask}
    s_mov_b32 s{T0}, 0
    """)
    a.label(f"{name}_loop")
    a(f"""
    buffer_load_dword v{vtmp}, v{vaddr}, {R(R_CNT)}, 0 offen sc1
    s_add_u32 s{T0}, s{T0}, 1
    s_cmp_ge_u32 s{T0}, 0x40000
    s_cbranch_scc1 {name}_exit
    s_waitcnt vmcnt(0)
    v_cmp_gt_u32 vcc, {target}, v{vtmp}
    s_cbranch_vccnz {name}_loop
    """)
    a.label(f"{name}_exit")
    a("s_mov_b64 exec, -1")
    a.label(f"{name}_done")
    a("s_barrier")


def arrive(a, name, vaddr, vtmp, lanes_mask):
    a(f"""
    s_cmp_lg_u32 s{sW}, 0
    s_cbranch_scc1 {name}_skip
    v_mov_b32 v{vtmp}, 1
    s_mov_b64 exec, {lanes_mask}
    buffer_atomic_add v{vtmp}, v{vaddr}, {R(R_CNT)}, 0 offen sc1
    s_mov_b64 exec, -1
    """)
    a.label(f"{name}_skip")


def stamp_out(a, wave_add):
    if not a.diag:
        return
    a("s_waitcnt vmcnt(0)")
    a.stamp()
    srd(a, R_ZA, sWS, sWS + 1, 1 << 20, STAMP_OFF)
    a(f"""
    s_lshl_b32 s{T0}, s2, 3
    s_add_u32 s{T0}, s{T0}, s{sW}
    s_add_u32 s{T0}, s{T0}, {wave_add}
    s_lshl_b32 s{T0}, s{T0}, 8
    v_lshl_add_u32 v4, v{vL}, 2, s{T0}
    buffer_store_dword v{a.vstamp}, v4, {R(R_ZA)}, 0 offen
    """)


def prologue(a, ROT):
    a("""
    s_cmp_ge_u32 s2, 256
    s_cbranch_scc1 L_end
    s_load_dwordx16 s[12:27], s[0:1], 0
    s_load_dwordx4 s[28:31], s[0:1], 64
    s_load_dwordx2 s[96:97], s[0:1], 80
    v_lshrrev_b32 v4, 6, v0
    v_and_b32 v0, 63, v0
    v_lshrrev_b32 v1, 4, v0
    v_readfirstlane_b32 s79, v4
    v_and_b32 v2, 15, v0
    v_lshlrev_b32 v3, 4, v0
    """)
    if a.diag:
        a(f"v_mov_b32 v{a.vstamp}, 0")
    a.stamp()
    a(f"""
    s_and_b32 s{sW}, s{T3}, 3
    s_and_b32 s{T0}, s2, 7
    s_lshr_b32 s{T1}, s2, 3
    s_and_b32 s{T2}, s{T1}, 1
    s_lshl_b32 s{sRB}, s{T0}, 1
    s_add_u32 s{sRB}, s{sRB}, s{T2}
    s_lshr_b32 s{sC16}, s{T1}, 1
    s_lshl_b32 s{sSB}, s{T0}, 3
    s_and_b32 s{T2}, s{T1}, 7
    s_add_u32 s{sSB}, s{sSB}, s{T2}
    s_lshr_b32 s{sE4}, s{T1}, 3
    s_and_b32 s{T2}, s{sC16}, 1
    s_lshl_b32 s{sPT}, s{sRB}, 1
    s_add_u32 s{sPT}, s{sPT}, s{T2}
    s_lshr_b32 s{sE}, s{sC16}, 1
    s_lshr_b32 s{sP}, s{sPT}, 4
    s_and_b32 s{sT}, s{sPT}, 15
    s_mov_b32 s{sK4}, 4096
    s_mov_b32 s{sK8}, 8192
    s_mov_b32 s{sK12}, 12288
    s_mov_b32 s{sONES}, 0x3f803f80
    s_mov_b32 s{sHI}, 0xffff0000
    s_mov_b32 s{sEX}, -1
    s_mov_b32 s{sEX+1}, 0x00ffffff
    s_lshl_b32 s{sC}, s{sW}, 13
    s_and_b32 s{T0}, s{sRB}, 1
    s_lshl_b32 s{T0}, s{T0}, 3
    s_add_u32 s{sRC}, s{sC16}, s{T0}
    s_and_b32 s{T0}, s{sRB}, 14
    s_add_u32 s{sRC}, s{sRC}, s{T0}
    s_mul_i32 s{sRC}, s{sRC}, {ROT}
    s_mul_i32 s{T0}, s{sE}, 7
    s_lshr_b32 s{T0}, s{T0}, 2
    s_and_b32 s{T1}, s{sPT}, 3
    s_mul_i32 s{T1}, s{T1}, 3
    s_add_u32 s{sRD}, s{T0}, s{T1}
    s_sub_u32 s{T0}, s{sRD}, 14
    s_cmp_ge_u32 s{sRD}, 14
    s_cselect_b32 s{sRD}, s{T0}, s{sRD}
    s_mul_i32 s{sRD}, s{sRD}, {ROT}
    s_waitcnt lgkmcnt(0)
    """)
    a.stamp()
    srd(a, R_DBG, 30, 31, 256)
    a(f"""
    s_cmp_eq_u32 s{sP}, 0
    s_cselect_b32 s{R_CF}, s14, s16
    s_cselect_b32 s{R_CF+1}, s15, s17
    s_mov_b32 s{R_CF+2}, {2048*4096}
    s_mov_b32 s{R_CF+3}, 0x20000
    """)
    srd(a, R_OUT, 28, 29, 2048 * 1024)
    srd(a, R_W2, 26, 27, 1792 * 1024)
    srd(a, R_W1, 24, 25, 512 * 3584)
    srd(a, R_DI, 20, 21, 512 * 1024)
    srd(a, R_DR, 18, 19, 512 * 1024)
    srd(a, R_CI, 16, 17, 2048 * 4096)
    srd(a, R_CR, 14, 15, 2048 * 4096)
    a(f"s_mov_b32 s{R_X+2}, {2048*1024}")
    a(f"s_mov_b32 s{R_X+3}, 0x20000")
    srd(a, R_CNT, sWS, sWS + 1, CNT_SZ, CNT_OFF)
    a(f"""
    s_cmp_ge_u32 s{T3}, 4
    s_cbranch_scc1 L_helper
    """)


def compute(a, cfg):
    a.sstamp = R_W1
    a(f"""
    s_and_b32 s{T0}, s{sW}, 1
    s_lshl_b32 s{T1}, s{T0}, 2
    s_lshr_b32 s{T2}, s{sW}, 1
    s_add_u32 s{T1}, s{T1}, s{T2}
    s_lshl_b32 s{T2}, s{sSB}, 3
    s_add_u32 s{sA}, s{T1}, s{T2}
    s_lshl_b32 s{sB}, s{T0}, 7
    v_xor_b32 v13, s{sB}, v{vL16}
    """)
    for q in range(8):
        r = q & 3
        add = 2 * (q >> 2)
        if r == 0:
            a(f"s_add_u32 s{T0}, s{sA}, {add}")
        elif r == 1:
            a(f"s_sub_u32 s{T0}, {2048-add}, s{sA}")
            if add == 0:
                a(f"s_cmp_eq_u32 s{sA}, 0\ns_cselect_b32 s{T0}, 512, s{T0}")
        elif r == 2:
            a(f"s_add_u32 s{T0}, s{sA}, {1024+add}")
        else:
            a(f"s_sub_u32 s{T0}, {1024-add}, s{sA}")
            if add == 0:
                a(f"s_cmp_eq_u32 s{sA}, 0\ns_cselect_b32 s{T0}, 1536, s{T0}")
        a(f"""
        s_lshl_b32 s{T0}, s{T0}, 10
        s_add_u32 m0, s{sC}, {L_XA + q*1024}
        v_xor_b32 v4, {q*16}, v13
        """)
        a.vmem("A", f"buffer_load_dwordx4 v4, {R(R_X)}, s{T0} offen lds")
    srd(a, R_ZA, sWS, sWS + 1, ZA_SZ, ZA_OFF)
    srd(a, R_Z5, sWS, sWS + 1, Z512_SZ, Z512_OFF)
    srd(a, R_ST, sWS, sWS + 1, STAT_SZ, STAT_OFF)
    srd(a, R_H, sWS, sWS + 1, H_SZ, H_OFF)
    srd(a, R_H1, sWS, sWS + 1, H1_SZ, H1_OFF)
    a.stamp()
    vT, vJ2 = 26, 28
    vC1a, vC1p, vC2 = 29, 30, 31
    CF0, CF1 = 24, 25
    a(f"""
    s_lshr_b32 s{sA}, s{sW}, 1
    s_and_b32 s{sB}, s{sW}, 1
    s_lshl_b32 s{T0}, s{sT}, 6
    s_add_u32 s{T0}, s{T0}, s{sP}
    s_lshl_b32 s{T1}, s{sA}, 5
    s_add_u32 s{T0}, s{T0}, s{T1}
    v_lshl_add_u32 v{vT}, v{vI}, 1, s{T0}
    v_cmp_eq_u32 vcc, 0, v{vT}
    s_lshl_b32 s{T0}, s{sE}, 6
    s_lshl_b32 s{T1}, s{sB}, 5
    s_add_u32 s{T0}, s{T0}, s{T1}
    v_lshl_add_u32 v{vJ2}, v{vG}, 3, s{T0}
    v_lshlrev_b32 v6, 12, v{vT}
    v_mov_b32 v7, {1024*4096}
    v_cndmask_b32 v7, v6, v7, vcc
    """)
    a.vmem("CF", f"buffer_load_ushort v{CF0}, v6, {R(R_CF)}, 0 offen offset:1024")
    a.vmem("CF", f"buffer_load_ushort v{CF1}, v7, {R(R_CF)}, 0 offen offset:1024")
    a(f"""
    s_lshl_b32 s{T0}, s{sE4}, 2
    s_and_b32 s{T1}, s{sSB}, 3
    s_add_u32 s{T0}, s{T0}, s{T1}
    s_lshl_b32 s{T0}, s{T0}, 10
    v_lshl_add_u32 v{vC1a}, v{vL}, 8, s{T0}
    s_lshr_b32 s{T0}, s{sE}, 1
    s_lshl_b32 s{T0}, s{T0}, 12
    s_and_b32 s{T1}, s{sPT}, 3
    s_lshl_b32 s{T1}, s{T1}, 8
    s_add_u32 s{T0}, s{T0}, s{T1}
    v_lshl_add_u32 v{vC1p}, v{vL}, 10, s{T0}
    s_lshl_b32 s{T0}, s{sRB}, 8
    s_add_u32 s{T0}, s{T0}, {64*256}
    v_mov_b32 v{vC2}, s{T0}
    """)
    a(f"""
    v_lshrrev_b32 v4, 2, v{vI}
    v_xor_b32 v4, s{sW}, v4
    v_and_b32 v5, 3, v{vI}
    v_xor_b32 v5, v5, v{vG}
    v_lshlrev_b32 v5, 4, v5
    s_add_u32 s{T0}, s{sC}, {L_GA}
    """)
    for kp in range(4):
        a(f"""
        v_xor_b32 v6, {kp}, v4
        v_lshl_add_u32 v6, v6, 6, v5
        v_lshl_add_u32 v{16+kp}, v{vI}, 10, v6
        v_lshl_add_u32 v6, v{vI}, 8, v6
        v_add_u32 v{20+kp}, s{T0}, v6
        """)
    GF, XFB, ACC = 32, 64, 128
    gf = lambda typ, kp: GF + (typ * 4 + kp) * 4
    xf = lambda b, Q, tau: XFB + b * 32 + (Q * 2 + tau) * 4
    acc = lambda Q, tau, typ: ACC + ((Q * 2 + tau) * 2 + typ) * 4
    CSA = 192
    for r in range(4):
        a(f"v_mov_b32 v{216+r}, s{sONES}")
    SIG, C1, S1, CSM = 200, 202, 204, 206
    a(f"""
    v_and_b32 v4, 1, v{vI}
    v_lshlrev_b32 v5, 31, v4
    v_or_b32 v{SIG}, 1.0, v5
    v_and_b32 v5, 2, v{vI}
    v_lshlrev_b32 v5, 30, v5
    v_or_b32 v5, 1.0, v5
    v_cmp_eq_u32 vcc, 0, v4
    v_mov_b32 v{SIG+1}, v{SIG}
    v_and_b32 v6, 3, v{vI}
    v_cndmask_b32 v{C1}, 0, v5, vcc
    v_cndmask_b32 v{S1}, v5, 0, vcc
    v_cmp_eq_u32 vcc, 0, v6
    v_mov_b32 v{C1+1}, v{C1}
    v_mov_b32 v{S1+1}, v{S1}
    v_cndmask_b32 v{CSM}, 0, 4.0, vcc
    """)
    a(f"""
    v_lshlrev_b32 v9, 4, v{vG}
    v_add_u32 v9, {L_SA}, v9
    s_lshl_b32 s{T0}, s{sE4}, 2
    s_add_u32 s{T0}, s{T0}, s{sW}
    s_lshl_b32 s{T0}, s{T0}, 14
    s_lshl_b32 s{T1}, s{sSB}, 8
    s_add_u32 s{T0}, s{T0}, s{T1}
    v_lshl_add_u32 v12, v{vI}, 4, s{T0}
    v_lshl_add_u32 v12, v{vG}, 18, v12
    v_or_b32 v13, s{sSB}, v{vG}
    v_cmp_eq_u32 s[{sM}:{sM+1}], 0, v13
    v_mov_b32 v220, 0x3b000000
    v_mov_b32 v221, 0x3b000000
    v_mov_b32 v222, 0x3727c5ac
    v_mov_b32 v223, 0x3727c5ac
    """)
    a.vwait("A")
    a("s_barrier")
    a.stamp()
    for typ in range(2):
        for kp in range(4):
            a(f"ds_read_b128 {vr(gf(typ,kp),4)}, v{20+kp} offset:{typ*4096}")

    def xreads(kp):
        for Q in range(4):
            for tau in range(2):
                a(f"ds_read_b128 {vr(xf(kp&1,Q,tau),4)}, v{16+kp} offset:{L_XA + Q*256 + tau*16384}")

    xreads(0)
    for kp in range(4):
        a("s_waitcnt lgkmcnt(0)")
        if kp < 3:
            xreads(kp + 1)
        if kp == 3:
            a.stamp()
            a("s_barrier")
            a("ds_read_b128 v[88:91], v9")
            a("ds_read_b128 v[92:95], v9 offset:64")
            a("ds_read_b128 v[80:83], v9 offset:128")
            a("ds_read_b128 v[84:87], v9 offset:192")
        fill = []
        if kp == 3:
            fill = ["s_nop 0"] * 9 + ["s_waitcnt lgkmcnt(0)"]
            for r in range(0, 8, 2):
                fill.append(f"v_pk_mul_f32 {vr(88+r,2)}, {vr(88+r,2)}, v[220:221]")
            for r in range(0, 8, 2):
                fill.append(f"v_pk_fma_f32 {vr(80+r,2)}, {vr(80+r,2)}, v[220:221], v[222:223]")
            for r in range(0, 8, 2):
                fill.append(f"v_pk_fma_f32 {vr(80+r,2)}, {vr(88+r,2)}, {vr(88+r,2)}, {vr(80+r,2)} neg_lo:[1,0,0] neg_hi:[1,0,0]")
            for r in range(8):
                fill.append(f"v_max_f32 v{80+r}, v222, v{80+r}")
            for r in range(8):
                fill.append(f"v_rsq_f32 v{80+r}, v{80+r}")
            fill += ["v_mov_b32 v73, v81", "v_mov_b32 v75, v83",
                     f"v_cndmask_b32 v81, v81, 0, s[{sM}:{sM+1}]", f"v_cndmask_b32 v83, v83, 0, s[{sM}:{sM+1}]"]
        per = (len(fill) + 15) // 16
        for typ in range(2):
            mfma(a, vr(CSA + 4 * typ, 4), "v[216:219]", vr(gf(typ, kp), 4), "0" if kp == 0 else None)
        for Q in range(4):
            for tau in range(2):
                for typ in range(2):
                    mfma(a, vr(acc(Q, tau, typ), 4), vr(xf(kp & 1, Q, tau), 4), vr(gf(typ, kp), 4), "0" if kp == 0 else None)
                    for _ in range(per):
                        if fill:
                            f = fill.pop(0)
                            if f != "s_nop 0":
                                a(f)
    a(f"v_mul_f32 v{CSA}, v{CSM}, v{CSA}")
    a(f"v_mul_f32 v{CSA+4}, v{CSM}, v{CSA+4}")
    a.stamp()
    KK, MM, KT = 80, 88, 72
    a.nop(4)
    for tau in range(2):
        for r in (0, 2):
            C = [acc(Q, tau, 0) + r for Q in range(4)]
            I = [acc(Q, tau, 1) + r for Q in range(4)]
            t0, t1, t2, t3 = 208, 210, 212, 214
            a(f"""
            v_pk_fma_f32 {vr(C[0],2)}, {vr(SIG,2)}, {vr(C[2],2)}, {vr(C[0],2)}
            v_pk_fma_f32 {vr(I[0],2)}, {vr(SIG,2)}, {vr(I[2],2)}, {vr(I[0],2)}
            v_pk_add_f32 {vr(t0,2)}, {vr(C[1],2)}, {vr(C[3],2)}
            v_pk_add_f32 {vr(t1,2)}, {vr(I[1],2)}, {vr(I[3],2)} neg_lo:[0,1] neg_hi:[0,1]
            v_pk_add_f32 {vr(t2,2)}, {vr(I[1],2)}, {vr(I[3],2)}
            v_pk_add_f32 {vr(t3,2)}, {vr(C[3],2)}, {vr(C[1],2)} neg_lo:[0,1] neg_hi:[0,1]
            v_pk_fma_f32 {vr(C[0],2)}, {vr(C1,2)}, {vr(t0,2)}, {vr(C[0],2)}
            v_pk_fma_f32 {vr(I[0],2)}, {vr(C1,2)}, {vr(t2,2)}, {vr(I[0],2)}
            v_pk_fma_f32 {vr(C[0],2)}, {vr(S1,2)}, {vr(t1,2)}, {vr(C[0],2)}
            v_pk_fma_f32 {vr(I[0],2)}, {vr(S1,2)}, {vr(t3,2)}, {vr(I[0],2)}
            """)
    OZ = 100
    for tau in range(2):
        for typ in range(2):
            d = acc(0, tau, typ)
            for r in range(4):
                a(f"v_fma_f32 v{d+r}, -v{MM+4*tau+r}, v{CSA+4*typ}, v{d+r}")
            sg = "-" if typ else ""
            e, f = 108, 109
            a(f"""
            v_mul_f32 v{e}, v{KK+4*tau}, v{d}
            v_mul_f32 v{f}, v{KK+4*tau+2}, v{d+2}
            v_fma_f32 v{e}, {sg}v{KK+4*tau+1}, v{d+1}, v{e}
            v_fma_f32 v{f}, {sg}v{KK+4*tau+3}, v{d+3}, v{f}
            v_add_f32 v{OZ+(typ*2+0)*2+tau}, v{e}, v{f}
            v_sub_f32 v{OZ+(typ*2+1)*2+tau}, v{e}, v{f}
            """)
    for arr in range(4):
        a(f"v_cvt_pk_bf16_f32 v{112+arr}, v{OZ+2*arr}, v{OZ+2*arr+1}")
    a.nop(2)
    transpose4(a, 112, 113, 114, 115)
    a.nop(1)
    a.vmem("SZ", f"buffer_store_dwordx4 v[112:115], v12, {R(R_ZA)}, 0 offen sc1")
    a(f"""
    s_cmp_lg_u32 s{sSB}, 0
    s_cbranch_scc1 L_noex
    v_mul_f32 v108, v{KT+1}, v{acc(0,0,0)+1}
    v_mul_f32 v109, v{KT+1}, v{acc(0,0,1)+1}
    v_fma_f32 v108, v{KT+3}, v{acc(0,0,0)+3}, v108
    v_fma_f32 v109, -v{KT+3}, v{acc(0,0,1)+3}, v109
    s_lshl_b32 s{T0}, s{sE4}, 8
    s_lshl_b32 s{T1}, s{sW}, 6
    s_add_u32 s{T0}, s{T0}, s{T1}
    v_lshl_add_u32 v110, v{vI}, 2, s{T0}
    s_mov_b64 exec, 0xffff
    buffer_store_dword v108, v110, {R(R_Z5)}, 0 offen sc1
    buffer_store_dword v109, v110, {R(R_Z5)}, 0 offen offset:1024 sc1
    s_mov_b64 exec, -1
    """)
    a.label("L_noex")
    a.stamp()
    a(f"""
    s_cmp_lg_u32 s{sW}, 0
    s_cbranch_scc1 L_rdy_done
    v_mov_b32 v4, 0
    s_mov_b64 exec, 1
    s_mov_b32 s{T0}, 0
    """)
    a.label("L_rdy_loop")
    a(f"""
    buffer_load_dword v5, v4, {R(R_DBG)}, 0 offen sc1
    s_add_u32 s{T0}, s{T0}, 1
    s_cmp_ge_u32 s{T0}, 0x40000
    s_cbranch_scc1 L_rdy_exit
    s_waitcnt vmcnt(0)
    v_cmp_eq_u32 vcc, 0, v5
    s_cbranch_vccnz L_rdy_loop
    """)
    a.label("L_rdy_exit")
    a("s_mov_b64 exec, -1")
    a.label("L_rdy_done")
    a(f"""
    v_lshrrev_b32 v4, 2, v{vI}
    v_and_b32 v5, 3, v{vI}
    v_xor_b32 v5, v5, v{vG}
    v_lshlrev_b32 v5, 4, v5
    v_lshl_add_u32 v5, v{vI}, 10, v5
    s_mul_i32 s{T0}, s{sA}, {32768+16384}
    s_add_u32 s{T0}, s{T0}, {L_TR}
    s_lshl_b32 s{T1}, s{sA}, 15
    s_sub_u32 s{T1}, 16384, s{T1}
    v_add_u32 v5, s{T0}, v5
    """)
    for k3 in range(4):
        a(f"""
        v_xor_b32 v6, {k3}, v4
        v_lshl_add_u32 v{8+k3}, v6, 6, v5
        v_add_u32 v{16+k3}, s{T1}, v{8+k3}
        """)
    a(f"""
    s_lshl_b32 s{T0}, s{sA}, 12
    s_add_u32 s{T0}, s{T0}, {L_XT}
    v_lshl_add_u32 v4, v{vI}, 8, s{T0}
    s_lshl_b32 s{T1}, s{sB}, 5
    v_lshl_add_u32 v5, v{vG}, 3, s{T1}
    v_lshlrev_b32 v7, 4, v{vI}
    v_xor_b32 v6, v5, v7
    v_add_u32 v12, v4, v6
    v_sub_u32 v6, {64+56}, v5
    v_xor_b32 v6, v6, v7
    v_add_u32 v13, v4, v6
    v_sub_u32 v6, {64+64}, v5
    v_cmp_eq_u32 s[{sM}:{sM+1}], 0, v{vJ2}
    v_mov_b32 v15, {9*16}
    s_nop 0
    v_cndmask_b32 v6, v6, v15, s[{sM}:{sM+1}]
    v_xor_b32 v6, v6, v7
    v_add_u32 v14, v4, v6
    """)
    a.vwait_all()
    a.stamp()
    a("s_barrier")
    arrive(a, "L_ar1", vC1a, 4, "0xf")
    a.stamp()
    XR = 36
    for mir in range(2):
        a(f"ds_read_b64 {vr(XR+6*mir,2)}, v12 offset:{mir*8192}")
        a(f"ds_read_b64 {vr(XR+6*mir+2,2)}, v13 offset:{mir*8192}")
        a(f"ds_read_u16 v{XR+6*mir+4}, v14 offset:{mir*8192}")
    TF = 128
    tf = lambda tl, ks: TF + (tl * 16 + ks) * 4
    for ks in range(16):
        for tl in range(2):
            base = (8 if tl == 0 else 16) + (ks & 3)
            a(f"ds_read_b128 {vr(tf(tl,ks),4)}, v{base} offset:{(ks>>2)*256}")
    XU = 48
    a("s_waitcnt lgkmcnt(15)")
    for mir in range(2):
        b, x = XU + mir * 8, XR + 6 * mir
        a(f"""
        v_lshlrev_b32 v{b}, 16, v{x}
        v_and_b32 v{b+1}, s{sHI}, v{x}
        v_lshlrev_b32 v{b+2}, 16, v{x+1}
        v_and_b32 v{b+3}, s{sHI}, v{x+1}
        v_lshlrev_b32 v{b+4}, 16, v{x+4}
        v_and_b32 v{b+5}, s{sHI}, v{x+3}
        v_lshlrev_b32 v{b+6}, 16, v{x+3}
        v_and_b32 v{b+7}, s{sHI}, v{x+2}
        """)
    a(f"""
    v_lshlrev_b32 v{CF0}, 16, v{CF0}
    v_lshlrev_b32 v{CF1}, 16, v{CF1}
    s_lshl_b32 s{T0}, s{sA}, 1
    s_add_u32 s{T0}, s{T0}, s{sP}
    s_lshl_b32 s{T0}, s{T0}, 18
    s_lshl_b32 s{T1}, s{sE}, 1
    s_add_u32 s{T1}, s{T1}, s{sB}
    s_lshl_b32 s{T2}, s{T1}, 14
    s_add_u32 s{T0}, s{T0}, s{T2}
    v_add_u32 v8, s{T0}, v{vL16}
    v_lshlrev_b32 v9, 1, v{vJ2}
    s_lshl_b32 s{T0}, s{sP}, 10
    v_add_u32 v9, s{T0}, v9
    v_mov_b32 v32, 0xbf803f80
    v_mov_b32 v33, 0xbf803f80
    v_mov_b32 v34, 0xbf803f80
    v_mov_b32 v35, 0xbf803f80
    s_lshl_b32 s{T0}, s{sPT}, 16
    s_lshl_b32 s{T2}, s{sA}, 14
    s_add_u32 s{T0}, s{T0}, s{T2}
    s_lshl_b32 s{T2}, s{T1}, 10
    s_add_u32 s{T0}, s{T0}, s{T2}
    v_add_u32 v10, s{T0}, v{vL16}
    s_lshl_b32 s{T0}, s{sPT}, 13
    s_lshl_b32 s{T2}, s{sA}, 11
    s_add_u32 s{T0}, s{T0}, s{T2}
    s_lshl_b32 s{T1}, s{T1}, 7
    s_add_u32 s{T0}, s{T0}, s{T1}
    v_lshrrev_b32 v11, 1, v{vG}
    v_and_b32 v12, 1, v{vG}
    v_lshlrev_b32 v11, 12, v11
    v_lshl_add_u32 v11, v12, 2, v11
    v_lshl_add_u32 v11, v{vI}, 3, v11
    v_add_u32 v11, s{T0}, v11
    s_lshl_b32 s{T0}, s{sW}, 10
    s_add_u32 s{T0}, s{T0}, {L_BX}
    v_add_u32 v12, s{T0}, v{vL16}
    s_xor_b32 s{T0}, s{T0}, 0x800
    v_add_u32 v13, s{T0}, v{vL16}
    s_cmp_eq_u32 s{sP}, 0
    s_cselect_b32 s{sC}, 1.0, -1.0
    s_cmp_eq_u32 s{sA}, 0
    s_cselect_b32 s{sD}, 1.0, -1.0
    s_mov_b32 s{sG}, 0x8000
    s_waitcnt lgkmcnt(0)
    """)
    a("s_barrier")
    a.stamp()
    poll(a, "L_p1", vC1p, 4, "0xf", 16)
    a.stamp()
    ZF, Z5 = 64, 20
    for ks in range(16):
        so = "0" if ks < 4 else f"s{sK4 - 1 + ks//4}"
        a.vmem(f"Z{ks}", f"buffer_load_dwordx4 {vr(ZF+4*ks,4)}, v8, {R(R_ZA)}, {so} offen offset:{(ks%4)*1024} sc1")
    a.vmem("Z5", f"buffer_load_dwordx4 {vr(Z5,4)}, v9, {R(R_Z5)}, 0 offen sc1")
    BA0, BA1, BAX = 36, 40, 44
    for ks in range(16):
        a.vwait(f"Z{ks}")
        c0 = "0" if ks == 0 else None
        mfma(a, vr(BA1, 4), vr(ZF + 4 * ks, 4), vr(tf(1, ks), 4), c0)
        mfma(a, vr(BA0, 4), vr(ZF + 4 * ks, 4), vr(tf(0, ks), 4), c0)
        mfma(a, vr(BAX, 4), vr(ZF + 4 * ks, 4), "v[32:35]", c0)
    a.nop(6)
    a(f"ds_write_b128 v12, {vr(BA1,4)}")
    a.vwait("Z5")
    EX0, EX1, OT, Y = 64, 68, 72, 76
    for r in range(4):
        a(f"v_mul_f32 v{EX0+r}, v{CF0}, v{Z5+r}")
        a(f"v_mul_f32 v{EX1+r}, v{CF1}, v{Z5+r}")
    a(f"""
    v_cmp_eq_u32 vcc, 0, v{vT}
    s_waitcnt lgkmcnt(0)
    s_barrier
    ds_read_b128 {vr(OT,4)}, v13
    s_waitcnt lgkmcnt(0)
    """)
    a.stamp()
    for r in range(4):
        a(f"v_sub_f32 v{Y+r}, v{BA0+r}, v{OT+r}")
        a(f"v_add_f32 v{Y+4+r}, v{BA0+r}, v{OT+r}")
    for r in range(4):
        a(f"v_mul_f32 v{Y+r}, s{sD}, v{Y+r}")
        a(f"v_cndmask_b32 v{Y+8+r}, v{Y+4+r}, v{BAX+r}, vcc")
    for r in range(4):
        a(f"v_cndmask_b32 v{Y+12+r}, v{Y+r}, v{BAX+r}, vcc")
    for r in range(4):
        a(f"v_fmac_f32 v{Y+r}, s{sC}, v{EX0+r}")
        a(f"v_add_f32 v{Y+4+r}, v{Y+4+r}, v{EX0+r}")
        a(f"v_add_f32 v{Y+8+r}, v{Y+8+r}, v{EX1+r}")
        a(f"v_fmac_f32 v{Y+12+r}, s{sC}, v{EX1+r}")
    a(f"v_cndmask_b32 v{Y}, v{Y}, 0, s[{sM}:{sM+1}]")
    a(f"v_cndmask_b32 v{Y+8}, v{Y+8}, 0, s[{sM}:{sM+1}]")
    for r in range(0, 16, 2):
        a(f"v_pk_add_f32 {vr(Y+r,2)}, {vr(Y+r,2)}, {vr(XU+r,2)}")
    HP, S = 92, 100
    for r in range(8):
        a(f"v_cvt_pk_bf16_f32 v{HP+r}, v{Y+2*r}, v{Y+2*r+1}")
    for r in range(4):
        a(f"v_mov_b32 v{S+r}, 0")
    a.vmem("SH", f"buffer_store_dwordx4 {vr(HP,4)}, v10, {R(R_H)}, 0 offen sc1")
    a.vmem("SH", f"buffer_store_dwordx4 {vr(HP+4,4)}, v10, {R(R_H)}, s{sG} offen sc1")
    for mir in range(2):
        for d in range(4):
            a(f"v_dot2c_f32_bf16 v{S+2*mir}, s{sONES}, v{HP+4*mir+d}")
            a(f"v_dot2c_f32_bf16 v{S+2*mir+1}, v{HP+4*mir+d}, v{HP+4*mir+d}")
    a.nop(3)
    treduce4(a, S, S + 1, S + 2, S + 3)
    a.vmem("SH", f"buffer_store_dword v{S}, v11, {R(R_ST)}, 0 offen sc1")
    a.stamp()
    a(f"""
    s_and_b32 s{sA}, s{sC16}, 1
    v_add_u32 v19, {8*7168}, v{vL16}
    s_lshl_b32 s{T0}, s{sRB}, 17
    s_lshl_b32 s{T1}, s{sW}, 15
    s_add_u32 s{T0}, s{T0}, s{T1}
    v_add_u32 v10, s{T0}, v{vL16}
    v_add_u32 v11, 0x4000, v10
    s_lshl_b32 s{T0}, s{sRB}, 14
    s_lshl_b32 s{T1}, s{sW}, 12
    s_add_u32 s{T0}, s{T0}, s{T1}
    v_lshl_add_u32 v12, v{vI}, 3, s{T0}
    v_lshl_add_u32 v12, v{vG}, 9, v12
    v_lshlrev_b32 v14, 4, v{vG}
    v_add_u32 v14, {L_CS}, v14
    """)
    a.vwait_all()
    a.stamp()
    a("s_barrier")
    arrive(a, "L_ar2", vC2, 4, "1")
    a.stamp()
    a.stamp()
    poll(a, "L_p2", vC2, 4, "1", 16)
    a.stamp()
    CACC, WF, HF, STT = 36, 92, 148, 212
    cacc = lambda u, mt: CACC + (u * 2 + mt) * 4
    wf = lambda b, u: WF + (b * 7 + u) * 4
    hf = lambda mt, ks: HF + ((ks % 8) * 2 + mt) * 4

    def wread(ks, u):
        a(f"ds_read_b128 {vr(wf(ks&1,u),4)}, v{vL16 if ks < 8 else 19} offset:{(ks%8)*7168+u*1024}")

    def hload(ks, mts=(0, 1)):
        if mts[0] == 0:
            a(f"s_add_u32 s{sCUR}, s{sRC}, {ks}\ns_and_b32 s{sCUR}, s{sCUR}, 15\ns_lshl_b32 s{sCUR}, s{sCUR}, 10")
        for mt in mts:
            a.vmem(f"H{ks}", f"buffer_load_dwordx4 {vr(hf(mt,ks),4)}, v{10+mt}, {R(R_H)}, s{sCUR} offen sc1")

    HD = cfg["hdepth"]
    for ks in range(HD):
        hload(ks)
    for u in range(7):
        wread(0, u)
    for ks in range(16):
        nxt = ks + 1
        a.vwait(f"H{ks}")
        if cfg.get("fine") and ks in (0, 1, 4, 8, 12, 15):
            a.stamp()
        for u in range(7):
            if nxt < 16:
                wread(nxt, u)
                a("s_waitcnt lgkmcnt(7)")
            else:
                a(f"s_waitcnt lgkmcnt({6-u})")
            for mt in range(2):
                mfma(a, vr(cacc(u, mt), 4), vr(wf(ks & 1, u), 4), vr(hf(mt, ks), 4), "0" if ks == 0 else None)
            if u in (1, 4) and ks + HD < 16:
                hload(ks + HD, (0,) if u == 1 else (1,))
            if u == 3 and ks + HD == 16:
                for mt in range(2):
                    for pp in range(4):
                        a.vmem("ST", f"buffer_load_dwordx2 {vr(STT+mt*8+pp*2,2)}, v12, {R(R_ST)}, 0 offen offset:{mt*2048+pp*128} sc1")
    CP = 92
    for v in range(4):
        for u in range(7):
            a(f"ds_read_b128 {vr(CP+(v*7+u)*4,4)}, v14 offset:{v*448+u*64}")
    a.vwait("ST")
    MEAN, RSTD = 228, 232
    for mt in range(2):
        b = STT + mt * 8
        a(f"""
        v_pk_add_f32 {vr(b,2)}, {vr(b,2)}, {vr(b+2,2)}
        v_pk_add_f32 {vr(b+4,2)}, {vr(b+4,2)}, {vr(b+6,2)}
        v_pk_add_f32 {vr(b,2)}, {vr(b,2)}, {vr(b+4,2)}
        """)
    allreduce_g(a, [STT, STT + 1, STT + 8, STT + 9], [STT + 2, STT + 3, STT + 10, STT + 11])
    for mt in range(2):
        b = STT + mt * 8
        a(f"""
        v_mul_f32 v{MEAN+2*mt}, 0xbb000000, v{b}
        v_mul_f32 v{b+1}, 0x3b000000, v{b+1}
        v_fma_f32 v{b+1}, -v{MEAN+2*mt}, v{MEAN+2*mt}, v{b+1}
        v_max_f32 v{b+1}, 0, v{b+1}
        v_add_f32 v{b+1}, 0x3727c5ac, v{b+1}
        v_rsq_f32 v{RSTD+2*mt}, v{b+1}
        v_mov_b32 v{MEAN+2*mt+1}, v{MEAN+2*mt}
        """)
    a(f"v_mov_b32 v{RSTD+1}, v{RSTD}")
    a(f"v_mov_b32 v{RSTD+3}, v{RSTD+2}")
    a("s_waitcnt lgkmcnt(0)")
    a.stamp()
    a("s_barrier")
    a.stamp()
    a(f"""
    s_lshl_b32 s{T0}, s{sRB}, 3
    s_lshl_b32 s{T1}, s{sW}, 1
    s_add_u32 s{T0}, s{T0}, s{T1}
    s_mul_i32 s{T0}, s{T0}, 57344
    s_mul_i32 s{T1}, s{sC16}, 7
    s_add_u32 s{T2}, s{T1}, s{sA}
    s_lshl_b32 s{T2}, s{T2}, 9
    s_add_u32 s{T2}, s{T2}, s{T0}
    v_add_u32 v20, s{T2}, v{vL16}
    s_cmp_eq_u32 s{sA}, 0
    s_cselect_b32 s{T2}, 6, 0
    s_add_u32 s{T1}, s{T1}, s{T2}
    s_lshr_b32 s{T2}, s{T1}, 1
    s_lshl_b32 s{T2}, s{T2}, 10
    s_and_b32 s{T1}, s{T1}, 1
    s_lshl_b32 s{T1}, s{T1}, 3
    s_add_u32 s{T2}, s{T2}, s{T1}
    s_add_u32 s{T2}, s{T2}, s{T0}
    v_add_u32 v21, s{T2}, v{vL16}
    s_mov_b32 s{sG}, 57344
    s_mul_i32 s{sF}, s{sW}, 40960
    """)
    OUT = 204
    outs = [204, 208, 236, 240, 244, 248, 120, 124]
    k = 0
    for v in range(4):
        us = (2 * v, 2 * v + 1) if v < 3 else (6,)
        for u in us:
            for r in (0, 2):
                c = CP + u * 4 + r
                a(f"v_pk_add_f32 {vr(c,2)}, {vr(c,2)}, {vr(c+28,2)}")
                a(f"v_pk_add_f32 {vr(c+56,2)}, {vr(c+56,2)}, {vr(c+84,2)}")
                a(f"v_pk_add_f32 {vr(c,2)}, {vr(c,2)}, {vr(c+56,2)}")
        for mt in range(2):
            o = outs[k]
            k += 1
            for n, u in enumerate(us):
                d = cacc(u, mt)
                c = CP + u * 4
                a(f"v_pk_fma_f32 {vr(d,2)}, {vr(MEAN+2*mt,2)}, {vr(c,2)}, {vr(d,2)}")
                a(f"v_pk_fma_f32 {vr(d+2,2)}, {vr(MEAN+2*mt,2)}, {vr(c+2,2)}, {vr(d+2,2)}")
                a(f"v_pk_mul_f32 {vr(d,2)}, {vr(d,2)}, {vr(RSTD+2*mt,2)}")
                a(f"v_pk_mul_f32 {vr(d+2,2)}, {vr(d+2,2)}, {vr(RSTD+2*mt,2)}")
                a(f"v_cvt_pk_bf16_f32 v{o+2*n}, v{d}, v{d+1}")
                a(f"v_cvt_pk_bf16_f32 v{o+2*n+1}, v{d+2}, v{d+3}")
                a(f"v_pk_max_i16 v{o+2*n}, v{o+2*n}, 0")
                a(f"v_pk_max_i16 v{o+2*n+1}, v{o+2*n+1}, 0")
            so = "0" if mt == 0 else f"s{sG}"
            if v < 3:
                a.vmem("S1", f"buffer_store_dwordx4 {vr(o,4)}, v20, {R(R_H1)}, {so} offen offset:{v*1024} sc1")
            else:
                a.vmem("S1", f"buffer_store_dwordx2 {vr(o,2)}, v21, {R(R_H1)}, {so} offen sc1")
    a.stamp()
    for lm in range(4):
        a(f"""
        s_xor_b32 s{T0}, s{sW}, {lm}
        s_lshl_b32 s{T1}, s{sPT}, 2
        s_add_u32 s{T0}, s{T0}, s{T1}
        s_mul_i32 s{T0}, s{T0}, 57344
        s_mul_i32 s{T1}, s{sW}, {14*1024}
        s_add_u32 s{T0}, s{T0}, s{T1}
        v_add_u32 v{8+lm}, s{T0}, v{vL16}
        """)
    a(f"""
    v_lshrrev_b32 v4, 2, v{vL}
    v_bfe_u32 v5, v{vL}, 3, 2
    v_and_b32 v6, 3, v{vL}
    v_lshl_add_u32 v4, v4, 7, s{sF}
    v_lshl_add_u32 v4, v6, 3, v4
    """)
    for u in range(4):
        a(f"v_xor_b32 v6, {u}, v5")
        a(f"v_lshl_add_u32 v{12+u}, v6, 5, v4")
    a(f"v_add_u32 v{vC2}, {16*256}, v{vC2}")
    a(f"""
    s_lshl_b32 s{T0}, s{sPT}, 2
    s_add_u32 s{T0}, s{T0}, s{sW}
    s_lshl_b32 s{T0}, s{T0}, 14
    v_lshl_add_u32 v16, v{vI}, 4, s{T0}
    s_cmp_ge_u32 s{sE}, 4
    s_cbranch_scc1 L_res_mirror
    s_lshl_b32 s{T0}, s{sE}, 12
    v_lshl_add_u32 v17, v{vG}, 8, v16
    v_add_u32 v17, s{T0}, v17
    v_mov_b32 v18, {OOB}
    v_mov_b32 v19, {OOB}
    s_branch L_res_done
    """)
    a.label("L_res_mirror")
    a(f"""
    s_lshl_b32 s{T0}, s{sE}, 2
    s_sub_u32 s{T0}, 28, s{T0}
    s_lshl_b32 s{T0}, s{T0}, 10
    s_add_u32 s{T0}, s{T0}, 8
    v_sub_u32 v18, 3, v{vG}
    v_lshl_add_u32 v17, v18, 8, v16
    v_add_u32 v17, s{T0}, v17
    v_add_u32 v18, 256, v17
    v_add_u32 v19, {256+3072}, v17
    v_add_u32 v22, 8, v16
    v_or_b32 v23, s{sE}, v{vL16}
    v_and_b32 v23, 0x307, v23
    v_cmp_eq_u32 vcc, 4, v23
    s_nop 1
    v_cndmask_b32 v19, v19, v22, vcc
    """)
    a.label("L_res_done")
    a.vwait("S1")
    a.stamp()
    a("s_barrier")
    arrive(a, "L_ar3", vC2, 4, "1")
    a.stamp()
    RES, RE1 = 36, 44
    for up in range(4):
        a.vmem("RES", f"buffer_load_dwordx2 {vr(RES+2*up,2)}, v17, {R(R_H)}, 0 offen offset:{up*1024} sc1")
    for up in range(3):
        a.vmem("RES", f"buffer_load_ushort v{RE1+up}, v18, {R(R_H)}, 0 offen offset:{up*1024} sc1")
    a.vmem("RES", f"buffer_load_ushort v{RE1+3}, v19, {R(R_H)}, 0 offen sc1")
    a(f"""
    s_lshl_b32 s{T0}, s{sT}, 6
    s_add_u32 s{T0}, s{T0}, s{sP}
    s_and_b32 s{T1}, s{sW}, 1
    s_lshl_b32 s{T1}, s{T1}, 5
    s_add_u32 s{T0}, s{T0}, s{T1}
    v_lshl_add_u32 v20, v{vI}, 1, s{T0}
    v_cmp_eq_u32 vcc, 0, v20
    v_sub_u32 v21, 0x800, v20
    v_mov_b32 v22, 0x400
    s_cmp_ge_u32 s{sW}, 2
    s_cselect_b64 s[{sM}:{sM+1}], -1, 0
    v_cndmask_b32 v21, v21, v22, vcc
    v_cndmask_b32 v20, v20, v21, s[{sM}:{sM+1}]
    s_lshl_b32 s{T0}, s{sE}, 7
    v_lshl_add_u32 v21, v{vG}, 5, s{T0}
    v_lshl_add_u32 v20, v20, 10, v21
    """)
    a.vwait("RES")
    DACC, DWF, H1F = 48, 112, 144
    NR = cfg["h1ring"]
    dacc = lambda u, lm: DACC + (u * 4 + lm) * 4
    dwf = lambda b, u: DWF + (b * 4 + u) * 4
    h1f = lambda lm, ks: H1F + ((ks % NR) * 4 + lm) * 4
    a(f"""
    s_cmp_ge_u32 s{sE}, 4
    s_cbranch_scc1 L_unp_mirror
    """)
    for u in range(4):
        s, d = RES + 2 * u, dacc(u, 0)
        a(f"""
        v_lshlrev_b32 v{d}, 16, v{s}
        v_and_b32 v{d+1}, s{sHI}, v{s}
        v_lshlrev_b32 v{d+2}, 16, v{s+1}
        v_and_b32 v{d+3}, s{sHI}, v{s+1}
        """)
    a("s_branch L_unp_done")
    a.label("L_unp_mirror")
    for u in range(4):
        s, d = RES + 2 * (3 - u), dacc(u, 0)
        a(f"""
        v_lshlrev_b32 v{d}, 16, v{RE1+3-u}
        v_and_b32 v{d+1}, s{sHI}, v{s+1}
        v_lshlrev_b32 v{d+2}, 16, v{s+1}
        v_and_b32 v{d+3}, s{sHI}, v{s}
        """)
    a.label("L_unp_done")
    a.stamp()
    poll(a, "L_p3", vC2, 4, "1", 16)
    a.stamp()

    def h1load(ks, lms=(0, 1, 2, 3)):
        if lms[0] == 0:
            if ks == 0:
                a(f"s_lshl_b32 s{sCUR}, s{sRD}, 10")
            else:
                a(f"s_add_u32 s{sCUR}, s{sCUR}, 1024\ns_cmp_eq_u32 s{sCUR}, {14*1024}\ns_cselect_b32 s{sCUR}, 0, s{sCUR}")
        for lm in lms:
            a.vmem(f"G{ks}", f"buffer_load_dwordx4 {vr(h1f(lm,ks),4)}, v{8+lm}, {R(R_H1)}, s{sCUR} offen sc1")

    def dtr(ks, u):
        off = (ks % 10) * 4096
        a(f"ds_read_b64_tr_b16 {vr(dwf(ks&1,u),2)}, v{12+u} offset:{off}")
        a(f"ds_read_b64_tr_b16 {vr(dwf(ks&1,u)+2,2)}, v{12+u} offset:{off+2048}")

    DD = cfg["ddepth"]
    assert DD < NR
    for ks in range(DD):
        h1load(ks)
    for u in range(4):
        dtr(0, u)
    for ks in range(14):
        nxt = ks + 1
        if ks == 9:
            a("s_barrier")
        a.vwait(f"G{ks}")
        if cfg.get("fine") and ks in (0, 1, 3, 4, 6, 9, 12):
            a.stamp()
        for u in range(4):
            if nxt < 14:
                dtr(nxt, u)
                a("s_waitcnt lgkmcnt(8)")
            else:
                a(f"s_waitcnt lgkmcnt({6-2*u})")
            for lm in (1, 2, 3, 0):
                mfma(a, vr(dacc(u, lm), 4), vr(dwf(ks & 1, u), 4), vr(h1f(lm, ks), 4), "0" if (ks == 0 and lm) else None)
            if ks + DD < 14:
                h1load(ks + DD, (u,))
        if ks == 3:
            a("s_barrier")
    a.stamp()
    a(f"v_add_u32 v16, s{sF}, v{vL16}")
    for lm in range(1, 4):
        a(f"""
        s_xor_b32 s{T0}, s{sW}, {lm}
        s_mul_i32 s{T0}, s{T0}, 40960
        s_add_u32 s{T0}, s{T0}, {(lm-1)*4096}
        v_add_u32 v{16+lm}, s{T0}, v{vL16}
        """)
    for lm in range(1, 4):
        for u in range(4):
            a(f"ds_write_b128 v16, {vr(dacc(u,lm),4)} offset:{(lm-1)*4096+u*1024}")
    a("""
    s_waitcnt lgkmcnt(0)
    s_barrier
    """)
    RD = 144
    for lm in range(1, 4):
        for u in range(4):
            a(f"ds_read_b128 {vr(RD+((lm-1)*4+u)*4,4)}, v{16+lm} offset:{u*1024}")
    for lm in range(1, 4):
        a(f"s_waitcnt lgkmcnt({8-4*(lm-1)})")
        for u in range(4):
            for r in (0, 2):
                a(f"v_pk_add_f32 {vr(dacc(u,0)+r,2)}, {vr(dacc(u,0)+r,2)}, {vr(RD+((lm-1)*4+u)*4+r,2)}")
    O = 112
    for u in range(4):
        a(f"v_cvt_pk_bf16_f32 v{O+2*u}, v{dacc(u,0)}, v{dacc(u,0)+1}")
        a(f"v_cvt_pk_bf16_f32 v{O+2*u+1}, v{dacc(u,0)+2}, v{dacc(u,0)+3}")
    a.nop(2)
    for d in range(2):
        a(f"v_permlane32_swap_b32 v{O+d}, v{O+4+d}")
        a(f"v_permlane32_swap_b32 v{O+2+d}, v{O+6+d}")
    a.nop(2)
    for d in range(2):
        a(f"v_permlane16_swap_b32 v{O+d}, v{O+2+d}")
        a(f"v_permlane16_swap_b32 v{O+4+d}, v{O+6+d}")
    a.nop(2)
    a(f"buffer_store_dwordx4 {vr(O,4)}, v20, {R(R_OUT)}, 0 offen")
    a(f"buffer_store_dwordx4 {vr(O+4,4)}, v20, {R(R_OUT)}, 0 offen offset:16")
    stamp_out(a, 0)
    a("s_branch L_end")


def helper(a, cfg):
    a.label("L_helper")
    a.vm = []
    a.nstamp = 2
    a.sstamp = R_H
    a(f"""
    s_lshl_b32 s{T3}, s2, 2
    s_add_u32 s{T3}, s{T3}, s{sW}
    s_cmp_lg_u32 s{T3}, 3
    s_cbranch_scc1 L_noleader
    v_lshlrev_b32 v4, 8, v{vL}
    v_mov_b32 v5, 0
    s_mov_b32 s{T0}, 16384
    buffer_store_dword v5, v4, {R(R_CNT)}, 0 offen sc1
    buffer_store_dword v5, v4, {R(R_CNT)}, s{T0} offen sc1
    """)
    a.label("L_noleader")
    a(f"""
    s_lshl_b32 s{T0}, s{sE4}, 6
    s_lshl_b32 s{T1}, s{sW}, 4
    s_add_u32 s{T0}, s{T0}, s{T1}
    """)
    for n in range(4):
        a(f"""
        v_add_u32 v4, {4*n}, v{vG}
        v_xor_b32 v5, v4, v{vI}
        v_add_u32 v4, s{T0}, v4
        v_lshlrev_b32 v5, 4, v5
        v_lshl_add_u32 v{8+n}, v4, 10, v5
        """)
        if n == 0:
            a(f"""
            v_cmp_eq_u32 vcc, 0, v4
            v_add_u32 v12, 0x40000, v8
            s_nop 0
            v_cndmask_b32 v12, v8, v12, vcc
            """)
    for typ in range(2):
        for n in range(4):
            a(f"s_add_u32 m0, s{sC}, {L_GA + typ*4096 + n*1024}")
            a("s_nop 0")
            v = 12 if (typ == 0 and n == 0) else 8 + n
            a.vmem("A", f"buffer_load_dwordx4 v{v}, {R(R_DI if typ else R_DR)}, 0 offen lds")
    a(f"""
    s_cmp_lg_u32 s{T3}, 3
    s_cbranch_scc1 L_noleader2
    s_waitcnt vmcnt(8)
    v_mov_b32 v4, 1
    v_mov_b32 v5, 0
    s_mov_b64 exec, 1
    buffer_store_dword v4, v5, {R(R_DBG)}, 0 offen sc1
    s_mov_b64 exec, -1
    """)
    a.label("L_noleader2")
    a(f"""
    s_lshl_b32 s{T0}, s{sT}, 6
    s_add_u32 s{T0}, s{T0}, s{sP}
    s_and_b32 s{T1}, s{sW}, 1
    s_lshl_b32 s{T1}, s{T1}, 5
    s_add_u32 s{sA}, s{T0}, s{T1}
    s_lshl_b32 s{sD}, s{sA}, 12
    s_lshl_b32 s{sF}, s{sW}, 14
    s_cmp_ge_u32 s{sW}, 2
    s_cselect_b32 s{R_DR}, s{R_CI}, s{R_CR}
    s_cselect_b32 s{R_DR+1}, s{R_CI+1}, s{R_CR+1}
    s_mov_b32 s{R_DR+2}, {2048*4096}
    """)

    def trig_dma(q):
        a(f"""
        s_add_u32 s{T0}, s{sD}, {q*8192}
        s_add_u32 m0, s{sF}, {L_TR + q*1024}
        v_xor_b32 v4, {q*16}, v{vL16}
        """)
        a.vmem("T", f"buffer_load_dwordx4 v4, {R(R_DR)}, s{T0} offen lds")

    a(f"""
    s_lshl_b32 s{T0}, s{sE}, 6
    s_sub_u32 s{T1}, {960-64}, s{T0}
    s_cmp_ge_u32 s{sW}, 2
    s_cselect_b64 s[{sM}:{sM+1}], -1, 0
    """)
    for n in range(4):
        a(f"""
        v_add_u32 v4, {4*n}, v{vG}
        v_xor_b32 v5, v4, v{vI}
        v_lshl_add_u32 v4, v4, 1, s{sA}
        v_sub_u32 v6, 0x800, v4
        v_cmp_eq_u32 vcc, 0, v4
        v_mov_b32 v7, 0x400
        v_lshlrev_b32 v13, 4, v5
        v_cndmask_b32 v6, v6, v7, vcc
        v_cndmask_b32 v4, v4, v6, s[{sM}:{sM+1}]
        v_add_u32 v6, s{T0}, v13
        v_add_u32 v7, s{T1}, v13
        v_cmp_lt_u32 vcc, 3, v5
        v_mov_b32 v13, 512
        s_nop 0
        v_cndmask_b32 v6, v6, v7, vcc
        v_cmp_lt_u32 vcc, 8, v5
        s_nop 1
        v_cndmask_b32 v6, v6, v13, vcc
        v_lshl_add_u32 v{8+n}, v4, 10, v6
        """)
    a(f"s_lshl_b32 s{sB}, s{sW}, 12")

    def xt_dma(n):
        a(f"s_add_u32 m0, s{sB}, {L_XT + n*1024}")
        a("s_nop 0")
        a.vmem("T", f"buffer_load_dwordx4 v{8+n}, {R(R_X)}, 0 offen lds")

    a(f"""
    v_mul_u32_u24 v4, 0x4925, v{vL}
    v_lshrrev_b32 v4, 18, v4
    v_mul_u32_u24 v5, 14, v4
    v_sub_u32 v5, v{vL}, v5
    s_mul_i32 s{T0}, s{sC16}, 224
    v_lshl_add_u32 v5, v5, 4, s{T0}
    v_mul_u32_u24 v6, 3584, v4
    v_add_u32 v14, v5, v6
    v_sub_u32 v15, {3*3584}, v6
    v_add_u32 v15, v5, v15
    v_sub_u32 v16, {256*3584}, v6
    v_cmp_eq_u32 vcc, 0, v4
    v_add_u32 v16, v5, v16
    s_mul_i32 s{sH}, s{sW}, 7168
    s_add_u32 s{sG}, s{sRC}, s{sW}
    v_cndmask_b32 v16, v16, v5, vcc
    s_and_b32 s{T2}, s{sC16}, 1
    s_lshl_b32 s{T0}, s{T2}, 5
    s_cmp_eq_u32 s{T2}, 0
    s_cselect_b32 s{T1}, 192, 0
    s_add_u32 s{T0}, s{T0}, s{sH}
    s_add_u32 s{T1}, s{T1}, s{sH}
    v_lshrrev_b32 v4, 2, v{vL}
    v_mul_u32_u24 v4, 224, v4
    v_and_b32 v5, 3, v{vL}
    v_lshl_add_u32 v4, v5, 3, v4
    v_add_u32 v19, s{T0}, v4
    v_add_u32 v20, s{T1}, v4
    v_add_u32 v21, s{sH}, v{vL16}
    v_add_u32 v22, {8*7168}, v19
    v_add_u32 v23, {8*7168}, v20
    v_add_u32 v24, {8*7168}, v21
    s_mul_i32 s{T0}, s{sW}, 448
    s_add_u32 s{T0}, s{T0}, {L_CS}
    v_lshl_add_u32 v25, v{vG}, 4, s{T0}
    """)
    RLF, CSV, ONE = 196, 224, 252
    for r in range(4):
        a(f"v_mov_b32 v{ONE+r}, s{sONES}")

    def w1_dma(n, q):
        if q == 0:
            a(f"""
            s_add_u32 s{T2}, s{sG}, {4*n}
            s_and_b32 s{T2}, s{T2}, 15
            s_mul_i32 s{sCUR}, s{T2}, {16*3584}
            """)
        a(f"s_mov_b64 exec, s[{sEX}:{sEX+1}]")
        a(f"s_add_u32 m0, s{sH}, {n*4*7168 + q*896}")
        if q < 4:
            a(f"s_add_u32 s{T0}, s{sCUR}, {4*q*3584}")
            a.vmem(f"W1_{n}", f"buffer_load_dwordx4 v14, {R(R_W1)}, s{T0} offen lds")
        elif q == 4:
            a(f"""
            s_sub_u32 s{T0}, {509*3584}, s{sCUR}
            s_cmp_eq_u32 s{sCUR}, 0
            s_cselect_b32 s{T0}, {256*3584}, s{T0}
            s_cselect_b64 s[{sM}:{sM+1}], -1, 0
            v_cndmask_b32 v4, v15, v16, s[{sM}:{sM+1}]
            """)
            a.vmem(f"W1_{n}", f"buffer_load_dwordx4 v4, {R(R_W1)}, s{T0} offen lds")
        else:
            a(f"s_sub_u32 s{T0}, {(509-4*(q-4))*3584}, s{sCUR}")
            a.vmem(f"W1_{n}", f"buffer_load_dwordx4 v15, {R(R_W1)}, s{T0} offen lds")
        a("s_mov_b64 exec, -1")

    first_rl = [True]

    def relayout(n):
        a.vwait(f"W1_{n}")
        hi3 = 3 if n >= 2 else 0
        off0 = (n % 2) * 4 * 7168
        for u in range(7):
            base = (19 if u < 6 else 20) + hi3
            off = off0 + (u * 32 if u < 6 else 0)
            a(f"ds_read_b64_tr_b16 {vr(RLF+4*u,2)}, v{base} offset:{off}")
            a(f"ds_read_b64_tr_b16 {vr(RLF+4*u+2,2)}, v{base} offset:{off+3584}")
        a("s_waitcnt lgkmcnt(0)")
        for u in range(7):
            a(f"ds_write_b128 v{21+hi3}, {vr(RLF+4*u,4)} offset:{off0+u*1024}")
            mfma(a, vr(CSV + 4 * u, 4), vr(RLF + 4 * u, 4), vr(ONE, 4), "0" if first_rl[0] else None)
        first_rl[0] = False
        a("s_waitcnt lgkmcnt(0)")

    a(f"""
    v_bfe_u32 v4, v{vL}, 1, 2
    v_xor_b32 v4, v4, v{vG}
    v_and_b32 v5, 1, v{vL}
    v_lshl_or_b32 v4, v4, 1, v5
    v_lshrrev_b32 v5, 3, v{vL}
    v_lshlrev_b32 v5, 10, v5
    v_lshl_add_u32 v4, v4, 4, v5
    s_lshl_b32 s{T0}, s{sE}, 7
    s_mul_i32 s{T1}, s{sW}, {448*1024}
    s_add_u32 s{T0}, s{T0}, s{T1}
    v_add_u32 v17, s{T0}, v4
    s_mul_i32 s{T0}, s{sW}, 40960
    v_add_u32 v18, s{T0}, v{vL16}
    """)
    W2B = 28 if a.diag else 32

    def w2_load(i):
        if i == 0:
            a(f"s_lshl_b32 s{sA}, s{sRD}, 15")
        elif i % 4 == 0:
            a(f"s_add_u32 s{sA}, s{sA}, 32768\ns_cmp_eq_u32 s{sA}, {14*32768}\ns_cselect_b32 s{sA}, 0, s{sA}")
        a(f"s_add_u32 s{T1}, s{sA}, {(i%4)*8192}")
        a.vmem(f"W2_{i//4}", f"buffer_load_dwordx4 {vr(W2B+4*i,4)}, v17, {R(R_W2)}, s{T1} offen")

    W2SAFE = (RLF - W2B) // 4
    lo = [lambda i=i: w2_load(i) for i in range(56)]
    nlo = [0]

    def fill(n, limit=56):
        for _ in range(n):
            if lo and nlo[0] < limit:
                lo.pop(0)()
                nlo[0] += 1

    q = cfg["q"]
    a(f"""
    v_lshrrev_b32 v4, 2, v{vI}
    v_and_b32 v5, 3, v{vI}
    v_xor_b32 v5, v5, v{vG}
    v_lshlrev_b32 v5, 4, v5
    v_lshl_add_u32 v5, v{vI}, 10, v5
    s_and_b32 s{T0}, s{sW}, 1
    s_lshl_b32 s{T1}, s{T0}, 14
    v_add_u32 v5, s{T1}, v5
    """)
    for k3 in range(4):
        a(f"v_xor_b32 v6, {k3}, v4")
        a(f"v_lshl_add_u32 v{100+k3}, v6, 6, v5")
    a(f"""
    s_lshl_b32 s{T0}, s{T0}, 6
    s_add_u32 s{T0}, s{T0}, {L_SA}
    v_lshl_add_u32 v104, v{vG}, 4, s{T0}
    v_lshl_add_u32 v105, v{vI}, 2, s{T0}
    v_cmp_eq_u32 s[{R_ST}:{R_ST+1}], v4, v{vG}
    v_and_b32 v106, 3, v{vI}
    """)
    a.stamp()
    for k in range(q[0]):
        trig_dma(k)
    a.vwait("A")
    a.stamp()
    a("s_barrier")
    a.stamp()
    for ks in range(16):
        a(f"ds_read_b128 {vr(32+4*ks,4)}, v{100+(ks&3)} offset:{L_XA + (ks>>2)*256}")
    a(f"""
    s_cmp_ge_u32 s{sW}, 2
    s_cbranch_scc1 L_h_sq
    """)
    for ks in range(16):
        a(f"s_waitcnt lgkmcnt({min(15, 15-ks)})")
        mfma(a, "v[96:99]", vr(32 + 4 * ks, 4), vr(ONE, 4), "0" if ks == 0 else None)
    a.nop(8)
    a("""
    s_mov_b32 exec_lo, 0x00010001
    s_mov_b32 exec_hi, 0x00010001
    ds_write_b128 v104, v[96:99]
    s_branch L_h_stat_done
    """)
    a.label("L_h_sq")
    for ks in range(16):
        a(f"s_waitcnt lgkmcnt({min(15, 15-ks)})")
        mfma(a, "v[96:99]", vr(32 + 4 * ks, 4), vr(32 + 4 * ks, 4), "0" if ks == 0 else None)
    a(f"""
    v_cmp_eq_u32 vcc, 1, v106
    v_cmp_eq_u32 s[{sM}:{sM+1}], 2, v106
    v_cmp_eq_u32 s[{R_ST+2}:{R_ST+3}], 3, v106
    """)
    a.nop(6)
    a(f"""
    v_cndmask_b32 v96, v96, v97, vcc
    v_cndmask_b32 v96, v96, v98, s[{sM}:{sM+1}]
    v_cndmask_b32 v96, v96, v99, s[{R_ST+2}:{R_ST+3}]
    s_mov_b64 exec, s[{R_ST}:{R_ST+1}]
    ds_write_b32 v105, v96 offset:128
    """)
    a.label("L_h_stat_done")
    a("s_mov_b64 exec, -1")
    for k in range(q[0], q[0] + q[1]):
        trig_dma(k)
    a("s_waitcnt lgkmcnt(0)")
    a.stamp()
    a("s_barrier")
    a.stamp()
    for k in range(q[0] + q[1], 16):
        trig_dma(k)
    for n in range(4):
        xt_dma(n)
    for qq in range(8):
        w1_dma(0, qq)
    fill(q[2], W2SAFE)
    a.vwait("T")
    a.stamp()
    a("s_barrier")
    a.stamp()
    for qq in range(8):
        w1_dma(1, qq)
    a.stamp()
    a("s_barrier")
    a.stamp()
    for n in (2, 3):
        for qq in range(8):
            w1_dma(n, qq)
    relayout(0)
    relayout(1)
    a.stamp()
    a("s_barrier")
    a.stamp()
    relayout(2)
    relayout(3)
    a.nop(4)
    a("s_mov_b32 exec_lo, 0x00010001")
    a("s_mov_b32 exec_hi, 0x00010001")
    for u in range(7):
        a(f"ds_write_b128 v25, {vr(CSV+4*u,4)} offset:{u*64}")
    a("s_mov_b64 exec, -1")
    a("s_waitcnt lgkmcnt(0)")
    fill(q[3])
    a.stamp()
    a("s_barrier")
    a.stamp()
    fill(q[4])
    a.stamp()
    a("s_barrier")
    a.stamp()
    fill(q[5])
    a.stamp()
    a("s_barrier")
    a.stamp()
    fill(100)
    a.stamp()
    a("s_barrier")
    a.stamp()

    def dump(ks):
        a.vwait(f"W2_{ks}")
        for p in range(4):
            a(f"ds_write_b128 v18, {vr(W2B+4*(ks*4+p),4)} offset:{(ks%10)*4096+p*1024}")

    nd = cfg["dump1"]
    for ks in range(nd):
        dump(ks)
    a.stamp()
    a("s_barrier")
    for ks in range(nd, 10):
        dump(ks)
    a("s_waitcnt lgkmcnt(0)")
    a.stamp()
    a("s_barrier")
    a("s_barrier")
    for ks in range(10, 14):
        dump(ks)
    a("s_waitcnt lgkmcnt(0)")
    a("s_barrier")
    stamp_out(a, 4)


def main():
    cfg = {"hdepth": 5, "ddepth": 5, "h1ring": 7, "dump1": 8, "rot": 0, "diag": 0, "q": [8, 4, 0, 6, 16, 12]}
    out = f"cdna_kernels/{NAME}.s"
    for arg in sys.argv[1:]:
        if "=" in arg:
            k, v = arg.split("=")
            cfg[k] = [int(x) for x in v.split(",")] if k == "q" else int(v)
        else:
            out = arg
    a = Asm()
    a.diag = cfg["diag"]
    a.vstamp = 27
    a.sstamp = R_ZA
    if a.diag:
        def stamp():
            n = a.nstamp
            a.nstamp += 1
            a(f"s_memtime s[{a.sstamp}:{a.sstamp+1}]")
            a("s_waitcnt lgkmcnt(0)")
            a(f"v_writelane_b32 v{a.vstamp}, s{a.sstamp}, {n}")
        a.stamp = stamp
    kname = NAME + "_kernel"
    a.raw(HEADER.rstrip("\n"))
    a.raw(f"; @launch grid=(256,1,1) block=(512,1,1) lds={LDS_TOTAL}")
    a.raw('.amdgcn_target "amdgcn-amd-amdhsa--gfx950"')
    a.raw(".text")
    a.raw(f".globl {kname}")
    a.raw(".p2align 8")
    a.raw(f".type {kname},@function")
    a.label(kname)
    prologue(a, cfg['rot'])
    compute(a, cfg)
    helper(a, cfg)
    a.label("L_end")
    a("s_endpgm")
    a.raw('.section .rodata,"a"')
    a.raw(".p2align 6")
    a.raw(f""".amdhsa_kernel {kname}
  .amdhsa_next_free_vgpr 256
  .amdhsa_next_free_sgpr 102
  .amdhsa_accum_offset 256
  .amdhsa_group_segment_fixed_size 0
  .amdhsa_kernarg_size 88
  .amdhsa_user_sgpr_count 2
  .amdhsa_user_sgpr_kernarg_segment_ptr 1
  .amdhsa_system_sgpr_workgroup_id_x 1
.end_amdhsa_kernel""")
    open(out, "w").write(a.text())


if __name__ == "__main__":
    main()
```

```python
import sys
from gen2 import (Asm, vr, srd, mfma, treduce4, allreduce_g, transpose4, NAME, ZA_OFF, ZA_SZ, Z512_OFF, Z512_SZ,
                  CNT_OFF, CNT_SZ, STAT_OFF, STAT_SZ, H_OFF, H_SZ, H1_OFF, H1_SZ, STAMP_OFF, OOB, HEADER)

LDS_TOTAL = 163840
L_XA, L_GA, L_SA, L_XT, L_TR, L_F = 0, 32768, 65536, 81664, 98048, 163584
L_BX, L_CS = 147456, 151552
DSL, DSTR = 9, 9 * 4096
F_TRIG, F_TC, F_W1, F_CD, F_PAUSE, F_AR1, F_AR2, F_AR3, F_GO1, F_GO2, F_GO3 = range(11)
F_X, F_D1, F_S, F_D2 = 12, 16, 20, 24
vF, vONE, vFw = 14, 15, 29
hF, hONE, hFw = 28, 29, 30

sW = 3
sRB, sC16, sSB, sE4, sPT, sE, sP, sT = 4, 5, 6, 7, 8, 9, 10, 11
R_X, R_CR, R_CI, R_DR, R_DI, R_W1, R_W2, R_OUT = 12, 16, 20, 24, 28, 32, 36, 40
R_ZA, R_Z5, R_CNT, R_ST, R_H, R_H1, R_DBG, R_CF = 44, 48, 52, 56, 60, 64, 68, 72
T0, T1, T2, T3 = 76, 77, 78, 79
sK4, sK8, sK12 = 80, 81, 82
sONES, sHI = 83, 84
sA, sB, sC, sD, sF, sG, sH = 85, 86, 87, 88, 89, 90, 91
sEX = 92
sRC, sRD, sCUR = 98, 99, 100
sM = 94
sWS = 96
vL, vG, vI, vL16 = 0, 1, 2, 3


def R(b):
    return f"s[{b}:{b+3}]"


def sig(a, word, vf, vone, per_wave=False):
    a(f"ds_add_u32 v{vf}, v{vone} offset:{4*word}")


def waitf(a, name, word, vf, vtmp, target, cmp="ge"):
    a(f"s_mov_b32 s{T3}, 0")
    a.label(f"{name}_l")
    a(f"""
    ds_read_b32 v{vtmp}, v{vf} offset:{4*word}
    s_add_u32 s{T3}, s{T3}, 1
    s_waitcnt lgkmcnt(0)
    v_readfirstlane_b32 s{T2}, v{vtmp}
    s_cmp_ge_u32 s{T3}, 0x200000
    s_cbranch_scc1 {name}_x
    s_cmp_{'lt' if cmp == 'ge' else 'lg'}_u32 s{T2}, {target}
    s_cbranch_scc1 {name}_l
    """)
    a.label(f"{name}_x")


def poll(a, name, vaddr, vtmp, lanes_mask, target, goword, vf, vone):
    a(f"""
    s_cmp_lg_u32 s{sW}, 0
    s_cbranch_scc1 {name}_others
    s_mov_b64 exec, {lanes_mask}
    s_mov_b32 s{T0}, 0
    """)
    a.label(f"{name}_loop")
    a(f"""
    buffer_load_dword v{vtmp}, v{vaddr}, {R(R_CNT)}, 0 offen sc1
    s_add_u32 s{T0}, s{T0}, 1
    s_cmp_ge_u32 s{T0}, 0x40000
    s_cbranch_scc1 {name}_exit
    s_waitcnt vmcnt(0)
    v_cmp_gt_u32 vcc, {target}, v{vtmp}
    s_cbranch_vccnz {name}_loop
    """)
    a.label(f"{name}_exit")
    a("s_mov_b64 exec, -1")
    sig(a, goword, vf, vone)
    a(f"s_branch {name}_done")
    a.label(f"{name}_others")
    waitf(a, f"{name}_w", goword, vf, vtmp, 64)
    a.label(f"{name}_done")


def arrive(a, name, vaddr, vtmp, lanes_mask, arword, vf, vone):
    a(f"""
    s_mov_b64 exec, 1
    ds_add_rtn_u32 v{vtmp}, v{vf}, v{vone} offset:{4*arword}
    s_mov_b64 exec, -1
    ds_sub_u32 v{vf}, v{vone} offset:{4*F_PAUSE}
    s_waitcnt lgkmcnt(0)
    v_readfirstlane_b32 s{T0}, v{vtmp}
    s_nop 3
    s_cmp_lg_u32 s{T0}, 3
    s_cbranch_scc1 {name}_skip
    s_mov_b64 exec, {lanes_mask}
    buffer_atomic_add v{vone}, v{vaddr}, {R(R_CNT)}, 0 offen sc1
    s_mov_b64 exec, -1
    """)
    a.label(f"{name}_skip")


def stamp_out(a, wave_add):
    if not a.diag:
        return
    a("s_waitcnt vmcnt(0)")
    a.stamp()
    srd(a, R_ZA, sWS, sWS + 1, 1 << 20, STAMP_OFF)
    a(f"""
    s_lshl_b32 s{T0}, s2, 3
    s_add_u32 s{T0}, s{T0}, s{sW}
    s_add_u32 s{T0}, s{T0}, {wave_add}
    s_lshl_b32 s{T0}, s{T0}, 8
    v_lshl_add_u32 v4, v{vL}, 2, s{T0}
    buffer_store_dword v{a.vstamp}, v4, {R(R_ZA)}, 0 offen
    """)


def prologue(a, ROT):
    a("""
    s_cmp_ge_u32 s2, 256
    s_cbranch_scc1 L_end
    s_load_dwordx16 s[12:27], s[0:1], 0
    s_load_dwordx4 s[28:31], s[0:1], 64
    s_load_dwordx2 s[96:97], s[0:1], 80
    v_lshrrev_b32 v4, 6, v0
    v_and_b32 v0, 63, v0
    v_lshrrev_b32 v1, 4, v0
    v_readfirstlane_b32 s79, v4
    v_and_b32 v2, 15, v0
    v_lshlrev_b32 v3, 4, v0
    """)
    if a.diag:
        a(f"v_mov_b32 v{a.vstamp}, 0")
    a.stamp()
    a(f"""
    s_and_b32 s{sW}, s{T3}, 3
    s_and_b32 s{T0}, s2, 7
    s_lshr_b32 s{T1}, s2, 3
    s_and_b32 s{T2}, s{T1}, 1
    s_lshl_b32 s{sRB}, s{T0}, 1
    s_add_u32 s{sRB}, s{sRB}, s{T2}
    s_lshr_b32 s{sC16}, s{T1}, 1
    s_lshl_b32 s{sSB}, s{T0}, 3
    s_and_b32 s{T2}, s{T1}, 7
    s_add_u32 s{sSB}, s{sSB}, s{T2}
    s_lshr_b32 s{sE4}, s{T1}, 3
    s_and_b32 s{T2}, s{sC16}, 1
    s_lshl_b32 s{sPT}, s{sRB}, 1
    s_add_u32 s{sPT}, s{sPT}, s{T2}
    s_lshr_b32 s{sE}, s{sC16}, 1
    s_lshr_b32 s{sP}, s{sPT}, 4
    s_and_b32 s{sT}, s{sPT}, 15
    s_mov_b32 s{sK4}, 4096
    s_mov_b32 s{sK8}, 8192
    s_mov_b32 s{sK12}, 12288
    s_mov_b32 s{sONES}, 0x3f803f80
    s_mov_b32 s{sHI}, 0xffff0000
    s_mov_b32 s{sEX}, -1
    s_mov_b32 s{sEX+1}, 0x00ffffff
    s_lshl_b32 s{sC}, s{sW}, 13
    s_and_b32 s{sRC}, s{sRB}, 14
    s_mul_i32 s{sRC}, s{sRC}, {ROT}
    s_lshr_b32 s{T0}, s{sRB}, 1
    s_mul_i32 s{T0}, s{T0}, 7
    s_lshr_b32 s{sRD}, s{T0}, 2
    s_mul_i32 s{sRD}, s{sRD}, {ROT}
    s_waitcnt lgkmcnt(0)
    """)
    a.stamp()
    srd(a, R_DBG, 30, 31, 256)
    a(f"""
    s_cmp_eq_u32 s{sP}, 0
    s_cselect_b32 s{R_CF}, s14, s16
    s_cselect_b32 s{R_CF+1}, s15, s17
    s_mov_b32 s{R_CF+2}, {2048*4096}
    s_mov_b32 s{R_CF+3}, 0x20000
    """)
    srd(a, R_OUT, 28, 29, 2048 * 1024)
    srd(a, R_W2, 26, 27, 1792 * 1024)
    srd(a, R_W1, 24, 25, 512 * 3584)
    srd(a, R_DI, 20, 21, 512 * 1024)
    srd(a, R_DR, 18, 19, 512 * 1024)
    srd(a, R_CI, 16, 17, 2048 * 4096)
    srd(a, R_CR, 14, 15, 2048 * 4096)
    a(f"s_mov_b32 s{R_X+2}, {2048*1024}")
    a(f"s_mov_b32 s{R_X+3}, 0x20000")
    srd(a, R_CNT, sWS, sWS + 1, CNT_SZ, CNT_OFF)
    a(f"""
    s_cmp_ge_u32 s{T3}, 4
    s_cbranch_scc1 L_helper
    """)


def compute(a, cfg):
    a.sstamp = R_W1
    a(f"""
    s_and_b32 s{T0}, s{sW}, 1
    s_lshl_b32 s{T1}, s{T0}, 2
    s_lshr_b32 s{T2}, s{sW}, 1
    s_add_u32 s{T1}, s{T1}, s{T2}
    s_lshl_b32 s{T2}, s{sSB}, 3
    s_add_u32 s{sA}, s{T1}, s{T2}
    s_lshl_b32 s{sB}, s{T0}, 7
    v_xor_b32 v13, s{sB}, v{vL16}
    """)
    for q in range(8):
        r = q & 3
        add = 2 * (q >> 2)
        if r == 0:
            a(f"s_add_u32 s{T0}, s{sA}, {add}")
        elif r == 1:
            a(f"s_sub_u32 s{T0}, {2048-add}, s{sA}")
            if add == 0:
                a(f"s_cmp_eq_u32 s{sA}, 0\ns_cselect_b32 s{T0}, 512, s{T0}")
        elif r == 2:
            a(f"s_add_u32 s{T0}, s{sA}, {1024+add}")
        else:
            a(f"s_sub_u32 s{T0}, {1024-add}, s{sA}")
            if add == 0:
                a(f"s_cmp_eq_u32 s{sA}, 0\ns_cselect_b32 s{T0}, 1536, s{T0}")
        a(f"""
        s_lshl_b32 s{T0}, s{T0}, 10
        s_add_u32 m0, s{sC}, {L_XA + q*1024}
        v_xor_b32 v4, {q*16}, v13
        """)
        a.vmem("A", f"buffer_load_dwordx4 v4, {R(R_X)}, s{T0} offen lds")
    srd(a, R_ZA, sWS, sWS + 1, ZA_SZ, ZA_OFF)
    srd(a, R_Z5, sWS, sWS + 1, Z512_SZ, Z512_OFF)
    srd(a, R_ST, sWS, sWS + 1, STAT_SZ, STAT_OFF)
    srd(a, R_H, sWS, sWS + 1, H_SZ, H_OFF)
    srd(a, R_H1, sWS, sWS + 1, H1_SZ, H1_OFF)
    a.stamp()
    vT, vJ2 = 26, 28
    vC1a, vC1p, vC2 = 29, 30, 31
    CF0, CF1 = 24, 25
    a(f"""
    s_lshr_b32 s{sA}, s{sW}, 1
    s_and_b32 s{sB}, s{sW}, 1
    s_lshl_b32 s{T0}, s{sT}, 6
    s_add_u32 s{T0}, s{T0}, s{sP}
    s_lshl_b32 s{T1}, s{sA}, 5
    s_add_u32 s{T0}, s{T0}, s{T1}
    v_lshl_add_u32 v{vT}, v{vI}, 1, s{T0}
    v_cmp_eq_u32 vcc, 0, v{vT}
    s_lshl_b32 s{T0}, s{sE}, 6
    s_lshl_b32 s{T1}, s{sB}, 5
    s_add_u32 s{T0}, s{T0}, s{T1}
    v_lshl_add_u32 v{vJ2}, v{vG}, 3, s{T0}
    v_lshlrev_b32 v6, 12, v{vT}
    v_mov_b32 v7, {1024*4096}
    v_cndmask_b32 v7, v6, v7, vcc
    """)
    a.vmem("CF", f"buffer_load_ushort v{CF0}, v6, {R(R_CF)}, 0 offen offset:1024")
    a.vmem("CF", f"buffer_load_ushort v{CF1}, v7, {R(R_CF)}, 0 offen offset:1024")
    a(f"""
    s_lshl_b32 s{T0}, s{sE4}, 2
    s_and_b32 s{T1}, s{sSB}, 3
    s_add_u32 s{T0}, s{T0}, s{T1}
    s_lshl_b32 s{T0}, s{T0}, 10
    v_lshl_add_u32 v{vC1a}, v{vL}, 8, s{T0}
    s_lshr_b32 s{T0}, s{sE}, 1
    s_lshl_b32 s{T0}, s{T0}, 12
    s_and_b32 s{T1}, s{sPT}, 3
    s_lshl_b32 s{T1}, s{T1}, 8
    s_add_u32 s{T0}, s{T0}, s{T1}
    v_lshl_add_u32 v{vC1p}, v{vL}, 10, s{T0}
    s_lshl_b32 s{T0}, s{sRB}, 8
    s_add_u32 s{T0}, s{T0}, {64*256}
    v_mov_b32 v{vC2}, s{T0}
    """)
    a(f"""
    v_mov_b32 v{vF}, {L_F}
    v_mov_b32 v{vONE}, 1
    v_lshrrev_b32 v4, 2, v{vI}
    v_xor_b32 v4, s{sW}, v4
    v_and_b32 v5, 3, v{vI}
    v_xor_b32 v5, v5, v{vG}
    v_lshlrev_b32 v5, 4, v5
    s_add_u32 s{T0}, s{sC}, {L_GA}
    """)
    for kp in range(4):
        a(f"""
        v_xor_b32 v6, {kp}, v4
        v_lshl_add_u32 v6, v6, 6, v5
        v_lshl_add_u32 v{16+kp}, v{vI}, 10, v6
        v_lshl_add_u32 v6, v{vI}, 8, v6
        v_add_u32 v{20+kp}, s{T0}, v6
        """)
    GF, XFB, ACC = 32, 64, 128
    gf = lambda typ, kp: GF + (typ * 4 + kp) * 4
    xf = lambda b, Q, tau: XFB + b * 32 + (Q * 2 + tau) * 4
    acc = lambda Q, tau, typ: ACC + ((Q * 2 + tau) * 2 + typ) * 4
    CSA = 192
    for r in range(4):
        a(f"v_mov_b32 v{216+r}, s{sONES}")
    SIG, C1, S1, CSM = 200, 202, 204, 206
    a(f"""
    v_and_b32 v4, 1, v{vI}
    v_lshlrev_b32 v5, 31, v4
    v_or_b32 v{SIG}, 1.0, v5
    v_and_b32 v5, 2, v{vI}
    v_lshlrev_b32 v5, 30, v5
    v_or_b32 v5, 1.0, v5
    v_cmp_eq_u32 vcc, 0, v4
    v_mov_b32 v{SIG+1}, v{SIG}
    v_and_b32 v6, 3, v{vI}
    v_cndmask_b32 v{C1}, 0, v5, vcc
    v_cndmask_b32 v{S1}, v5, 0, vcc
    v_cmp_eq_u32 vcc, 0, v6
    v_mov_b32 v{C1+1}, v{C1}
    v_mov_b32 v{S1+1}, v{S1}
    v_cndmask_b32 v{CSM}, 0, 4.0, vcc
    """)
    a(f"""
    v_lshlrev_b32 v9, 4, v{vG}
    v_add_u32 v9, {L_SA}, v9
    s_lshl_b32 s{T0}, s{sE4}, 2
    s_add_u32 s{T0}, s{T0}, s{sW}
    s_lshl_b32 s{T0}, s{T0}, 14
    s_lshl_b32 s{T1}, s{sSB}, 8
    s_add_u32 s{T0}, s{T0}, s{T1}
    v_lshl_add_u32 v12, v{vI}, 4, s{T0}
    v_lshl_add_u32 v12, v{vG}, 18, v12
    v_or_b32 v13, s{sSB}, v{vG}
    v_cmp_eq_u32 s[{sM}:{sM+1}], 0, v13
    v_mov_b32 v220, 0x3b000000
    v_mov_b32 v221, 0x3b000000
    v_mov_b32 v222, 0x3727c5ac
    v_mov_b32 v223, 0x3727c5ac
    """)
    a.vwait("A")
    a("s_barrier")
    a.stamp()
    for typ in range(2):
        for kp in range(4):
            a(f"ds_read_b128 {vr(gf(typ,kp),4)}, v{20+kp} offset:{typ*4096}")

    def xreads(kp):
        for Q in range(4):
            for tau in range(2):
                a(f"ds_read_b128 {vr(xf(kp&1,Q,tau),4)}, v{16+kp} offset:{L_XA + Q*256 + tau*16384}")

    xreads(0)
    for kp in range(4):
        a("s_waitcnt lgkmcnt(0)")
        if kp < 3:
            xreads(kp + 1)
        if kp == 3:
            a.stamp()
            a("s_barrier")
            a("ds_read_b128 v[88:91], v9")
            a("ds_read_b128 v[92:95], v9 offset:64")
            a("ds_read_b128 v[80:83], v9 offset:128")
            a("ds_read_b128 v[84:87], v9 offset:192")
        fill = []
        if kp == 3:
            fill = ["s_nop 0"] * 9 + ["s_waitcnt lgkmcnt(0)"]
            for r in range(0, 8, 2):
                fill.append(f"v_pk_mul_f32 {vr(88+r,2)}, {vr(88+r,2)}, v[220:221]")
            for r in range(0, 8, 2):
                fill.append(f"v_pk_fma_f32 {vr(80+r,2)}, {vr(80+r,2)}, v[220:221], v[222:223]")
            for r in range(0, 8, 2):
                fill.append(f"v_pk_fma_f32 {vr(80+r,2)}, {vr(88+r,2)}, {vr(88+r,2)}, {vr(80+r,2)} neg_lo:[1,0,0] neg_hi:[1,0,0]")
            for r in range(8):
                fill.append(f"v_max_f32 v{80+r}, v222, v{80+r}")
            for r in range(8):
                fill.append(f"v_rsq_f32 v{80+r}, v{80+r}")
            fill += ["v_mov_b32 v73, v81", "v_mov_b32 v75, v83",
                     f"v_cndmask_b32 v81, v81, 0, s[{sM}:{sM+1}]", f"v_cndmask_b32 v83, v83, 0, s[{sM}:{sM+1}]"]
        per = (len(fill) + 15) // 16
        for typ in range(2):
            mfma(a, vr(CSA + 4 * typ, 4), "v[216:219]", vr(gf(typ, kp), 4), "0" if kp == 0 else None)
        for Q in range(4):
            for tau in range(2):
                for typ in range(2):
                    mfma(a, vr(acc(Q, tau, typ), 4), vr(xf(kp & 1, Q, tau), 4), vr(gf(typ, kp), 4), "0" if kp == 0 else None)
                    for _ in range(per):
                        if fill:
                            f = fill.pop(0)
                            if f != "s_nop 0":
                                a(f)
    sig(a, F_PAUSE, vF, vONE)
    a(f"v_mul_f32 v{CSA}, v{CSM}, v{CSA}")
    a(f"v_mul_f32 v{CSA+4}, v{CSM}, v{CSA+4}")
    a.stamp()
    KK, MM, KT = 80, 88, 72
    a.nop(4)
    for tau in range(2):
        for r in (0, 2):
            C = [acc(Q, tau, 0) + r for Q in range(4)]
            I = [acc(Q, tau, 1) + r for Q in range(4)]
            t0, t1, t2, t3 = 208, 210, 212, 214
            a(f"""
            v_pk_fma_f32 {vr(C[0],2)}, {vr(SIG,2)}, {vr(C[2],2)}, {vr(C[0],2)}
            v_pk_fma_f32 {vr(I[0],2)}, {vr(SIG,2)}, {vr(I[2],2)}, {vr(I[0],2)}
            v_pk_add_f32 {vr(t0,2)}, {vr(C[1],2)}, {vr(C[3],2)}
            v_pk_add_f32 {vr(t1,2)}, {vr(I[1],2)}, {vr(I[3],2)} neg_lo:[0,1] neg_hi:[0,1]
            v_pk_add_f32 {vr(t2,2)}, {vr(I[1],2)}, {vr(I[3],2)}
            v_pk_add_f32 {vr(t3,2)}, {vr(C[3],2)}, {vr(C[1],2)} neg_lo:[0,1] neg_hi:[0,1]
            v_pk_fma_f32 {vr(C[0],2)}, {vr(C1,2)}, {vr(t0,2)}, {vr(C[0],2)}
            v_pk_fma_f32 {vr(I[0],2)}, {vr(C1,2)}, {vr(t2,2)}, {vr(I[0],2)}
            v_pk_fma_f32 {vr(C[0],2)}, {vr(S1,2)}, {vr(t1,2)}, {vr(C[0],2)}
            v_pk_fma_f32 {vr(I[0],2)}, {vr(S1,2)}, {vr(t3,2)}, {vr(I[0],2)}
            """)
    OZ = 100
    for tau in range(2):
        for typ in range(2):
            d = acc(0, tau, typ)
            for r in range(4):
                a(f"v_fma_f32 v{d+r}, -v{MM+4*tau+r}, v{CSA+4*typ}, v{d+r}")
            sg = "-" if typ else ""
            e, f = 108, 109
            a(f"""
            v_mul_f32 v{e}, v{KK+4*tau}, v{d}
            v_mul_f32 v{f}, v{KK+4*tau+2}, v{d+2}
            v_fma_f32 v{e}, {sg}v{KK+4*tau+1}, v{d+1}, v{e}
            v_fma_f32 v{f}, {sg}v{KK+4*tau+3}, v{d+3}, v{f}
            v_add_f32 v{OZ+(typ*2+0)*2+tau}, v{e}, v{f}
            v_sub_f32 v{OZ+(typ*2+1)*2+tau}, v{e}, v{f}
            """)
    for arr in range(4):
        a(f"v_cvt_pk_bf16_f32 v{112+arr}, v{OZ+2*arr}, v{OZ+2*arr+1}")
    a.nop(2)
    transpose4(a, 112, 113, 114, 115)
    a.nop(1)
    a.vmem("SZ", f"buffer_store_dwordx4 v[112:115], v12, {R(R_ZA)}, 0 offen sc1")
    a(f"""
    s_cmp_lg_u32 s{sSB}, 0
    s_cbranch_scc1 L_noex
    v_mul_f32 v108, v{KT+1}, v{acc(0,0,0)+1}
    v_mul_f32 v109, v{KT+1}, v{acc(0,0,1)+1}
    v_fma_f32 v108, v{KT+3}, v{acc(0,0,0)+3}, v108
    v_fma_f32 v109, -v{KT+3}, v{acc(0,0,1)+3}, v109
    s_lshl_b32 s{T0}, s{sE4}, 8
    s_lshl_b32 s{T1}, s{sW}, 6
    s_add_u32 s{T0}, s{T0}, s{T1}
    v_lshl_add_u32 v110, v{vI}, 2, s{T0}
    s_mov_b64 exec, 0xffff
    buffer_store_dword v108, v110, {R(R_Z5)}, 0 offen sc1
    buffer_store_dword v109, v110, {R(R_Z5)}, 0 offen offset:1024 sc1
    s_mov_b64 exec, -1
    """)
    a.label("L_noex")
    a.stamp()
    a(f"""
    s_cmp_lg_u32 s{sW}, 0
    s_cbranch_scc1 L_rdy_done
    v_mov_b32 v4, 0
    s_mov_b64 exec, 1
    s_mov_b32 s{T0}, 0
    """)
    a.label("L_rdy_loop")
    a(f"""
    buffer_load_dword v5, v4, {R(R_DBG)}, 0 offen sc1
    s_add_u32 s{T0}, s{T0}, 1
    s_cmp_ge_u32 s{T0}, 0x40000
    s_cbranch_scc1 L_rdy_exit
    s_waitcnt vmcnt(0)
    v_cmp_eq_u32 vcc, 0, v5
    s_cbranch_vccnz L_rdy_loop
    """)
    a.label("L_rdy_exit")
    a("s_mov_b64 exec, -1")
    a.label("L_rdy_done")
    a(f"""
    v_lshrrev_b32 v4, 2, v{vI}
    v_and_b32 v5, 3, v{vI}
    v_xor_b32 v5, v5, v{vG}
    v_lshlrev_b32 v5, 4, v5
    v_lshl_add_u32 v5, v{vI}, 10, v5
    s_mul_i32 s{T0}, s{sA}, {32768+16384}
    s_add_u32 s{T0}, s{T0}, {L_TR}
    s_lshl_b32 s{T1}, s{sA}, 15
    s_sub_u32 s{T1}, 16384, s{T1}
    v_add_u32 v5, s{T0}, v5
    """)
    for k3 in range(4):
        a(f"""
        v_xor_b32 v6, {k3}, v4
        v_lshl_add_u32 v{8+k3}, v6, 6, v5
        v_add_u32 v{16+k3}, s{T1}, v{8+k3}
        """)
    a(f"""
    s_lshl_b32 s{T0}, s{sA}, 12
    s_add_u32 s{T0}, s{T0}, {L_XT}
    v_lshl_add_u32 v4, v{vI}, 8, s{T0}
    s_lshl_b32 s{T1}, s{sB}, 5
    v_lshl_add_u32 v5, v{vG}, 3, s{T1}
    v_lshlrev_b32 v7, 4, v{vI}
    v_xor_b32 v6, v5, v7
    v_add_u32 v20, v4, v6
    v_sub_u32 v6, {64+56}, v5
    v_xor_b32 v6, v6, v7
    v_add_u32 v21, v4, v6
    v_sub_u32 v6, {64+64}, v5
    v_cmp_eq_u32 s[{sM}:{sM+1}], 0, v{vJ2}
    v_mov_b32 v23, {9*16}
    s_nop 0
    v_cndmask_b32 v6, v6, v23, s[{sM}:{sM+1}]
    v_xor_b32 v6, v6, v7
    v_add_u32 v22, v4, v6
    """)
    a.vwait_all()
    a.stamp()
    arrive(a, "L_ar1", vC1a, 4, "0xf", F_AR1, vF, vONE)
    a(f"s_lshl_b32 s{T0}, s{sW}, 2")
    a(f"v_add_u32 v{vFw}, s{T0}, v{vF}")
    a.stamp()
    waitf(a, "L_wtrig", F_TRIG, vF, 4, 256)
    a.stamp()
    XR = 36
    for mir in range(2):
        a(f"ds_read_b64 {vr(XR+6*mir,2)}, v20 offset:{mir*8192}")
        a(f"ds_read_b64 {vr(XR+6*mir+2,2)}, v21 offset:{mir*8192}")
        a(f"ds_read_u16 v{XR+6*mir+4}, v22 offset:{mir*8192}")
    TF = 128
    tf = lambda tl, ks: TF + (tl * 16 + ks) * 4
    for ks in range(16):
        for tl in range(2):
            base = (8 if tl == 0 else 16) + (ks & 3)
            a(f"ds_read_b128 {vr(tf(tl,ks),4)}, v{base} offset:{(ks>>2)*256}")
    XU = 48
    a("s_waitcnt lgkmcnt(15)")
    for mir in range(2):
        b, x = XU + mir * 8, XR + 6 * mir
        a(f"""
        v_lshlrev_b32 v{b}, 16, v{x}
        v_and_b32 v{b+1}, s{sHI}, v{x}
        v_lshlrev_b32 v{b+2}, 16, v{x+1}
        v_and_b32 v{b+3}, s{sHI}, v{x+1}
        v_lshlrev_b32 v{b+4}, 16, v{x+4}
        v_and_b32 v{b+5}, s{sHI}, v{x+3}
        v_lshlrev_b32 v{b+6}, 16, v{x+3}
        v_and_b32 v{b+7}, s{sHI}, v{x+2}
        """)
    a(f"""
    v_lshlrev_b32 v{CF0}, 16, v{CF0}
    v_lshlrev_b32 v{CF1}, 16, v{CF1}
    s_lshl_b32 s{T0}, s{sA}, 1
    s_add_u32 s{T0}, s{T0}, s{sP}
    s_lshl_b32 s{T0}, s{T0}, 18
    s_lshl_b32 s{T1}, s{sE}, 1
    s_add_u32 s{T1}, s{T1}, s{sB}
    s_lshl_b32 s{T2}, s{T1}, 14
    s_add_u32 s{T0}, s{T0}, s{T2}
    v_add_u32 v8, s{T0}, v{vL16}
    v_lshlrev_b32 v9, 1, v{vJ2}
    s_lshl_b32 s{T0}, s{sP}, 10
    v_add_u32 v9, s{T0}, v9
    v_mov_b32 v32, 0xbf803f80
    v_mov_b32 v33, 0xbf803f80
    v_mov_b32 v34, 0xbf803f80
    v_mov_b32 v35, 0xbf803f80
    s_lshl_b32 s{T0}, s{sPT}, 16
    s_lshl_b32 s{T2}, s{sA}, 14
    s_add_u32 s{T0}, s{T0}, s{T2}
    s_lshl_b32 s{T2}, s{T1}, 10
    s_add_u32 s{T0}, s{T0}, s{T2}
    v_add_u32 v10, s{T0}, v{vL16}
    s_lshl_b32 s{T0}, s{sPT}, 13
    s_lshl_b32 s{T2}, s{sA}, 11
    s_add_u32 s{T0}, s{T0}, s{T2}
    s_lshl_b32 s{T1}, s{T1}, 7
    s_add_u32 s{T0}, s{T0}, s{T1}
    v_lshrrev_b32 v11, 1, v{vG}
    v_and_b32 v12, 1, v{vG}
    v_lshlrev_b32 v11, 12, v11
    v_lshl_add_u32 v11, v12, 2, v11
    v_lshl_add_u32 v11, v{vI}, 3, v11
    v_add_u32 v11, s{T0}, v11
    s_lshl_b32 s{T0}, s{sW}, 10
    s_add_u32 s{T0}, s{T0}, {L_BX}
    v_add_u32 v12, s{T0}, v{vL16}
    s_xor_b32 s{T0}, s{T0}, 0x800
    v_add_u32 v13, s{T0}, v{vL16}
    s_cmp_eq_u32 s{sP}, 0
    s_cselect_b32 s{sC}, 1.0, -1.0
    s_cmp_eq_u32 s{sA}, 0
    s_cselect_b32 s{sD}, 1.0, -1.0
    s_mov_b32 s{sG}, 0x8000
    s_waitcnt lgkmcnt(0)
    """)
    sig(a, F_TC, vF, vONE)
    a(f"v_xor_b32 v16, 8, v{vFw}")
    a.stamp()
    poll(a, "L_p1", vC1p, 4, "0xf", 16, F_GO1, vF, vONE)
    a.stamp()
    ZF, Z5 = 64, 20
    for ks in range(16):
        so = "0" if ks < 4 else f"s{sK4 - 1 + ks//4}"
        a.vmem(f"Z{ks}", f"buffer_load_dwordx4 {vr(ZF+4*ks,4)}, v8, {R(R_ZA)}, {so} offen offset:{(ks%4)*1024} sc1")
    a.vmem("Z5", f"buffer_load_dwordx4 {vr(Z5,4)}, v9, {R(R_Z5)}, 0 offen sc1")
    BA0, BA1, BAX = 36, 40, 44
    for ks in range(16):
        a.vwait(f"Z{ks}")
        c0 = "0" if ks == 0 else None
        mfma(a, vr(BA1, 4), vr(ZF + 4 * ks, 4), vr(tf(1, ks), 4), c0)
        mfma(a, vr(BA0, 4), vr(ZF + 4 * ks, 4), vr(tf(0, ks), 4), c0)
        mfma(a, vr(BAX, 4), vr(ZF + 4 * ks, 4), "v[32:35]", c0)
    sig(a, F_PAUSE, vF, vONE)
    waitf(a, "L_wtc", F_TC, vF, 4, 256)
    a(f"ds_write_b128 v12, {vr(BA1,4)}")
    a("s_waitcnt lgkmcnt(0)")
    sig(a, F_X, vFw, vONE)
    a.vwait("Z5")
    EX0, EX1, OT, Y = 64, 68, 72, 76
    for r in range(4):
        a(f"v_mul_f32 v{EX0+r}, v{CF0}, v{Z5+r}")
        a(f"v_mul_f32 v{EX1+r}, v{CF1}, v{Z5+r}")
    a(f"""
    v_cmp_eq_u32 vcc, 0, v{vT}
    """)
    waitf(a, "L_wx", F_X, 16, 4, 64)
    a(f"""
    ds_read_b128 {vr(OT,4)}, v13
    s_waitcnt lgkmcnt(0)
    """)
    a.stamp()
    for r in range(4):
        a(f"v_sub_f32 v{Y+r}, v{BA0+r}, v{OT+r}")
        a(f"v_add_f32 v{Y+4+r}, v{BA0+r}, v{OT+r}")
    for r in range(4):
        a(f"v_mul_f32 v{Y+r}, s{sD}, v{Y+r}")
        a(f"v_cndmask_b32 v{Y+8+r}, v{Y+4+r}, v{BAX+r}, vcc")
    for r in range(4):
        a(f"v_cndmask_b32 v{Y+12+r}, v{Y+r}, v{BAX+r}, vcc")
    for r in range(4):
        a(f"v_fmac_f32 v{Y+r}, s{sC}, v{EX0+r}")
        a(f"v_add_f32 v{Y+4+r}, v{Y+4+r}, v{EX0+r}")
        a(f"v_add_f32 v{Y+8+r}, v{Y+8+r}, v{EX1+r}")
        a(f"v_fmac_f32 v{Y+12+r}, s{sC}, v{EX1+r}")
    a(f"v_cndmask_b32 v{Y}, v{Y}, 0, s[{sM}:{sM+1}]")
    a(f"v_cndmask_b32 v{Y+8}, v{Y+8}, 0, s[{sM}:{sM+1}]")
    for r in range(0, 16, 2):
        a(f"v_pk_add_f32 {vr(Y+r,2)}, {vr(Y+r,2)}, {vr(XU+r,2)}")
    HP, S = 92, 100
    for r in range(8):
        a(f"v_cvt_pk_bf16_f32 v{HP+r}, v{Y+2*r}, v{Y+2*r+1}")
    for r in range(4):
        a(f"v_mov_b32 v{S+r}, 0")
    a.vmem("SH", f"buffer_store_dwordx4 {vr(HP,4)}, v10, {R(R_H)}, 0 offen sc1")
    a.vmem("SH", f"buffer_store_dwordx4 {vr(HP+4,4)}, v10, {R(R_H)}, s{sG} offen sc1")
    for mir in range(2):
        for d in range(4):
            a(f"v_dot2c_f32_bf16 v{S+2*mir}, s{sONES}, v{HP+4*mir+d}")
            a(f"v_dot2c_f32_bf16 v{S+2*mir+1}, v{HP+4*mir+d}, v{HP+4*mir+d}")
    a.nop(3)
    treduce4(a, S, S + 1, S + 2, S + 3)
    a.vmem("SH", f"buffer_store_dword v{S}, v11, {R(R_ST)}, 0 offen sc1")
    a.stamp()
    a(f"""
    s_and_b32 s{sA}, s{sC16}, 1
    v_add_u32 v19, {8*7168}, v{vL16}
    s_lshl_b32 s{T0}, s{sRB}, 17
    s_lshl_b32 s{T1}, s{sW}, 15
    s_add_u32 s{T0}, s{T0}, s{T1}
    v_add_u32 v10, s{T0}, v{vL16}
    v_add_u32 v11, 0x4000, v10
    s_lshl_b32 s{T0}, s{sRB}, 14
    s_lshl_b32 s{T1}, s{sW}, 12
    s_add_u32 s{T0}, s{T0}, s{T1}
    v_lshl_add_u32 v12, v{vI}, 3, s{T0}
    v_lshl_add_u32 v12, v{vG}, 9, v12
    v_lshlrev_b32 v13, 4, v{vG}
    v_add_u32 v13, {L_CS}, v13
    """)
    a.vwait_all()
    a.stamp()
    arrive(a, "L_ar2", vC2, 4, "1", F_AR2, vF, vONE)
    a.stamp()
    waitf(a, "L_ww1", F_W1, vF, 4, 256)
    a.stamp()
    poll(a, "L_p2", vC2, 4, "1", 16, F_GO2, vF, vONE)
    a.stamp()
    CACC, WF, HF, STT = 36, 92, 148, 212
    cacc = lambda u, mt: CACC + (u * 2 + mt) * 4
    wf = lambda b, u: WF + (b * 7 + u) * 4
    hf = lambda mt, ks: HF + ((ks % 8) * 2 + mt) * 4

    def wread(ks, u):
        a(f"ds_read_b128 {vr(wf(ks&1,u),4)}, v{vL16 if ks < 8 else 19} offset:{(ks%8)*7168+u*1024}")

    def hload(ks, mts=(0, 1)):
        if mts[0] == 0:
            a(f"s_add_u32 s{sCUR}, s{sRC}, {ks}\ns_and_b32 s{sCUR}, s{sCUR}, 15\ns_lshl_b32 s{sCUR}, s{sCUR}, 10")
        for mt in mts:
            a.vmem(f"H{ks}", f"buffer_load_dwordx4 {vr(hf(mt,ks),4)}, v{10+mt}, {R(R_H)}, s{sCUR} offen sc1")

    HD = cfg["hdepth"]
    for ks in range(HD):
        hload(ks)
    for u in range(7):
        wread(0, u)
    for ks in range(16):
        nxt = ks + 1
        a.vwait(f"H{ks}")
        if cfg.get("fine") and ks in (0, 1, 4, 8, 12, 15):
            a.stamp()
        for u in range(7):
            if nxt < 16:
                wread(nxt, u)
                a("s_waitcnt lgkmcnt(7)")
            else:
                a(f"s_waitcnt lgkmcnt({6-u})")
            for mt in range(2):
                mfma(a, vr(cacc(u, mt), 4), vr(wf(ks & 1, u), 4), vr(hf(mt, ks), 4), "0" if ks == 0 else None)
            if u in (1, 4) and ks + HD < 16:
                hload(ks + HD, (0,) if u == 1 else (1,))
            if u == 3 and ks + HD == 16:
                for mt in range(2):
                    for pp in range(4):
                        a.vmem("ST", f"buffer_load_dwordx2 {vr(STT+mt*8+pp*2,2)}, v12, {R(R_ST)}, 0 offen offset:{mt*2048+pp*128} sc1")
    sig(a, F_PAUSE, vF, vONE)
    CP = 92
    for v in range(4):
        for u in range(7):
            a(f"ds_read_b128 {vr(CP+(v*7+u)*4,4)}, v13 offset:{v*448+u*64}")
    a.vwait("ST")
    MEAN, RSTD = 228, 232
    for mt in range(2):
        b = STT + mt * 8
        a(f"""
        v_pk_add_f32 {vr(b,2)}, {vr(b,2)}, {vr(b+2,2)}
        v_pk_add_f32 {vr(b+4,2)}, {vr(b+4,2)}, {vr(b+6,2)}
        v_pk_add_f32 {vr(b,2)}, {vr(b,2)}, {vr(b+4,2)}
        """)
    allreduce_g(a, [STT, STT + 1, STT + 8, STT + 9], [STT + 2, STT + 3, STT + 10, STT + 11])
    for mt in range(2):
        b = STT + mt * 8
        a(f"""
        v_mul_f32 v{MEAN+2*mt}, 0xbb000000, v{b}
        v_mul_f32 v{b+1}, 0x3b000000, v{b+1}
        v_fma_f32 v{b+1}, -v{MEAN+2*mt}, v{MEAN+2*mt}, v{b+1}
        v_max_f32 v{b+1}, 0, v{b+1}
        v_add_f32 v{b+1}, 0x3727c5ac, v{b+1}
        v_rsq_f32 v{RSTD+2*mt}, v{b+1}
        v_mov_b32 v{MEAN+2*mt+1}, v{MEAN+2*mt}
        """)
    a(f"v_mov_b32 v{RSTD+1}, v{RSTD}")
    a(f"v_mov_b32 v{RSTD+3}, v{RSTD+2}")
    a("s_waitcnt lgkmcnt(0)")
    a.stamp()
    sig(a, F_CD, vF, vONE)
    a.stamp()
    a(f"""
    s_lshl_b32 s{T0}, s{sRB}, 3
    s_lshl_b32 s{T1}, s{sW}, 1
    s_add_u32 s{T0}, s{T0}, s{T1}
    s_mul_i32 s{T0}, s{T0}, 57344
    s_mul_i32 s{T1}, s{sC16}, 7
    s_add_u32 s{T2}, s{T1}, s{sA}
    s_lshl_b32 s{T2}, s{T2}, 9
    s_add_u32 s{T2}, s{T2}, s{T0}
    v_add_u32 v20, s{T2}, v{vL16}
    s_cmp_eq_u32 s{sA}, 0
    s_cselect_b32 s{T2}, 6, 0
    s_add_u32 s{T1}, s{T1}, s{T2}
    s_lshr_b32 s{T2}, s{T1}, 1
    s_lshl_b32 s{T2}, s{T2}, 10
    s_and_b32 s{T1}, s{T1}, 1
    s_lshl_b32 s{T1}, s{T1}, 3
    s_add_u32 s{T2}, s{T2}, s{T1}
    s_add_u32 s{T2}, s{T2}, s{T0}
    v_add_u32 v21, s{T2}, v{vL16}
    s_mov_b32 s{sG}, 57344
    s_mul_i32 s{sF}, s{sW}, {DSTR}
    """)
    OUT = 204
    outs = [204, 208, 236, 240, 244, 248, 120, 124]
    k = 0
    for v in range(4):
        us = (2 * v, 2 * v + 1) if v < 3 else (6,)
        for u in us:
            for r in (0, 2):
                c = CP + u * 4 + r
                a(f"v_pk_add_f32 {vr(c,2)}, {vr(c,2)}, {vr(c+28,2)}")
                a(f"v_pk_add_f32 {vr(c+56,2)}, {vr(c+56,2)}, {vr(c+84,2)}")
                a(f"v_pk_add_f32 {vr(c,2)}, {vr(c,2)}, {vr(c+56,2)}")
        for mt in range(2):
            o = outs[k]
            k += 1
            for n, u in enumerate(us):
                d = cacc(u, mt)
                c = CP + u * 4
                a(f"v_pk_fma_f32 {vr(d,2)}, {vr(MEAN+2*mt,2)}, {vr(c,2)}, {vr(d,2)}")
                a(f"v_pk_fma_f32 {vr(d+2,2)}, {vr(MEAN+2*mt,2)}, {vr(c+2,2)}, {vr(d+2,2)}")
                a(f"v_pk_mul_f32 {vr(d,2)}, {vr(d,2)}, {vr(RSTD+2*mt,2)}")
                a(f"v_pk_mul_f32 {vr(d+2,2)}, {vr(d+2,2)}, {vr(RSTD+2*mt,2)}")
                a(f"v_cvt_pk_bf16_f32 v{o+2*n}, v{d}, v{d+1}")
                a(f"v_cvt_pk_bf16_f32 v{o+2*n+1}, v{d+2}, v{d+3}")
                a(f"v_pk_max_i16 v{o+2*n}, v{o+2*n}, 0")
                a(f"v_pk_max_i16 v{o+2*n+1}, v{o+2*n+1}, 0")
            so = "0" if mt == 0 else f"s{sG}"
            if v < 3:
                a.vmem("S1", f"buffer_store_dwordx4 {vr(o,4)}, v20, {R(R_H1)}, {so} offen offset:{v*1024} sc1")
            else:
                a.vmem("S1", f"buffer_store_dwordx2 {vr(o,2)}, v21, {R(R_H1)}, {so} offen sc1")
    a.stamp()
    for lm in range(4):
        a(f"""
        s_xor_b32 s{T0}, s{sW}, {lm}
        s_lshl_b32 s{T1}, s{sPT}, 2
        s_add_u32 s{T0}, s{T0}, s{T1}
        s_mul_i32 s{T0}, s{T0}, 57344
        s_mul_i32 s{T1}, s{sW}, {14*1024}
        s_add_u32 s{T0}, s{T0}, s{T1}
        v_add_u32 v{8+lm}, s{T0}, v{vL16}
        """)
    a(f"""
    v_lshrrev_b32 v4, 2, v{vL}
    v_bfe_u32 v5, v{vL}, 3, 2
    v_and_b32 v6, 3, v{vL}
    v_lshl_add_u32 v4, v4, 7, s{sF}
    v_lshl_add_u32 v4, v6, 3, v4
    """)
    for u in range(4):
        a(f"v_xor_b32 v6, {u}, v5")
        a(f"v_lshl_add_u32 v{32+u}, v6, 5, v4")
    a(f"v_add_u32 v{vC2}, {16*256}, v{vC2}")
    a(f"""
    s_lshl_b32 s{T0}, s{sPT}, 2
    s_add_u32 s{T0}, s{T0}, s{sW}
    s_lshl_b32 s{T0}, s{T0}, 14
    v_lshl_add_u32 v16, v{vI}, 4, s{T0}
    s_cmp_ge_u32 s{sE}, 4
    s_cbranch_scc1 L_res_mirror
    s_lshl_b32 s{T0}, s{sE}, 12
    v_lshl_add_u32 v17, v{vG}, 8, v16
    v_add_u32 v17, s{T0}, v17
    v_mov_b32 v18, {OOB}
    v_mov_b32 v19, {OOB}
    s_branch L_res_done
    """)
    a.label("L_res_mirror")
    a(f"""
    s_lshl_b32 s{T0}, s{sE}, 2
    s_sub_u32 s{T0}, 28, s{T0}
    s_lshl_b32 s{T0}, s{T0}, 10
    s_add_u32 s{T0}, s{T0}, 8
    v_sub_u32 v18, 3, v{vG}
    v_lshl_add_u32 v17, v18, 8, v16
    v_add_u32 v17, s{T0}, v17
    v_add_u32 v18, 256, v17
    v_add_u32 v19, {256+3072}, v17
    v_add_u32 v22, 8, v16
    v_or_b32 v23, s{sE}, v{vL16}
    v_and_b32 v23, 0x307, v23
    v_cmp_eq_u32 vcc, 4, v23
    s_nop 1
    v_cndmask_b32 v19, v19, v22, vcc
    """)
    a.label("L_res_done")
    a.vwait("S1")
    a.stamp()
    arrive(a, "L_ar3", vC2, 4, "1", F_AR3, vF, vONE)
    a.stamp()
    RES, RE1 = 36, 44
    for up in range(4):
        a.vmem("RES", f"buffer_load_dwordx2 {vr(RES+2*up,2)}, v17, {R(R_H)}, 0 offen offset:{up*1024} sc1")
    for up in range(3):
        a.vmem("RES", f"buffer_load_ushort v{RE1+up}, v18, {R(R_H)}, 0 offen offset:{up*1024} sc1")
    a.vmem("RES", f"buffer_load_ushort v{RE1+3}, v19, {R(R_H)}, 0 offen sc1")
    a(f"""
    s_lshl_b32 s{T0}, s{sT}, 6
    s_add_u32 s{T0}, s{T0}, s{sP}
    s_and_b32 s{T1}, s{sW}, 1
    s_lshl_b32 s{T1}, s{T1}, 5
    s_add_u32 s{T0}, s{T0}, s{T1}
    v_lshl_add_u32 v20, v{vI}, 1, s{T0}
    v_cmp_eq_u32 vcc, 0, v20
    v_sub_u32 v21, 0x800, v20
    v_mov_b32 v22, 0x400
    s_cmp_ge_u32 s{sW}, 2
    s_cselect_b64 s[{sM}:{sM+1}], -1, 0
    v_cndmask_b32 v21, v21, v22, vcc
    v_cndmask_b32 v20, v20, v21, s[{sM}:{sM+1}]
    s_lshl_b32 s{T0}, s{sE}, 7
    v_lshl_add_u32 v21, v{vG}, 5, s{T0}
    v_lshl_add_u32 v20, v20, 10, v21
    """)
    a.vwait("RES")
    DACC, DWF, H1F = 48, 112, 144
    NR = cfg["h1ring"]
    dacc = lambda u, lm: DACC + (u * 4 + lm) * 4
    dwf = lambda b, u: DWF + (b * 4 + u) * 4
    h1f = lambda lm, ks: H1F + ((ks % NR) * 4 + lm) * 4
    a(f"""
    s_cmp_ge_u32 s{sE}, 4
    s_cbranch_scc1 L_unp_mirror
    """)
    for u in range(4):
        s, d = RES + 2 * u, dacc(u, 0)
        a(f"""
        v_lshlrev_b32 v{d}, 16, v{s}
        v_and_b32 v{d+1}, s{sHI}, v{s}
        v_lshlrev_b32 v{d+2}, 16, v{s+1}
        v_and_b32 v{d+3}, s{sHI}, v{s+1}
        """)
    a("s_branch L_unp_done")
    a.label("L_unp_mirror")
    for u in range(4):
        s, d = RES + 2 * (3 - u), dacc(u, 0)
        a(f"""
        v_lshlrev_b32 v{d}, 16, v{RE1+3-u}
        v_and_b32 v{d+1}, s{sHI}, v{s+1}
        v_lshlrev_b32 v{d+2}, 16, v{s+1}
        v_and_b32 v{d+3}, s{sHI}, v{s}
        """)
    a.label("L_unp_done")
    a.stamp()
    waitf(a, "L_wd1", F_D1, vFw, 4, 64)
    a.stamp()
    poll(a, "L_p3", vC2, 4, "1", 16, F_GO3, vF, vONE)
    a.stamp()

    def h1load(ks, lms=(0, 1, 2, 3)):
        if lms[0] == 0:
            if ks == 0:
                a(f"s_lshl_b32 s{sCUR}, s{sRD}, 10")
            else:
                a(f"s_add_u32 s{sCUR}, s{sCUR}, 1024\ns_cmp_eq_u32 s{sCUR}, {14*1024}\ns_cselect_b32 s{sCUR}, 0, s{sCUR}")
        for lm in lms:
            a.vmem(f"G{ks}", f"buffer_load_dwordx4 {vr(h1f(lm,ks),4)}, v{8+lm}, {R(R_H1)}, s{sCUR} offen sc1")

    def dtr(ks, u):
        off = (ks % DSL) * 4096
        a(f"ds_read_b64_tr_b16 {vr(dwf(ks&1,u),2)}, v{32+u} offset:{off}")
        a(f"ds_read_b64_tr_b16 {vr(dwf(ks&1,u)+2,2)}, v{32+u} offset:{off+2048}")

    DD = cfg["ddepth"]
    assert DD < NR
    for ks in range(DD):
        h1load(ks)
    for u in range(4):
        dtr(0, u)
    lag = [0]
    for ks in range(14):
        nxt = ks + 1
        if ks != 14 - DSL:
            lag[0] = 0
        if ks == DSL - 1:
            waitf(a, "L_wd2", F_D2, vFw, 4, 64)
        a.vwait(f"G{ks}")
        if cfg.get("fine") and ks in (0, 1, 3, 4, 6, 9, 12):
            a.stamp()
        for u in range(4):
            if nxt < 14:
                dtr(nxt, u)
                a(f"s_waitcnt lgkmcnt({8 + lag[0]})")
            else:
                a(f"s_waitcnt lgkmcnt({6-2*u})")
            for lm in (1, 2, 3, 0):
                mfma(a, vr(dacc(u, lm), 4), vr(dwf(ks & 1, u), 4), vr(h1f(lm, ks), 4), "0" if (ks == 0 and lm) else None)
            if ks + DD < 14:
                h1load(ks + DD, (u,))
        if ks == 13 - DSL:
            sig(a, F_S, vFw, vONE)
            lag[0] = 1
    a.stamp()
    a(f"v_add_u32 v16, s{sF}, v{vL16}")
    for lm in range(1, 4):
        a(f"""
        s_xor_b32 s{T0}, s{sW}, {lm}
        s_mul_i32 s{T0}, s{T0}, {DSTR}
        s_add_u32 s{T0}, s{T0}, {(lm-1)*4096}
        v_add_u32 v{16+lm}, s{T0}, v{vL16}
        """)
    for lm in range(1, 4):
        for u in range(4):
            a(f"ds_write_b128 v16, {vr(dacc(u,lm),4)} offset:{(lm-1)*4096+u*1024}")
    a("""
    s_waitcnt lgkmcnt(0)
    s_barrier
    """)
    RD = 144
    for lm in range(1, 4):
        for u in range(4):
            a(f"ds_read_b128 {vr(RD+((lm-1)*4+u)*4,4)}, v{16+lm} offset:{u*1024}")
    for lm in range(1, 4):
        a(f"s_waitcnt lgkmcnt({8-4*(lm-1)})")
        for u in range(4):
            for r in (0, 2):
                a(f"v_pk_add_f32 {vr(dacc(u,0)+r,2)}, {vr(dacc(u,0)+r,2)}, {vr(RD+((lm-1)*4+u)*4+r,2)}")
    O = 112
    for u in range(4):
        a(f"v_cvt_pk_bf16_f32 v{O+2*u}, v{dacc(u,0)}, v{dacc(u,0)+1}")
        a(f"v_cvt_pk_bf16_f32 v{O+2*u+1}, v{dacc(u,0)+2}, v{dacc(u,0)+3}")
    a.nop(2)
    for d in range(2):
        a(f"v_permlane32_swap_b32 v{O+d}, v{O+4+d}")
        a(f"v_permlane32_swap_b32 v{O+2+d}, v{O+6+d}")
    a.nop(2)
    for d in range(2):
        a(f"v_permlane16_swap_b32 v{O+d}, v{O+2+d}")
        a(f"v_permlane16_swap_b32 v{O+4+d}, v{O+6+d}")
    a.nop(2)
    a(f"buffer_store_dwordx4 {vr(O,4)}, v20, {R(R_OUT)}, 0 offen")
    a(f"buffer_store_dwordx4 {vr(O+4,4)}, v20, {R(R_OUT)}, 0 offen offset:16")
    stamp_out(a, 0)
    a("s_branch L_end")


def helper(a, cfg):
    a.label("L_helper")
    a.vm = []
    a.nstamp = 2
    a.sstamp = R_H
    a(f"""
    s_lshl_b32 s{T3}, s2, 2
    s_add_u32 s{T3}, s{T3}, s{sW}
    s_cmp_lg_u32 s{T3}, 3
    s_cbranch_scc1 L_noleader
    v_lshlrev_b32 v4, 8, v{vL}
    v_mov_b32 v5, 0
    s_mov_b32 s{T0}, 16384
    buffer_store_dword v5, v4, {R(R_CNT)}, 0 offen sc1
    buffer_store_dword v5, v4, {R(R_CNT)}, s{T0} offen sc1
    """)
    a.label("L_noleader")
    a(f"""
    s_lshl_b32 s{T0}, s{sE4}, 6
    s_lshl_b32 s{T1}, s{sW}, 4
    s_add_u32 s{T0}, s{T0}, s{T1}
    """)
    for n in range(4):
        a(f"""
        v_add_u32 v4, {4*n}, v{vG}
        v_xor_b32 v5, v4, v{vI}
        v_add_u32 v4, s{T0}, v4
        v_lshlrev_b32 v5, 4, v5
        v_lshl_add_u32 v{8+n}, v4, 10, v5
        """)
        if n == 0:
            a(f"""
            v_cmp_eq_u32 vcc, 0, v4
            v_add_u32 v12, 0x40000, v8
            s_nop 0
            v_cndmask_b32 v12, v8, v12, vcc
            """)
    for typ in range(2):
        for n in range(4):
            a(f"s_add_u32 m0, s{sC}, {L_GA + typ*4096 + n*1024}")
            a("s_nop 0")
            v = 12 if (typ == 0 and n == 0) else 8 + n
            a.vmem("A", f"buffer_load_dwordx4 v{v}, {R(R_DI if typ else R_DR)}, 0 offen lds")
    a(f"""
    s_cmp_lg_u32 s{T3}, 3
    s_cbranch_scc1 L_noleader2
    s_waitcnt vmcnt(8)
    v_mov_b32 v4, 1
    v_mov_b32 v5, 0
    s_mov_b64 exec, 1
    buffer_store_dword v4, v5, {R(R_DBG)}, 0 offen sc1
    s_mov_b64 exec, -1
    """)
    a.label("L_noleader2")
    a(f"""
    s_lshl_b32 s{T0}, s{sT}, 6
    s_add_u32 s{T0}, s{T0}, s{sP}
    s_and_b32 s{T1}, s{sW}, 1
    s_lshl_b32 s{T1}, s{T1}, 5
    s_add_u32 s{sA}, s{T0}, s{T1}
    s_lshl_b32 s{sD}, s{sA}, 12
    s_lshl_b32 s{sF}, s{sW}, 14
    s_cmp_ge_u32 s{sW}, 2
    s_cselect_b32 s{R_DR}, s{R_CI}, s{R_CR}
    s_cselect_b32 s{R_DR+1}, s{R_CI+1}, s{R_CR+1}
    s_mov_b32 s{R_DR+2}, {2048*4096}
    """)

    def trig_dma(q):
        a(f"""
        s_add_u32 s{T0}, s{sD}, {q*8192}
        s_add_u32 m0, s{sF}, {L_TR + q*1024}
        v_xor_b32 v4, {q*16}, v{vL16}
        """)
        a.vmem("T", f"buffer_load_dwordx4 v4, {R(R_DR)}, s{T0} offen lds")

    a(f"""
    s_lshl_b32 s{T0}, s{sE}, 6
    s_sub_u32 s{T1}, {960-64}, s{T0}
    s_cmp_ge_u32 s{sW}, 2
    s_cselect_b64 s[{sM}:{sM+1}], -1, 0
    """)
    for n in range(4):
        a(f"""
        v_add_u32 v4, {4*n}, v{vG}
        v_xor_b32 v5, v4, v{vI}
        v_lshl_add_u32 v4, v4, 1, s{sA}
        v_sub_u32 v6, 0x800, v4
        v_cmp_eq_u32 vcc, 0, v4
        v_mov_b32 v7, 0x400
        v_lshlrev_b32 v13, 4, v5
        v_cndmask_b32 v6, v6, v7, vcc
        v_cndmask_b32 v4, v4, v6, s[{sM}:{sM+1}]
        v_add_u32 v6, s{T0}, v13
        v_add_u32 v7, s{T1}, v13
        v_cmp_lt_u32 vcc, 3, v5
        v_mov_b32 v13, 512
        s_nop 0
        v_cndmask_b32 v6, v6, v7, vcc
        v_cmp_lt_u32 vcc, 8, v5
        s_nop 1
        v_cndmask_b32 v6, v6, v13, vcc
        v_lshl_add_u32 v{8+n}, v4, 10, v6
        """)
    a(f"s_lshl_b32 s{sB}, s{sW}, 12")

    def xt_dma(n):
        a(f"s_add_u32 m0, s{sB}, {L_XT + n*1024}")
        a("s_nop 0")
        a.vmem("T", f"buffer_load_dwordx4 v{8+n}, {R(R_X)}, 0 offen lds")

    a(f"""
    v_mul_u32_u24 v4, 0x4925, v{vL}
    v_lshrrev_b32 v4, 18, v4
    v_mul_u32_u24 v5, 14, v4
    v_sub_u32 v5, v{vL}, v5
    s_mul_i32 s{T0}, s{sC16}, 224
    v_lshl_add_u32 v5, v5, 4, s{T0}
    v_mul_u32_u24 v6, 3584, v4
    v_add_u32 v14, v5, v6
    v_sub_u32 v15, {3*3584}, v6
    v_add_u32 v15, v5, v15
    v_sub_u32 v16, {256*3584}, v6
    v_cmp_eq_u32 vcc, 0, v4
    v_add_u32 v16, v5, v16
    s_mul_i32 s{sH}, s{sW}, 7168
    s_add_u32 s{sG}, s{sRC}, s{sW}
    v_cndmask_b32 v16, v16, v5, vcc
    s_and_b32 s{T2}, s{sC16}, 1
    s_lshl_b32 s{T0}, s{T2}, 5
    s_cmp_eq_u32 s{T2}, 0
    s_cselect_b32 s{T1}, 192, 0
    s_add_u32 s{T0}, s{T0}, s{sH}
    s_add_u32 s{T1}, s{T1}, s{sH}
    v_lshrrev_b32 v4, 2, v{vL}
    v_mul_u32_u24 v4, 224, v4
    v_and_b32 v5, 3, v{vL}
    v_lshl_add_u32 v4, v5, 3, v4
    v_add_u32 v19, s{T0}, v4
    v_add_u32 v20, s{T1}, v4
    v_add_u32 v21, s{sH}, v{vL16}
    v_add_u32 v22, {8*7168}, v19
    v_add_u32 v23, {8*7168}, v20
    v_add_u32 v24, {8*7168}, v21
    s_mul_i32 s{T0}, s{sW}, 448
    s_add_u32 s{T0}, s{T0}, {L_CS}
    v_lshl_add_u32 v25, v{vG}, 4, s{T0}
    """)
    RLF, CSV, ONE = 196, 224, 252
    for r in range(4):
        a(f"v_mov_b32 v{ONE+r}, s{sONES}")

    def w1_dma(n, q):
        if q == 0:
            a(f"""
            s_add_u32 s{T2}, s{sG}, {4*n}
            s_and_b32 s{T2}, s{T2}, 15
            s_mul_i32 s{sCUR}, s{T2}, {16*3584}
            """)
        a(f"s_mov_b64 exec, s[{sEX}:{sEX+1}]")
        a(f"s_add_u32 m0, s{sH}, {n*4*7168 + q*896}")
        if q < 4:
            a(f"s_add_u32 s{T0}, s{sCUR}, {4*q*3584}")
            a.vmem(f"W1_{n}", f"buffer_load_dwordx4 v14, {R(R_W1)}, s{T0} offen lds")
        elif q == 4:
            a(f"""
            s_sub_u32 s{T0}, {509*3584}, s{sCUR}
            s_cmp_eq_u32 s{sCUR}, 0
            s_cselect_b32 s{T0}, {256*3584}, s{T0}
            s_cselect_b64 s[{sM}:{sM+1}], -1, 0
            v_cndmask_b32 v4, v15, v16, s[{sM}:{sM+1}]
            """)
            a.vmem(f"W1_{n}", f"buffer_load_dwordx4 v4, {R(R_W1)}, s{T0} offen lds")
        else:
            a(f"s_sub_u32 s{T0}, {(509-4*(q-4))*3584}, s{sCUR}")
            a.vmem(f"W1_{n}", f"buffer_load_dwordx4 v15, {R(R_W1)}, s{T0} offen lds")
        a("s_mov_b64 exec, -1")

    first_rl = [True]

    def relayout(n):
        a.vwait(f"W1_{n}")
        hi3 = 3 if n >= 2 else 0
        off0 = (n % 2) * 4 * 7168
        for u in range(7):
            base = (19 if u < 6 else 20) + hi3
            off = off0 + (u * 32 if u < 6 else 0)
            a(f"ds_read_b64_tr_b16 {vr(RLF+4*u,2)}, v{base} offset:{off}")
            a(f"ds_read_b64_tr_b16 {vr(RLF+4*u+2,2)}, v{base} offset:{off+3584}")
        a("s_waitcnt lgkmcnt(0)")
        for u in range(7):
            a(f"ds_write_b128 v{21+hi3}, {vr(RLF+4*u,4)} offset:{off0+u*1024}")
            mfma(a, vr(CSV + 4 * u, 4), vr(RLF + 4 * u, 4), vr(ONE, 4), "0" if first_rl[0] else None)
        first_rl[0] = False
        a("s_waitcnt lgkmcnt(0)")

    a(f"""
    v_bfe_u32 v4, v{vL}, 1, 2
    v_xor_b32 v4, v4, v{vG}
    v_and_b32 v5, 1, v{vL}
    v_lshl_or_b32 v4, v4, 1, v5
    v_lshrrev_b32 v5, 3, v{vL}
    v_lshlrev_b32 v5, 10, v5
    v_lshl_add_u32 v4, v4, 4, v5
    s_lshl_b32 s{T0}, s{sE}, 7
    s_mul_i32 s{T1}, s{sW}, {448*1024}
    s_add_u32 s{T0}, s{T0}, s{T1}
    v_add_u32 v17, s{T0}, v4
    s_mul_i32 s{T0}, s{sW}, {DSTR}
    v_add_u32 v18, s{T0}, v{vL16}
    v_mov_b32 v{hF}, {L_F}
    v_mov_b32 v{hONE}, 1
    s_lshl_b32 s{T0}, s{sW}, 2
    v_add_u32 v{hFw}, s{T0}, v{hF}
    v_lshl_add_u32 v4, v{vL}, 2, v{hF}
    v_mov_b32 v5, 0
    ds_write_b32 v4, v5
    """)
    W2B = 32

    def w2_load(i):
        if i == 0:
            a(f"s_lshl_b32 s{sA}, s{sRD}, 15")
        elif i % 4 == 0:
            a(f"s_add_u32 s{sA}, s{sA}, 32768\ns_cmp_eq_u32 s{sA}, {14*32768}\ns_cselect_b32 s{sA}, 0, s{sA}")
        a(f"s_add_u32 s{T1}, s{sA}, {(i%4)*8192}")
        a.vmem(f"W2_{i//4}", f"buffer_load_dwordx4 {vr(W2B+4*i,4)}, v17, {R(R_W2)}, s{T1} offen")

    W2SAFE = (RLF - W2B) // 4
    lo = [lambda i=i: w2_load(i) for i in range(56)]
    nlo = [0]

    npz = [0]

    def pause():
        if cfg["pause"]:
            npz[0] += 1
            waitf(a, f"L_hp{npz[0]}", F_PAUSE, hF, 31, 0, cmp="eq")

    def fill(n, limit=56):
        for k in range(n):
            if lo and nlo[0] < limit:
                if k % cfg["pchk"] == 0:
                    pause()
                lo.pop(0)()
                nlo[0] += 1

    def w1_slot(n):
        for qq in range(8):
            if qq % cfg["pchk"] == 0:
                pause()
            w1_dma(n, qq)

    q = cfg["q"]
    a(f"""
    v_lshrrev_b32 v4, 2, v{vI}
    v_and_b32 v5, 3, v{vI}
    v_xor_b32 v5, v5, v{vG}
    v_lshlrev_b32 v5, 4, v5
    v_lshl_add_u32 v5, v{vI}, 10, v5
    s_and_b32 s{T0}, s{sW}, 1
    s_lshl_b32 s{T1}, s{T0}, 14
    v_add_u32 v5, s{T1}, v5
    """)
    for k3 in range(4):
        a(f"v_xor_b32 v6, {k3}, v4")
        a(f"v_lshl_add_u32 v{100+k3}, v6, 6, v5")
    a(f"""
    s_lshl_b32 s{T0}, s{T0}, 6
    s_add_u32 s{T0}, s{T0}, {L_SA}
    v_lshl_add_u32 v104, v{vG}, 4, s{T0}
    v_lshl_add_u32 v105, v{vI}, 2, s{T0}
    v_cmp_eq_u32 s[{R_ST}:{R_ST+1}], v4, v{vG}
    v_and_b32 v106, 3, v{vI}
    """)
    a.stamp()
    for k in range(q[0]):
        trig_dma(k)
    a.vwait("A")
    a("s_waitcnt lgkmcnt(0)")
    a.stamp()
    a("s_barrier")
    a.stamp()
    for ks in range(16):
        a(f"ds_read_b128 {vr(32+4*ks,4)}, v{100+(ks&3)} offset:{L_XA + (ks>>2)*256}")
    a(f"""
    s_cmp_ge_u32 s{sW}, 2
    s_cbranch_scc1 L_h_sq
    """)
    for ks in range(16):
        a(f"s_waitcnt lgkmcnt({min(15, 15-ks)})")
        mfma(a, "v[96:99]", vr(32 + 4 * ks, 4), vr(ONE, 4), "0" if ks == 0 else None)
    a.nop(8)
    a("""
    s_mov_b32 exec_lo, 0x00010001
    s_mov_b32 exec_hi, 0x00010001
    ds_write_b128 v104, v[96:99]
    s_branch L_h_stat_done
    """)
    a.label("L_h_sq")
    for ks in range(16):
        a(f"s_waitcnt lgkmcnt({min(15, 15-ks)})")
        mfma(a, "v[96:99]", vr(32 + 4 * ks, 4), vr(32 + 4 * ks, 4), "0" if ks == 0 else None)
    a(f"""
    v_cmp_eq_u32 vcc, 1, v106
    v_cmp_eq_u32 s[{sM}:{sM+1}], 2, v106
    v_cmp_eq_u32 s[{R_ST+2}:{R_ST+3}], 3, v106
    """)
    a.nop(6)
    a(f"""
    v_cndmask_b32 v96, v96, v97, vcc
    v_cndmask_b32 v96, v96, v98, s[{sM}:{sM+1}]
    v_cndmask_b32 v96, v96, v99, s[{R_ST+2}:{R_ST+3}]
    s_mov_b64 exec, s[{R_ST}:{R_ST+1}]
    ds_write_b32 v105, v96 offset:128
    """)
    a.label("L_h_stat_done")
    a("s_mov_b64 exec, -1")
    for k in range(q[0], q[0] + q[1]):
        trig_dma(k)
    a("s_waitcnt lgkmcnt(0)")
    a.stamp()
    a("s_barrier")
    a.stamp()
    for k in range(q[0] + q[1], 16):
        trig_dma(k)
    for n in range(4):
        xt_dma(n)
    for qq in range(q[2]):
        w1_dma(0, qq)
    a.vwait("T")
    sig(a, F_TRIG, hF, hONE)
    a.stamp()
    for qq in range(q[2], 8):
        if qq % cfg["pchk"] == 0:
            pause()
        w1_dma(0, qq)
    w1_slot(1)
    a.stamp()
    fill(q[3], W2SAFE)
    waitf(a, "L_htc", F_TC, hF, 31, 256)
    a.stamp()
    w1_slot(2)
    w1_slot(3)
    a.stamp()
    relayout(0)
    fill(q[4], W2SAFE)
    relayout(1)
    fill(q[4], W2SAFE)
    relayout(2)
    fill(q[4], W2SAFE)
    relayout(3)
    a.nop(4)
    a("s_mov_b32 exec_lo, 0x00010001")
    a("s_mov_b32 exec_hi, 0x00010001")
    for u in range(7):
        a(f"ds_write_b128 v25, {vr(CSV+4*u,4)} offset:{u*64}")
    a("s_mov_b64 exec, -1")
    a("s_waitcnt lgkmcnt(0)")
    sig(a, F_W1, hF, hONE)
    a.stamp()
    fill(100)
    a.stamp()
    waitf(a, "L_hcd", F_CD, hF, 31, 256)
    a.stamp()

    def dump(ks):
        a.vwait(f"W2_{ks}")
        for p in range(4):
            a(f"ds_write_b128 v18, {vr(W2B+4*(ks*4+p),4)} offset:{(ks%DSL)*4096+p*1024}")

    for ks in range(DSL):
        dump(ks)
    a("s_waitcnt lgkmcnt(0)")
    sig(a, F_D1, hFw, hONE)
    a.stamp()
    waitf(a, "L_hs", F_S, hFw, 31, 64)
    for ks in range(DSL, 14):
        dump(ks)
    a("s_waitcnt lgkmcnt(0)")
    sig(a, F_D2, hFw, hONE)
    stamp_out(a, 4)


def main():
    cfg = {"hdepth": 4, "ddepth": 3, "h1ring": 7, "dump1": 8, "rot": 0, "diag": 0, "q": [8, 4, 4, 8, 4], "pause": 1, "pchk": 2}
    out = f"cdna_kernels/{NAME}.s"
    for arg in sys.argv[1:]:
        if "=" in arg:
            k, v = arg.split("=")
            cfg[k] = [int(x) for x in v.split(",")] if k == "q" else int(v)
        else:
            out = arg
    a = Asm()
    a.diag = cfg["diag"]
    a.vstamp = 27
    a.sstamp = R_ZA
    if a.diag:
        def stamp():
            n = a.nstamp
            a.nstamp += 1
            a(f"s_memtime s[{a.sstamp}:{a.sstamp+1}]")
            a("s_waitcnt lgkmcnt(0)")
            a(f"v_writelane_b32 v{a.vstamp}, s{a.sstamp}, {n}")
        a.stamp = stamp
    kname = NAME + "_kernel"
    a.raw(HEADER.rstrip("\n"))
    a.raw(f"; @launch grid=(256,1,1) block=(512,1,1) lds={LDS_TOTAL}")
    a.raw('.amdgcn_target "amdgcn-amd-amdhsa--gfx950"')
    a.raw(".text")
    a.raw(f".globl {kname}")
    a.raw(".p2align 8")
    a.raw(f".type {kname},@function")
    a.label(kname)
    prologue(a, cfg['rot'])
    compute(a, cfg)
    helper(a, cfg)
    a.label("L_end")
    a("s_endpgm")
    a.raw('.section .rodata,"a"')
    a.raw(".p2align 6")
    a.raw(f""".amdhsa_kernel {kname}
  .amdhsa_next_free_vgpr 256
  .amdhsa_next_free_sgpr 102
  .amdhsa_accum_offset 256
  .amdhsa_group_segment_fixed_size 0
  .amdhsa_kernarg_size 88
  .amdhsa_user_sgpr_count 2
  .amdhsa_user_sgpr_kernarg_segment_ptr 1
  .amdhsa_system_sgpr_workgroup_id_x 1
.end_amdhsa_kernel""")
    open(out, "w").write(a.text())


if __name__ == "__main__":
    main()
```

```python
import sys
from gen2 import (Asm, vr, srd, mfma, treduce4, allreduce_g, transpose4, NAME, ZA_OFF, ZA_SZ, Z512_OFF, Z512_SZ,
                  CNT_OFF, CNT_SZ, STAT_OFF, STAT_SZ, H_OFF, H_SZ, H1_OFF, H1_SZ, STAMP_OFF, OOB, HEADER)

LDS_TOTAL = 163840
CNT_SZ = 128 * 256
DPERM = [0, 1, 4, 5, 7, 8, 11, 12, 2, 3, 6, 9, 10, 13]
L_XA, L_GA, L_SA, L_XT, L_TR, L_F = 0, 32768, 65536, 81664, 98048, 163584
L_BX, L_CS = 147456, 151552
DSL, DSTR = 9, 9 * 4096
F_TRIG, F_TC, F_W1, F_CD, F_PAUSE, F_AR1, F_AR2, F_AR3, F_GO1, F_GO2, F_GO3 = range(11)
F_X, F_D1, F_S, F_D2 = 12, 16, 20, 24
F_AR4, F_GO4 = 28, 29
vF, vONE, vFw = 14, 15, 29
hF, hONE, hFw = 28, 29, 30

sW = 3
sRB, sC16, sSB, sE4, sPT, sE, sP, sT = 4, 5, 6, 7, 8, 9, 10, 11
R_X, R_CR, R_CI, R_DR, R_DI, R_W1, R_W2, R_OUT = 12, 16, 20, 24, 28, 32, 36, 40
R_ZA, R_Z5, R_CNT, R_ST, R_H, R_H1, R_DBG, R_CF = 44, 48, 52, 56, 60, 64, 68, 72
T0, T1, T2, T3 = 76, 77, 78, 79
sK4, sK8, sK12 = 80, 81, 82
sONES, sHI = 83, 84
sA, sB, sC, sD, sF, sG, sH = 85, 86, 87, 88, 89, 90, 91
sEX = 92
sRC, sRD, sCUR = 98, 99, 100
sM = 94
sWS = 96
vL, vG, vI, vL16 = 0, 1, 2, 3


def R(b):
    return f"s[{b}:{b+3}]"


def sig(a, word, vf, vone, per_wave=False):
    a("s_mov_b64 exec, 1")
    a(f"ds_add_u32 v{vf}, v{vone} offset:{4*word}")
    a("s_mov_b64 exec, -1")


def waitf(a, name, word, vf, vtmp, target, cmp="ge"):
    a(f"s_mov_b32 s{T3}, 0")
    a.label(f"{name}_l")
    a(f"""
    ds_read_b32 v{vtmp}, v{vf} offset:{4*word}
    s_add_u32 s{T3}, s{T3}, 1
    s_waitcnt lgkmcnt(0)
    v_readfirstlane_b32 s{T2}, v{vtmp}
    s_cmp_ge_u32 s{T3}, 0x200000
    s_cbranch_scc1 {name}_x
    s_cmp_{'lt' if cmp == 'ge' else 'lg'}_u32 s{T2}, {target // 64}
    s_cbranch_scc1 {name}_l
    """)
    a.label(f"{name}_x")


def poll(a, name, vaddr, vtmp, lanes_mask, target, goword, vf, vone):
    a(f"""
    s_cmp_lg_u32 s{sW}, 0
    s_cbranch_scc1 {name}_others
    s_mov_b64 exec, {lanes_mask}
    s_mov_b32 s{T0}, 0
    """)
    a.label(f"{name}_loop")
    a(f"""
    buffer_load_dword v{vtmp}, v{vaddr}, {R(R_CNT)}, 0 offen sc1
    s_add_u32 s{T0}, s{T0}, 1
    s_cmp_ge_u32 s{T0}, 0x40000
    s_cbranch_scc1 {name}_exit
    s_waitcnt vmcnt(0)
    v_cmp_gt_u32 vcc, {target}, v{vtmp}
    s_cbranch_vccnz {name}_loop
    """)
    a.label(f"{name}_exit")
    a("s_mov_b64 exec, -1")
    sig(a, goword, vf, vone)
    a(f"s_branch {name}_done")
    a.label(f"{name}_others")
    waitf(a, f"{name}_w", goword, vf, vtmp, 64)
    a.label(f"{name}_done")


def arrive(a, name, vaddr, vtmp, lanes_mask, arword, vf, vone):
    a(f"""
    s_mov_b64 exec, 1
    ds_add_rtn_u32 v{vtmp}, v{vf}, v{vone} offset:{4*arword}
    ds_sub_u32 v{vf}, v{vone} offset:{4*F_PAUSE}
    s_mov_b64 exec, -1
    s_waitcnt lgkmcnt(0)
    v_readfirstlane_b32 s{T0}, v{vtmp}
    s_nop 3
    s_cmp_lg_u32 s{T0}, 3
    s_cbranch_scc1 {name}_skip
    s_mov_b64 exec, {lanes_mask}
    buffer_atomic_add v{vone}, v{vaddr}, {R(R_CNT)}, 0 offen sc1
    s_mov_b64 exec, -1
    """)
    a.label(f"{name}_skip")


def touch(a, rsrc, vdst):
    a(f"""
    s_lshr_b32 s{T0}, s2, 3
    s_mul_i32 s{T0}, s{T0}, {448*128}
    s_lshl_b32 s{T1}, s{sW}, 13
    s_add_u32 s{T0}, s{T0}, s{T1}
    s_add_u32 s{T1}, s{T0}, 32768
    v_lshlrev_b32 v4, 7, v{vL}
    """)
    a.vmem("PF", f"buffer_load_dword v{vdst}, v4, {R(rsrc)}, s{T0} offen")
    a.vmem("PF", f"buffer_load_dword v{vdst}, v4, {R(rsrc)}, s{T1} offen")


def stamp_out(a, wave_add):
    if not a.diag:
        return
    a("s_waitcnt vmcnt(0)")
    a.stamp()
    srd(a, R_ZA, sWS, sWS + 1, 1 << 20, STAMP_OFF)
    a(f"""
    s_lshl_b32 s{T0}, s2, 3
    s_add_u32 s{T0}, s{T0}, s{sW}
    s_add_u32 s{T0}, s{T0}, {wave_add}
    s_lshl_b32 s{T0}, s{T0}, 8
    v_lshl_add_u32 v4, v{vL}, 2, s{T0}
    buffer_store_dword v{a.vstamp}, v4, {R(R_ZA)}, 0 offen
    """)


def prologue(a, ROT):
    a("""
    s_cmp_ge_u32 s2, 256
    s_cbranch_scc1 L_end
    s_load_dwordx16 s[12:27], s[0:1], 0
    s_load_dwordx4 s[28:31], s[0:1], 64
    s_load_dwordx2 s[96:97], s[0:1], 80
    v_lshrrev_b32 v4, 6, v0
    v_and_b32 v0, 63, v0
    v_lshrrev_b32 v1, 4, v0
    v_readfirstlane_b32 s79, v4
    v_and_b32 v2, 15, v0
    v_lshlrev_b32 v3, 4, v0
    """)
    if a.diag:
        a(f"v_mov_b32 v{a.vstamp}, 0")
    a.stamp()
    a(f"""
    s_and_b32 s{sW}, s{T3}, 3
    s_and_b32 s{T0}, s2, 7
    s_lshr_b32 s{T1}, s2, 3
    s_and_b32 s{T2}, s{T1}, 1
    s_lshl_b32 s{sRB}, s{T0}, 1
    s_add_u32 s{sRB}, s{sRB}, s{T2}
    s_lshr_b32 s{sC16}, s{T1}, 1
    s_lshl_b32 s{sSB}, s{T0}, 3
    s_and_b32 s{T2}, s{T1}, 7
    s_add_u32 s{sSB}, s{sSB}, s{T2}
    s_lshr_b32 s{sE4}, s{T1}, 3
    s_and_b32 s{T2}, s{sC16}, 1
    s_lshl_b32 s{sPT}, s{sRB}, 1
    s_add_u32 s{sPT}, s{sPT}, s{T2}
    s_lshr_b32 s{sE}, s{sC16}, 1
    s_lshr_b32 s{sP}, s{sPT}, 4
    s_and_b32 s{sT}, s{sPT}, 15
    s_mov_b32 s{sK4}, 4096
    s_mov_b32 s{sK8}, 8192
    s_mov_b32 s{sK12}, 12288
    s_mov_b32 s{sONES}, 0x3f803f80
    s_mov_b32 s{sHI}, 0xffff0000
    s_mov_b32 s{sEX}, -1
    s_mov_b32 s{sEX+1}, 0x00ffffff
    s_lshl_b32 s{sC}, s{sW}, 13
    s_and_b32 s{sRC}, s{sRB}, 14
    s_mul_i32 s{sRC}, s{sRC}, {ROT}
    s_bfe_u32 s{T0}, s{sRB}, 0x10001
    s_mul_i32 s{sRD}, s{T0}, {7*ROT}
    s_waitcnt lgkmcnt(0)
    """)
    a.stamp()
    srd(a, R_DBG, 30, 31, 256)
    a(f"""
    s_cmp_eq_u32 s{sP}, 0
    s_cselect_b32 s{R_CF}, s14, s16
    s_cselect_b32 s{R_CF+1}, s15, s17
    s_mov_b32 s{R_CF+2}, {2048*4096}
    s_mov_b32 s{R_CF+3}, 0x20000
    """)
    srd(a, R_OUT, 28, 29, 2048 * 1024)
    srd(a, R_W2, 26, 27, 1792 * 1024)
    srd(a, R_W1, 24, 25, 512 * 3584)
    srd(a, R_DI, 20, 21, 512 * 1024)
    srd(a, R_DR, 18, 19, 512 * 1024)
    srd(a, R_CI, 16, 17, 2048 * 4096)
    srd(a, R_CR, 14, 15, 2048 * 4096)
    a(f"s_mov_b32 s{R_X+2}, {2048*1024}")
    a(f"s_mov_b32 s{R_X+3}, 0x20000")
    srd(a, R_CNT, sWS, sWS + 1, CNT_SZ, CNT_OFF)
    a(f"""
    s_cmp_ge_u32 s{T3}, 4
    s_cbranch_scc1 L_helper
    """)


def compute(a, cfg):
    a.sstamp = R_DI
    a(f"""
    s_and_b32 s{T0}, s{sW}, 1
    s_lshl_b32 s{T1}, s{T0}, 2
    s_lshr_b32 s{T2}, s{sW}, 1
    s_add_u32 s{T1}, s{T1}, s{T2}
    s_lshl_b32 s{T2}, s{sSB}, 3
    s_add_u32 s{sA}, s{T1}, s{T2}
    s_lshl_b32 s{sB}, s{T0}, 7
    v_xor_b32 v13, s{sB}, v{vL16}
    """)
    for q in range(8):
        r = q & 3
        add = 2 * (q >> 2)
        if r == 0:
            a(f"s_add_u32 s{T0}, s{sA}, {add}")
        elif r == 1:
            a(f"s_sub_u32 s{T0}, {2048-add}, s{sA}")
            if add == 0:
                a(f"s_cmp_eq_u32 s{sA}, 0\ns_cselect_b32 s{T0}, 512, s{T0}")
        elif r == 2:
            a(f"s_add_u32 s{T0}, s{sA}, {1024+add}")
        else:
            a(f"s_sub_u32 s{T0}, {1024-add}, s{sA}")
            if add == 0:
                a(f"s_cmp_eq_u32 s{sA}, 0\ns_cselect_b32 s{T0}, 1536, s{T0}")
        a(f"""
        s_lshl_b32 s{T0}, s{T0}, 10
        s_add_u32 m0, s{sC}, {L_XA + q*1024}
        v_xor_b32 v4, {q*16}, v13
        """)
        a.vmem("A", f"buffer_load_dwordx4 v4, {R(R_X)}, s{T0} offen lds")
    if cfg["touch"] & 1:
        touch(a, R_W1, 250)
    if cfg["touch"] & 4:
        touch(a, R_W2, 250)
    srd(a, R_ZA, sWS, sWS + 1, ZA_SZ, ZA_OFF)
    srd(a, R_Z5, sWS, sWS + 1, Z512_SZ, Z512_OFF)
    srd(a, R_ST, sWS, sWS + 1, STAT_SZ, STAT_OFF)
    srd(a, R_H, sWS, sWS + 1, H_SZ, H_OFF)
    srd(a, R_H1, sWS, sWS + 1, H1_SZ, H1_OFF)
    a.stamp()
    vT, vJ2 = 26, 28
    vC1a, vC1p, vC2 = 29, 30, 31
    CF0, CF1 = 24, 25
    a(f"""
    s_lshr_b32 s{sA}, s{sW}, 1
    s_and_b32 s{sB}, s{sW}, 1
    s_lshl_b32 s{T0}, s{sT}, 6
    s_add_u32 s{T0}, s{T0}, s{sP}
    s_lshl_b32 s{T1}, s{sA}, 5
    s_add_u32 s{T0}, s{T0}, s{T1}
    v_lshl_add_u32 v{vT}, v{vI}, 1, s{T0}
    v_cmp_eq_u32 vcc, 0, v{vT}
    s_lshl_b32 s{T0}, s{sE}, 6
    s_lshl_b32 s{T1}, s{sB}, 5
    s_add_u32 s{T0}, s{T0}, s{T1}
    v_lshl_add_u32 v{vJ2}, v{vG}, 3, s{T0}
    v_lshlrev_b32 v6, 12, v{vT}
    v_mov_b32 v7, {1024*4096}
    v_cndmask_b32 v7, v6, v7, vcc
    """)
    a.vmem("CF", f"buffer_load_ushort v{CF0}, v6, {R(R_CF)}, 0 offen offset:1024")
    a.vmem("CF", f"buffer_load_ushort v{CF1}, v7, {R(R_CF)}, 0 offen offset:1024")
    a(f"""
    s_lshl_b32 s{T0}, s{sE4}, 2
    s_and_b32 s{T1}, s{sSB}, 3
    s_add_u32 s{T0}, s{T0}, s{T1}
    s_lshl_b32 s{T0}, s{T0}, 10
    v_lshl_add_u32 v{vC1a}, v{vL}, 8, s{T0}
    s_lshr_b32 s{T0}, s{sE}, 1
    s_lshl_b32 s{T0}, s{T0}, 12
    s_and_b32 s{T1}, s{sPT}, 3
    s_lshl_b32 s{T1}, s{T1}, 8
    s_add_u32 s{T0}, s{T0}, s{T1}
    v_lshl_add_u32 v{vC1p}, v{vL}, 10, s{T0}
    s_lshl_b32 s{T0}, s{sRB}, 8
    s_add_u32 s{T0}, s{T0}, {64*256}
    v_mov_b32 v{vC2}, s{T0}
    """)
    a(f"""
    v_mov_b32 v{vF}, {L_F}
    v_mov_b32 v{vONE}, 1
    v_lshrrev_b32 v4, 2, v{vI}
    v_xor_b32 v4, s{sW}, v4
    v_and_b32 v5, 3, v{vI}
    v_xor_b32 v5, v5, v{vG}
    v_lshlrev_b32 v5, 4, v5
    s_add_u32 s{T0}, s{sC}, {L_GA}
    """)
    for kp in range(4):
        a(f"""
        v_xor_b32 v6, {kp}, v4
        v_lshl_add_u32 v6, v6, 6, v5
        v_lshl_add_u32 v{16+kp}, v{vI}, 10, v6
        v_lshl_add_u32 v6, v{vI}, 8, v6
        v_add_u32 v{20+kp}, s{T0}, v6
        """)
    GF, XFB, ACC = 32, 64, 128
    gf = lambda typ, kp: GF + (typ * 4 + kp) * 4
    xf = lambda b, Q, tau: XFB + b * 32 + (Q * 2 + tau) * 4
    acc = lambda Q, tau, typ: ACC + ((Q * 2 + tau) * 2 + typ) * 4
    CSA = 192
    for r in range(4):
        a(f"v_mov_b32 v{216+r}, s{sONES}")
    SIG, C1, S1, CSM = 200, 202, 204, 206
    a(f"""
    v_and_b32 v4, 1, v{vI}
    v_lshlrev_b32 v5, 31, v4
    v_or_b32 v{SIG}, 1.0, v5
    v_and_b32 v5, 2, v{vI}
    v_lshlrev_b32 v5, 30, v5
    v_or_b32 v5, 1.0, v5
    v_cmp_eq_u32 vcc, 0, v4
    v_mov_b32 v{SIG+1}, v{SIG}
    v_and_b32 v6, 3, v{vI}
    v_cndmask_b32 v{C1}, 0, v5, vcc
    v_cndmask_b32 v{S1}, v5, 0, vcc
    v_cmp_eq_u32 vcc, 0, v6
    v_mov_b32 v{C1+1}, v{C1}
    v_mov_b32 v{S1+1}, v{S1}
    v_cndmask_b32 v{CSM}, 0, 4.0, vcc
    """)
    a(f"""
    v_lshlrev_b32 v9, 4, v{vG}
    v_add_u32 v9, {L_SA}, v9
    s_lshl_b32 s{T0}, s{sE4}, 2
    s_add_u32 s{T0}, s{T0}, s{sW}
    s_lshl_b32 s{T0}, s{T0}, 14
    s_lshl_b32 s{T1}, s{sSB}, 8
    s_add_u32 s{T0}, s{T0}, s{T1}
    v_lshl_add_u32 v12, v{vI}, 4, s{T0}
    v_lshl_add_u32 v12, v{vG}, 18, v12
    v_or_b32 v13, s{sSB}, v{vG}
    v_cmp_eq_u32 s[{sM}:{sM+1}], 0, v13
    v_mov_b32 v220, 0x3b000000
    v_mov_b32 v221, 0x3b000000
    v_mov_b32 v222, 0x3727c5ac
    v_mov_b32 v223, 0x3727c5ac
    """)
    a.vwait("A")
    a("s_barrier")
    a.stamp()
    for typ in range(2):
        for kp in range(4):
            a(f"ds_read_b128 {vr(gf(typ,kp),4)}, v{20+kp} offset:{typ*4096}")

    def xreads(kp):
        for Q in range(4):
            for tau in range(2):
                a(f"ds_read_b128 {vr(xf(kp&1,Q,tau),4)}, v{16+kp} offset:{L_XA + Q*256 + tau*16384}")

    xreads(0)
    for kp in range(4):
        a("s_waitcnt lgkmcnt(0)")
        if kp < 3:
            xreads(kp + 1)
        if kp == 3:
            a.stamp()
            a("s_barrier")
            a("ds_read_b128 v[88:91], v9")
            a("ds_read_b128 v[92:95], v9 offset:64")
            a("ds_read_b128 v[80:83], v9 offset:128")
            a("ds_read_b128 v[84:87], v9 offset:192")
        fill = []
        if kp == 3:
            fill = ["s_nop 0"] * 9 + ["s_waitcnt lgkmcnt(0)"]
            for r in range(0, 8, 2):
                fill.append(f"v_pk_mul_f32 {vr(88+r,2)}, {vr(88+r,2)}, v[220:221]")
            for r in range(0, 8, 2):
                fill.append(f"v_pk_fma_f32 {vr(80+r,2)}, {vr(80+r,2)}, v[220:221], v[222:223]")
            for r in range(0, 8, 2):
                fill.append(f"v_pk_fma_f32 {vr(80+r,2)}, {vr(88+r,2)}, {vr(88+r,2)}, {vr(80+r,2)} neg_lo:[1,0,0] neg_hi:[1,0,0]")
            for r in range(8):
                fill.append(f"v_max_f32 v{80+r}, v222, v{80+r}")
            for r in range(8):
                fill.append(f"v_rsq_f32 v{80+r}, v{80+r}")
            fill += ["v_mov_b32 v73, v81", "v_mov_b32 v75, v83",
                     f"v_cndmask_b32 v81, v81, 0, s[{sM}:{sM+1}]", f"v_cndmask_b32 v83, v83, 0, s[{sM}:{sM+1}]"]
        per = (len(fill) + 15) // 16
        for typ in range(2):
            mfma(a, vr(CSA + 4 * typ, 4), "v[216:219]", vr(gf(typ, kp), 4), "0" if kp == 0 else None)
        for Q in range(4):
            for tau in range(2):
                for typ in range(2):
                    mfma(a, vr(acc(Q, tau, typ), 4), vr(xf(kp & 1, Q, tau), 4), vr(gf(typ, kp), 4), "0" if kp == 0 else None)
                    for _ in range(per):
                        if fill:
                            f = fill.pop(0)
                            if f != "s_nop 0":
                                a(f)
    sig(a, F_PAUSE, vF, vONE)
    a(f"v_mul_f32 v{CSA}, v{CSM}, v{CSA}")
    a(f"v_mul_f32 v{CSA+4}, v{CSM}, v{CSA+4}")
    a.stamp()
    KK, MM, KT = 80, 88, 72
    a.nop(4)
    for tau in range(2):
        for r in (0, 2):
            C = [acc(Q, tau, 0) + r for Q in range(4)]
            I = [acc(Q, tau, 1) + r for Q in range(4)]
            t0, t1, t2, t3 = 208, 210, 212, 214
            a(f"""
            v_pk_fma_f32 {vr(C[0],2)}, {vr(SIG,2)}, {vr(C[2],2)}, {vr(C[0],2)}
            v_pk_fma_f32 {vr(I[0],2)}, {vr(SIG,2)}, {vr(I[2],2)}, {vr(I[0],2)}
            v_pk_add_f32 {vr(t0,2)}, {vr(C[1],2)}, {vr(C[3],2)}
            v_pk_add_f32 {vr(t1,2)}, {vr(I[1],2)}, {vr(I[3],2)} neg_lo:[0,1] neg_hi:[0,1]
            v_pk_add_f32 {vr(t2,2)}, {vr(I[1],2)}, {vr(I[3],2)}
            v_pk_add_f32 {vr(t3,2)}, {vr(C[3],2)}, {vr(C[1],2)} neg_lo:[0,1] neg_hi:[0,1]
            v_pk_fma_f32 {vr(C[0],2)}, {vr(C1,2)}, {vr(t0,2)}, {vr(C[0],2)}
            v_pk_fma_f32 {vr(I[0],2)}, {vr(C1,2)}, {vr(t2,2)}, {vr(I[0],2)}
            v_pk_fma_f32 {vr(C[0],2)}, {vr(S1,2)}, {vr(t1,2)}, {vr(C[0],2)}
            v_pk_fma_f32 {vr(I[0],2)}, {vr(S1,2)}, {vr(t3,2)}, {vr(I[0],2)}
            """)
    OZ = 100
    for tau in range(2):
        for typ in range(2):
            d = acc(0, tau, typ)
            for r in range(4):
                a(f"v_fma_f32 v{d+r}, -v{MM+4*tau+r}, v{CSA+4*typ}, v{d+r}")
            sg = "-" if typ else ""
            e, f = 108, 109
            a(f"""
            v_mul_f32 v{e}, v{KK+4*tau}, v{d}
            v_mul_f32 v{f}, v{KK+4*tau+2}, v{d+2}
            v_fma_f32 v{e}, {sg}v{KK+4*tau+1}, v{d+1}, v{e}
            v_fma_f32 v{f}, {sg}v{KK+4*tau+3}, v{d+3}, v{f}
            v_add_f32 v{OZ+(typ*2+0)*2+tau}, v{e}, v{f}
            v_sub_f32 v{OZ+(typ*2+1)*2+tau}, v{e}, v{f}
            """)
    for arr in range(4):
        a(f"v_cvt_pk_bf16_f32 v{112+arr}, v{OZ+2*arr}, v{OZ+2*arr+1}")
    a.nop(2)
    transpose4(a, 112, 113, 114, 115)
    a.nop(1)
    a.vmem("SZ", f"buffer_store_dwordx4 v[112:115], v12, {R(R_ZA)}, 0 offen sc1")
    a(f"""
    s_cmp_lg_u32 s{sSB}, 0
    s_cbranch_scc1 L_noex
    v_mul_f32 v108, v{KT+1}, v{acc(0,0,0)+1}
    v_mul_f32 v109, v{KT+1}, v{acc(0,0,1)+1}
    v_fma_f32 v108, v{KT+3}, v{acc(0,0,0)+3}, v108
    v_fma_f32 v109, -v{KT+3}, v{acc(0,0,1)+3}, v109
    s_lshl_b32 s{T0}, s{sE4}, 8
    s_lshl_b32 s{T1}, s{sW}, 6
    s_add_u32 s{T0}, s{T0}, s{T1}
    v_lshl_add_u32 v110, v{vI}, 2, s{T0}
    s_mov_b64 exec, 0xffff
    buffer_store_dword v108, v110, {R(R_Z5)}, 0 offen sc1
    buffer_store_dword v109, v110, {R(R_Z5)}, 0 offen offset:1024 sc1
    s_mov_b64 exec, -1
    """)
    a.label("L_noex")
    a.stamp()
    a(f"""
    s_cmp_lg_u32 s{sW}, 0
    s_cbranch_scc1 L_rdy_done
    v_mov_b32 v4, 0
    s_mov_b64 exec, 1
    s_mov_b32 s{T0}, 0
    """)
    a.label("L_rdy_loop")
    a(f"""
    buffer_load_dword v5, v4, {R(R_DBG)}, 0 offen sc1
    s_add_u32 s{T0}, s{T0}, 1
    s_cmp_ge_u32 s{T0}, 0x40000
    s_cbranch_scc1 L_rdy_exit
    s_waitcnt vmcnt(0)
    v_cmp_eq_u32 vcc, 0, v5
    s_cbranch_vccnz L_rdy_loop
    """)
    a.label("L_rdy_exit")
    a("s_mov_b64 exec, -1")
    a.label("L_rdy_done")
    a(f"""
    v_lshrrev_b32 v4, 2, v{vI}
    v_and_b32 v5, 3, v{vI}
    v_xor_b32 v5, v5, v{vG}
    v_lshlrev_b32 v5, 4, v5
    v_lshl_add_u32 v5, v{vI}, 10, v5
    s_mul_i32 s{T0}, s{sA}, {32768+16384}
    s_add_u32 s{T0}, s{T0}, {L_TR}
    s_lshl_b32 s{T1}, s{sA}, 15
    s_sub_u32 s{T1}, 16384, s{T1}
    v_add_u32 v5, s{T0}, v5
    """)
    for k3 in range(4):
        a(f"""
        v_xor_b32 v6, {k3}, v4
        v_lshl_add_u32 v{8+k3}, v6, 6, v5
        v_add_u32 v{16+k3}, s{T1}, v{8+k3}
        """)
    a(f"""
    s_lshl_b32 s{T0}, s{sA}, 12
    s_add_u32 s{T0}, s{T0}, {L_XT}
    v_lshl_add_u32 v4, v{vI}, 8, s{T0}
    s_lshl_b32 s{T1}, s{sB}, 5
    v_lshl_add_u32 v5, v{vG}, 3, s{T1}
    v_lshlrev_b32 v7, 4, v{vI}
    v_xor_b32 v6, v5, v7
    v_add_u32 v20, v4, v6
    v_sub_u32 v6, {64+56}, v5
    v_xor_b32 v6, v6, v7
    v_add_u32 v21, v4, v6
    v_sub_u32 v6, {64+64}, v5
    v_cmp_eq_u32 s[{sM}:{sM+1}], 0, v{vJ2}
    v_mov_b32 v23, {9*16}
    s_nop 0
    v_cndmask_b32 v6, v6, v23, s[{sM}:{sM+1}]
    v_xor_b32 v6, v6, v7
    v_add_u32 v22, v4, v6
    """)
    a.vwait_all()
    a.stamp()
    arrive(a, "L_ar1", vC1a, 4, "0xf", F_AR1, vF, vONE)
    a(f"s_lshl_b32 s{T0}, s{sW}, 2")
    a(f"v_add_u32 v{vFw}, s{T0}, v{vF}")
    a.stamp()
    waitf(a, "L_wtrig", F_TRIG, vF, 4, 256)
    a.stamp()
    XR = 36
    for mir in range(2):
        a(f"ds_read_b64 {vr(XR+6*mir,2)}, v20 offset:{mir*8192}")
        a(f"ds_read_b64 {vr(XR+6*mir+2,2)}, v21 offset:{mir*8192}")
        a(f"ds_read_u16 v{XR+6*mir+4}, v22 offset:{mir*8192}")
    TF = 128
    tf = lambda tl, ks: TF + (tl * 16 + ks) * 4
    for ks in range(16):
        for tl in range(2):
            base = (8 if tl == 0 else 16) + (ks & 3)
            a(f"ds_read_b128 {vr(tf(tl,ks),4)}, v{base} offset:{(ks>>2)*256}")
    XU = 48
    a("s_waitcnt lgkmcnt(15)")
    for mir in range(2):
        b, x = XU + mir * 8, XR + 6 * mir
        a(f"""
        v_lshlrev_b32 v{b}, 16, v{x}
        v_and_b32 v{b+1}, s{sHI}, v{x}
        v_lshlrev_b32 v{b+2}, 16, v{x+1}
        v_and_b32 v{b+3}, s{sHI}, v{x+1}
        v_lshlrev_b32 v{b+4}, 16, v{x+4}
        v_and_b32 v{b+5}, s{sHI}, v{x+3}
        v_lshlrev_b32 v{b+6}, 16, v{x+3}
        v_and_b32 v{b+7}, s{sHI}, v{x+2}
        """)
    a(f"""
    v_lshlrev_b32 v{CF0}, 16, v{CF0}
    v_lshlrev_b32 v{CF1}, 16, v{CF1}
    s_lshl_b32 s{T0}, s{sA}, 1
    s_add_u32 s{T0}, s{T0}, s{sP}
    s_lshl_b32 s{T0}, s{T0}, 18
    s_lshl_b32 s{T1}, s{sE}, 1
    s_add_u32 s{T1}, s{T1}, s{sB}
    s_lshl_b32 s{T2}, s{T1}, 14
    s_add_u32 s{T0}, s{T0}, s{T2}
    v_add_u32 v8, s{T0}, v{vL16}
    v_lshlrev_b32 v9, 1, v{vJ2}
    s_lshl_b32 s{T0}, s{sP}, 10
    v_add_u32 v9, s{T0}, v9
    v_mov_b32 v32, 0xbf803f80
    v_mov_b32 v33, 0xbf803f80
    v_mov_b32 v34, 0xbf803f80
    v_mov_b32 v35, 0xbf803f80
    s_lshl_b32 s{T0}, s{sPT}, 16
    s_lshl_b32 s{T2}, s{sA}, 14
    s_add_u32 s{T0}, s{T0}, s{T2}
    s_lshl_b32 s{T2}, s{T1}, 10
    s_add_u32 s{T0}, s{T0}, s{T2}
    v_add_u32 v10, s{T0}, v{vL16}
    s_lshl_b32 s{T0}, s{sPT}, 13
    s_lshl_b32 s{T2}, s{sA}, 11
    s_add_u32 s{T0}, s{T0}, s{T2}
    s_lshl_b32 s{T1}, s{T1}, 7
    s_add_u32 s{T0}, s{T0}, s{T1}
    v_lshrrev_b32 v11, 1, v{vG}
    v_and_b32 v12, 1, v{vG}
    v_lshlrev_b32 v11, 12, v11
    v_lshl_add_u32 v11, v12, 2, v11
    v_lshl_add_u32 v11, v{vI}, 3, v11
    v_add_u32 v11, s{T0}, v11
    s_lshl_b32 s{T0}, s{sW}, 10
    s_add_u32 s{T0}, s{T0}, {L_BX}
    v_add_u32 v12, s{T0}, v{vL16}
    s_xor_b32 s{T0}, s{T0}, 0x800
    v_add_u32 v13, s{T0}, v{vL16}
    s_cmp_eq_u32 s{sP}, 0
    s_cselect_b32 s{sC}, 1.0, -1.0
    s_cmp_eq_u32 s{sA}, 0
    s_cselect_b32 s{sD}, 1.0, -1.0
    s_mov_b32 s{sG}, 0x8000
    s_waitcnt lgkmcnt(0)
    """)
    sig(a, F_TC, vF, vONE)
    a(f"v_xor_b32 v16, 8, v{vFw}")
    a.stamp()
    poll(a, "L_p1", vC1p, 4, "0xf", 16, F_GO1, vF, vONE)
    a.stamp()
    ZF, Z5 = 64, 20
    for ks in range(16):
        so = "0" if ks < 4 else f"s{sK4 - 1 + ks//4}"
        a.vmem(f"Z{ks}", f"buffer_load_dwordx4 {vr(ZF+4*ks,4)}, v8, {R(R_ZA)}, {so} offen offset:{(ks%4)*1024} sc1")
    a.vmem("Z5", f"buffer_load_dwordx4 {vr(Z5,4)}, v9, {R(R_Z5)}, 0 offen sc1")
    BA0, BA1, BAX = 36, 40, 44
    for ks in range(16):
        a.vwait(f"Z{ks}")
        c0 = "0" if ks == 0 else None
        mfma(a, vr(BA1, 4), vr(ZF + 4 * ks, 4), vr(tf(1, ks), 4), c0)
        mfma(a, vr(BA0, 4), vr(ZF + 4 * ks, 4), vr(tf(0, ks), 4), c0)
        mfma(a, vr(BAX, 4), vr(ZF + 4 * ks, 4), "v[32:35]", c0)
    sig(a, F_PAUSE, vF, vONE)
    waitf(a, "L_wtc", F_TC, vF, 4, 256)
    a(f"ds_write_b128 v12, {vr(BA1,4)}")
    a("s_waitcnt lgkmcnt(0)")
    sig(a, F_X, vFw, vONE)
    a.vwait("Z5")
    EX0, EX1, OT, Y = 64, 68, 72, 76
    for r in range(4):
        a(f"v_mul_f32 v{EX0+r}, v{CF0}, v{Z5+r}")
        a(f"v_mul_f32 v{EX1+r}, v{CF1}, v{Z5+r}")
    a(f"""
    v_cmp_eq_u32 vcc, 0, v{vT}
    """)
    waitf(a, "L_wx", F_X, 16, 4, 64)
    a(f"""
    ds_read_b128 {vr(OT,4)}, v13
    s_waitcnt lgkmcnt(0)
    """)
    a.stamp()
    for r in range(4):
        a(f"v_sub_f32 v{Y+r}, v{BA0+r}, v{OT+r}")
        a(f"v_add_f32 v{Y+4+r}, v{BA0+r}, v{OT+r}")
    for r in range(4):
        a(f"v_mul_f32 v{Y+r}, s{sD}, v{Y+r}")
        a(f"v_cndmask_b32 v{Y+8+r}, v{Y+4+r}, v{BAX+r}, vcc")
    for r in range(4):
        a(f"v_cndmask_b32 v{Y+12+r}, v{Y+r}, v{BAX+r}, vcc")
    for r in range(4):
        a(f"v_fmac_f32 v{Y+r}, s{sC}, v{EX0+r}")
        a(f"v_add_f32 v{Y+4+r}, v{Y+4+r}, v{EX0+r}")
        a(f"v_add_f32 v{Y+8+r}, v{Y+8+r}, v{EX1+r}")
        a(f"v_fmac_f32 v{Y+12+r}, s{sC}, v{EX1+r}")
    a(f"v_cndmask_b32 v{Y}, v{Y}, 0, s[{sM}:{sM+1}]")
    a(f"v_cndmask_b32 v{Y+8}, v{Y+8}, 0, s[{sM}:{sM+1}]")
    for r in range(0, 16, 2):
        a(f"v_pk_add_f32 {vr(Y+r,2)}, {vr(Y+r,2)}, {vr(XU+r,2)}")
    HP, S = 92, 100
    for r in range(8):
        a(f"v_cvt_pk_bf16_f32 v{HP+r}, v{Y+2*r}, v{Y+2*r+1}")
    for r in range(4):
        a(f"v_mov_b32 v{S+r}, 0")
    a.vmem("SH", f"buffer_store_dwordx4 {vr(HP,4)}, v10, {R(R_H)}, 0 offen sc1")
    a.vmem("SH", f"buffer_store_dwordx4 {vr(HP+4,4)}, v10, {R(R_H)}, s{sG} offen sc1")
    for mir in range(2):
        for d in range(4):
            a(f"v_dot2c_f32_bf16 v{S+2*mir}, s{sONES}, v{HP+4*mir+d}")
            a(f"v_dot2c_f32_bf16 v{S+2*mir+1}, v{HP+4*mir+d}, v{HP+4*mir+d}")
    a.nop(3)
    treduce4(a, S, S + 1, S + 2, S + 3)
    a.vmem("SH", f"buffer_store_dword v{S}, v11, {R(R_ST)}, 0 offen sc1")
    a.stamp()
    a(f"""
    s_and_b32 s{sA}, s{sC16}, 1
    v_add_u32 v24, {8*7168}, v{vL16}
    s_lshl_b32 s{T0}, s{sRB}, 17
    s_lshl_b32 s{T1}, s{sW}, 15
    s_add_u32 s{T0}, s{T0}, s{T1}
    v_add_u32 v10, s{T0}, v{vL16}
    v_add_u32 v11, 0x4000, v10
    s_lshl_b32 s{T0}, s{sRB}, 14
    s_lshl_b32 s{T1}, s{sW}, 12
    s_add_u32 s{T0}, s{T0}, s{T1}
    v_lshl_add_u32 v12, v{vI}, 3, s{T0}
    v_lshl_add_u32 v12, v{vG}, 9, v12
    v_lshlrev_b32 v13, 4, v{vG}
    v_add_u32 v13, {L_CS}, v13
    """)
    a.vwait_all()
    a.stamp()
    arrive(a, "L_ar2", vC2, 4, "1", F_AR2, vF, vONE)
    a.stamp()
    waitf(a, "L_ww1", F_W1, vF, 4, 256)
    a.stamp()
    poll(a, "L_p2", vC2, 4, "1", 16, F_GO2, vF, vONE)
    a.stamp()
    AC1, AC2, WF, HF = 36, 68, 92, 124
    cacc = lambda u, mt: (AC1 + (u * 2 + mt) * 4) if u < 4 else (AC2 + ((u - 4) * 2 + mt) * 4)
    wf = lambda b, u: WF + (b * 4 + (u % 4)) * 4
    hf = lambda mt, ks: HF + (ks * 2 + mt) * 4
    STT = AC2
    MEAN, RSTD = 16, 20

    def wread(ks, u):
        a(f"ds_read_b128 {vr(wf(ks&1,u),4)}, v{vL16 if ks < 8 else 24} offset:{(ks%8)*7168+u*1024}")

    def hload(ks, mts=(0, 1)):
        if mts[0] == 0:
            a(f"s_add_u32 s{sCUR}, s{sRC}, {ks}\ns_and_b32 s{sCUR}, s{sCUR}, 15\ns_lshl_b32 s{sCUR}, s{sCUR}, 10")
        for mt in mts:
            a.vmem(f"H{ks}", f"buffer_load_dwordx4 {vr(hf(mt,ks),4)}, v{10+mt}, {R(R_H)}, s{sCUR} offen sc1")

    HD = cfg["hdepth"]
    for ks in range(HD):
        hload(ks)
    for u in range(4):
        wread(0, u)
    a(f"""
    s_lshl_b32 s{T0}, s{sRB}, 3
    s_lshl_b32 s{T1}, s{sW}, 1
    s_add_u32 s{T0}, s{T0}, s{T1}
    s_mul_i32 s{T0}, s{T0}, 57344
    s_mul_i32 s{T1}, s{sC16}, 7
    s_add_u32 s{T2}, s{T1}, s{sA}
    s_lshl_b32 s{T2}, s{T2}, 9
    s_add_u32 s{T2}, s{T2}, s{T0}
    v_add_u32 v8, s{T2}, v{vL16}
    s_cmp_eq_u32 s{sA}, 0
    s_cselect_b32 s{T2}, 6, 0
    s_add_u32 s{T1}, s{T1}, s{T2}
    s_lshr_b32 s{T2}, s{T1}, 1
    s_lshl_b32 s{T2}, s{T2}, 10
    s_and_b32 s{T1}, s{T1}, 1
    s_lshl_b32 s{T1}, s{T1}, 3
    s_add_u32 s{T2}, s{T2}, s{T1}
    s_add_u32 s{T2}, s{T2}, s{T0}
    v_add_u32 v9, s{T2}, v{vL16}
    s_mov_b32 s{sG}, 57344
    s_mul_i32 s{sF}, s{sW}, {DSTR}
    v_add_u32 v{vC2}, {16*256}, v{vC2}
    """)

    def cpass(us, first):
        n = len(us)
        for ks in range(16):
            nxt = ks + 1
            if first:
                a.vwait(f"H{ks}")
                if cfg.get("fine") and ks in (0, 8):
                    a.stamp()
            for i, u in enumerate(us):
                if nxt < 16:
                    wread(nxt, u)
                    a(f"s_waitcnt lgkmcnt({n})")
                else:
                    a(f"s_waitcnt lgkmcnt({n-1-i})")
                for mt in range(2):
                    mfma(a, vr(cacc(u, mt), 4), vr(wf(ks & 1, u), 4), vr(hf(mt, ks), 4), "0" if ks == 0 else None)
                if first and i in (0, 2) and ks + HD < 16:
                    hload(ks + HD, (0,) if i == 0 else (1,))
                if first and i == 3 and ks + HD == 16:
                    for mt in range(2):
                        for pp in range(4):
                            a.vmem("ST", f"buffer_load_dwordx2 {vr(STT+mt*8+pp*2,2)}, v12, {R(R_ST)}, 0 offen offset:{mt*2048+pp*128} sc1")
            if not first and ks == cfg["ar3a"]:
                a.vwait("S1a")
                arrive(a, "L_ar3", vC2, 4, "1", F_AR3, vF, vONE)
                a(f"v_add_u32 v{vC2}, {16*256}, v{vC2}")

    def cepi(groups, tmp, outs, tag):
        tiles = [u for g in groups for u in g[1]]
        for i, u in enumerate(tiles):
            for v in range(4):
                a(f"ds_read_b128 {vr(tmp+(i*4+v)*4,4)}, v13 offset:{v*448+u*64}")
        return tiles

    cpass((0, 1, 2, 3), True)
    sig(a, F_PAUSE, vF, vONE)
    a.vwait("ST")
    for mt in range(2):
        b = STT + mt * 8
        a(f"""
        v_pk_add_f32 {vr(b,2)}, {vr(b,2)}, {vr(b+2,2)}
        v_pk_add_f32 {vr(b+4,2)}, {vr(b+4,2)}, {vr(b+6,2)}
        v_pk_add_f32 {vr(b,2)}, {vr(b,2)}, {vr(b+4,2)}
        """)
    for i in range(2):
        for v in range(4):
            a(f"ds_read_b128 {vr(WF+(i*4+v)*4,4)}, v13 offset:{v*448+i*64}")
    allreduce_g(a, [STT, STT + 1, STT + 8, STT + 9], [STT + 2, STT + 3, STT + 10, STT + 11])
    for mt in range(2):
        b = STT + mt * 8
        a(f"""
        v_mul_f32 v{MEAN+2*mt}, 0xbb000000, v{b}
        v_mul_f32 v{b+1}, 0x3b000000, v{b+1}
        v_fma_f32 v{b+1}, -v{MEAN+2*mt}, v{MEAN+2*mt}, v{b+1}
        v_max_f32 v{b+1}, 0, v{b+1}
        v_add_f32 v{b+1}, 0x3727c5ac, v{b+1}
        v_rsq_f32 v{RSTD+2*mt}, v{b+1}
        v_mov_b32 v{MEAN+2*mt+1}, v{MEAN+2*mt}
        """)
    a(f"v_mov_b32 v{RSTD+1}, v{RSTD}")
    a(f"v_mov_b32 v{RSTD+3}, v{RSTD+2}")
    a.stamp()

    def csum_reduce(t):
        for r in (0, 2):
            a(f"v_pk_add_f32 {vr(t+r,2)}, {vr(t+r,2)}, {vr(t+4+r,2)}")
            a(f"v_pk_add_f32 {vr(t+8+r,2)}, {vr(t+8+r,2)}, {vr(t+12+r,2)}")
            a(f"v_pk_add_f32 {vr(t+r,2)}, {vr(t+r,2)}, {vr(t+8+r,2)}")

    def finish(v, us, cs, outs, tag):
        for mt in range(2):
            o = outs[mt]
            for n, u in enumerate(us):
                d, c = cacc(u, mt), cs[n]
                a(f"v_pk_fma_f32 {vr(d,2)}, {vr(MEAN+2*mt,2)}, {vr(c,2)}, {vr(d,2)}")
                a(f"v_pk_fma_f32 {vr(d+2,2)}, {vr(MEAN+2*mt,2)}, {vr(c+2,2)}, {vr(d+2,2)}")
                a(f"v_pk_mul_f32 {vr(d,2)}, {vr(d,2)}, {vr(RSTD+2*mt,2)}")
                a(f"v_pk_mul_f32 {vr(d+2,2)}, {vr(d+2,2)}, {vr(RSTD+2*mt,2)}")
                a(f"v_cvt_pk_bf16_f32 v{o+2*n}, v{d}, v{d+1}")
                a(f"v_cvt_pk_bf16_f32 v{o+2*n+1}, v{d+2}, v{d+3}")
                a(f"v_pk_max_i16 v{o+2*n}, v{o+2*n}, 0")
                a(f"v_pk_max_i16 v{o+2*n+1}, v{o+2*n+1}, 0")
            so = "0" if mt == 0 else f"s{sG}"
            if v < 3:
                a.vmem(tag, f"buffer_store_dwordx4 {vr(o,4)}, v8, {R(R_H1)}, {so} offen offset:{v*1024} sc1")
            else:
                a.vmem(tag, f"buffer_store_dwordx2 {vr(o,2)}, v9, {R(R_H1)}, {so} offen sc1")

    a("s_waitcnt lgkmcnt(0)")
    csum_reduce(WF)
    csum_reduce(WF + 16)
    a(f"v_mov_b32 v{AC2}, v{WF}\nv_mov_b32 v{AC2+1}, v{WF+1}\nv_mov_b32 v{AC2+2}, v{WF+2}\nv_mov_b32 v{AC2+3}, v{WF+3}")
    a(f"v_mov_b32 v{AC2+4}, v{WF+16}\nv_mov_b32 v{AC2+5}, v{WF+17}\nv_mov_b32 v{AC2+6}, v{WF+18}\nv_mov_b32 v{AC2+7}, v{WF+19}")
    for i in range(2):
        for v in range(4):
            a(f"ds_read_b128 {vr(WF+(i*4+v)*4,4)}, v13 offset:{v*448+(2+i)*64}")
    finish(0, (0, 1), (AC2, AC2 + 4), (AC2 + 8, AC2 + 12), "S1a")
    a("s_waitcnt lgkmcnt(0)")
    csum_reduce(WF)
    csum_reduce(WF + 16)
    finish(1, (2, 3), (WF, WF + 16), (AC1, AC1 + 4), "S1a")
    a.stamp()
    for u in (4, 5, 6):
        wread(0, u)
    cpass((4, 5, 6), False)
    sig(a, F_PAUSE, vF, vONE)
    for i in range(3):
        for v in range(4):
            a(f"ds_read_b128 {vr(HF+(i*4+v)*4,4)}, v13 offset:{v*448+(4+i)*64}")
    a("s_waitcnt lgkmcnt(0)")
    sig(a, F_CD, vF, vONE)
    a.stamp()
    for i in range(3):
        csum_reduce(HF + 16 * i)
    finish(2, (4, 5), (HF, HF + 16), (HF + 48, HF + 52), "S1b")
    finish(3, (6,), (HF + 32,), (HF + 56, HF + 60), "S1b")
    a.stamp()
    for lm in range(4):
        a(f"""
        s_xor_b32 s{T0}, s{sW}, {lm}
        s_lshl_b32 s{T1}, s{sPT}, 2
        s_add_u32 s{T0}, s{T0}, s{T1}
        s_mul_i32 s{T0}, s{T0}, 57344
        s_mul_i32 s{T1}, s{sW}, {14*1024}
        s_add_u32 s{T0}, s{T0}, s{T1}
        v_add_u32 v{8+lm}, s{T0}, v{vL16}
        """)
    a(f"""
    v_lshrrev_b32 v4, 2, v{vL}
    v_bfe_u32 v5, v{vL}, 3, 2
    v_and_b32 v6, 3, v{vL}
    v_lshl_add_u32 v4, v4, 7, s{sF}
    v_lshl_add_u32 v4, v6, 3, v4
    """)
    for u in range(4):
        a(f"v_xor_b32 v6, {u}, v5")
        a(f"v_lshl_add_u32 v{32+u}, v6, 5, v4")
    a(f"""
    s_lshl_b32 s{T0}, s{sPT}, 2
    s_add_u32 s{T0}, s{T0}, s{sW}
    s_lshl_b32 s{T0}, s{T0}, 14
    v_lshl_add_u32 v16, v{vI}, 4, s{T0}
    s_cmp_ge_u32 s{sE}, 4
    s_cbranch_scc1 L_res_mirror
    s_lshl_b32 s{T0}, s{sE}, 12
    v_lshl_add_u32 v17, v{vG}, 8, v16
    v_add_u32 v17, s{T0}, v17
    v_mov_b32 v18, {OOB}
    v_mov_b32 v19, {OOB}
    s_branch L_res_done
    """)
    a.label("L_res_mirror")
    a(f"""
    s_lshl_b32 s{T0}, s{sE}, 2
    s_sub_u32 s{T0}, 28, s{T0}
    s_lshl_b32 s{T0}, s{T0}, 10
    s_add_u32 s{T0}, s{T0}, 8
    v_sub_u32 v18, 3, v{vG}
    v_lshl_add_u32 v17, v18, 8, v16
    v_add_u32 v17, s{T0}, v17
    v_add_u32 v18, 256, v17
    v_add_u32 v19, {256+3072}, v17
    v_add_u32 v22, 8, v16
    v_or_b32 v23, s{sE}, v{vL16}
    v_and_b32 v23, 0x307, v23
    v_cmp_eq_u32 vcc, 4, v23
    s_nop 1
    v_cndmask_b32 v19, v19, v22, vcc
    """)
    a.label("L_res_done")
    RES, RE1 = 36, 44
    for up in range(4):
        a.vmem("RES", f"buffer_load_dwordx2 {vr(RES+2*up,2)}, v17, {R(R_H)}, 0 offen offset:{up*1024} sc1")
    for up in range(3):
        a.vmem("RES", f"buffer_load_ushort v{RE1+up}, v18, {R(R_H)}, 0 offen offset:{up*1024} sc1")
    a.vmem("RES", f"buffer_load_ushort v{RE1+3}, v19, {R(R_H)}, 0 offen sc1")
    a(f"""
    s_lshl_b32 s{T0}, s{sT}, 6
    s_add_u32 s{T0}, s{T0}, s{sP}
    s_and_b32 s{T1}, s{sW}, 1
    s_lshl_b32 s{T1}, s{T1}, 5
    s_add_u32 s{T0}, s{T0}, s{T1}
    v_lshl_add_u32 v20, v{vI}, 1, s{T0}
    v_cmp_eq_u32 vcc, 0, v20
    v_sub_u32 v21, 0x800, v20
    v_mov_b32 v22, 0x400
    s_cmp_ge_u32 s{sW}, 2
    s_cselect_b64 s[{sM}:{sM+1}], -1, 0
    v_cndmask_b32 v21, v21, v22, vcc
    v_cndmask_b32 v20, v20, v21, s[{sM}:{sM+1}]
    s_lshl_b32 s{T0}, s{sE}, 7
    v_lshl_add_u32 v21, v{vG}, 5, s{T0}
    v_lshl_add_u32 v20, v20, 10, v21
    """)
    a.vwait("RES")
    DACC, DWF, H1F = 48, 112, 144
    NR = cfg["h1ring"]
    dacc = lambda u, lm: DACC + (u * 4 + lm) * 4
    dwf = lambda b, u: DWF + (b * 4 + u) * 4
    h1f = lambda lm, ks: H1F + ((ks % NR) * 4 + lm) * 4
    a(f"""
    s_cmp_ge_u32 s{sE}, 4
    s_cbranch_scc1 L_unp_mirror
    """)
    for u in range(4):
        s, d = RES + 2 * u, dacc(u, 0)
        a(f"""
        v_lshlrev_b32 v{d}, 16, v{s}
        v_and_b32 v{d+1}, s{sHI}, v{s}
        v_lshlrev_b32 v{d+2}, 16, v{s+1}
        v_and_b32 v{d+3}, s{sHI}, v{s+1}
        """)
    a("s_branch L_unp_done")
    a.label("L_unp_mirror")
    for u in range(4):
        s, d = RES + 2 * (3 - u), dacc(u, 0)
        a(f"""
        v_lshlrev_b32 v{d}, 16, v{RE1+3-u}
        v_and_b32 v{d+1}, s{sHI}, v{s+1}
        v_lshlrev_b32 v{d+2}, 16, v{s+1}
        v_and_b32 v{d+3}, s{sHI}, v{s}
        """)
    a.label("L_unp_done")
    a.stamp()
    arrive(a, "L_ar4", vC2, 4, "1", F_AR4, vF, vONE)
    a.stamp()
    waitf(a, "L_wd1", F_D1, vFw, 4, 64)
    a.stamp()
    waitf(a, "L_wg3", F_GO3, vF, 4, 64)
    a.stamp()

    def h1load(ks, lms=(0, 1, 2, 3)):
        if lms[0] == 0:
            if ks == 8:
                waitf(a, "L_wg4", F_GO4, vF, 4, 64)
            pk = DPERM[ks]
            a(f"s_{'add' if pk < 7 else 'sub'}_u32 s{sCUR}, {pk}, s{sRD}\ns_lshl_b32 s{sCUR}, s{sCUR}, 10")
        for lm in lms:
            a.vmem(f"G{ks}", f"buffer_load_dwordx4 {vr(h1f(lm,ks),4)}, v{8+lm}, {R(R_H1)}, s{sCUR} offen sc1")

    def dtr(ks, u):
        off = (ks % DSL) * 4096
        a(f"ds_read_b64_tr_b16 {vr(dwf(ks&1,u),2)}, v{32+u} offset:{off}")
        a(f"ds_read_b64_tr_b16 {vr(dwf(ks&1,u)+2,2)}, v{32+u} offset:{off+2048}")

    DD = cfg["ddepth"]
    assert DD < NR
    for ks in range(DD):
        h1load(ks)
    for u in range(4):
        dtr(0, u)
    lag = [0]
    for ks in range(14):
        nxt = ks + 1
        if ks != 14 - DSL:
            lag[0] = 0
        if ks == DSL - 1:
            waitf(a, "L_wd2", F_D2, vFw, 4, 64)
        a.vwait(f"G{ks}")
        if cfg.get("fine") and ks in (0, 1, 3, 4, 6, 9, 12):
            a.stamp()
        for u in range(4):
            if nxt < 14:
                dtr(nxt, u)
                a(f"s_waitcnt lgkmcnt({8 + lag[0]})")
            else:
                a(f"s_waitcnt lgkmcnt({6-2*u})")
            for lm in (1, 2, 3, 0):
                mfma(a, vr(dacc(u, lm), 4), vr(dwf(ks & 1, u), 4), vr(h1f(lm, ks), 4), "0" if (ks == 0 and lm) else None)
            if ks + DD < 14:
                h1load(ks + DD, (u,))
        if ks == 13 - DSL:
            sig(a, F_S, vFw, vONE)
            lag[0] = 1
    a.stamp()
    a(f"v_add_u32 v16, s{sF}, v{vL16}")
    for lm in range(1, 4):
        a(f"""
        s_xor_b32 s{T0}, s{sW}, {lm}
        s_mul_i32 s{T0}, s{T0}, {DSTR}
        s_add_u32 s{T0}, s{T0}, {(lm-1)*4096}
        v_add_u32 v{16+lm}, s{T0}, v{vL16}
        """)
    for lm in range(1, 4):
        for u in range(4):
            a(f"ds_write_b128 v16, {vr(dacc(u,lm),4)} offset:{(lm-1)*4096+u*1024}")
    a("""
    s_waitcnt lgkmcnt(0)
    s_barrier
    """)
    RD = 144
    for lm in range(1, 4):
        for u in range(4):
            a(f"ds_read_b128 {vr(RD+((lm-1)*4+u)*4,4)}, v{16+lm} offset:{u*1024}")
    for lm in range(1, 4):
        a(f"s_waitcnt lgkmcnt({8-4*(lm-1)})")
        for u in range(4):
            for r in (0, 2):
                a(f"v_pk_add_f32 {vr(dacc(u,0)+r,2)}, {vr(dacc(u,0)+r,2)}, {vr(RD+((lm-1)*4+u)*4+r,2)}")
    O = 112
    for u in range(4):
        a(f"v_cvt_pk_bf16_f32 v{O+2*u}, v{dacc(u,0)}, v{dacc(u,0)+1}")
        a(f"v_cvt_pk_bf16_f32 v{O+2*u+1}, v{dacc(u,0)+2}, v{dacc(u,0)+3}")
    a.nop(2)
    for d in range(2):
        a(f"v_permlane32_swap_b32 v{O+d}, v{O+4+d}")
        a(f"v_permlane32_swap_b32 v{O+2+d}, v{O+6+d}")
    a.nop(2)
    for d in range(2):
        a(f"v_permlane16_swap_b32 v{O+d}, v{O+2+d}")
        a(f"v_permlane16_swap_b32 v{O+4+d}, v{O+6+d}")
    a.nop(2)
    a(f"buffer_store_dwordx4 {vr(O,4)}, v20, {R(R_OUT)}, 0 offen")
    a(f"buffer_store_dwordx4 {vr(O+4,4)}, v20, {R(R_OUT)}, 0 offen offset:16")
    stamp_out(a, 0)
    a("s_branch L_end")


def helper(a, cfg):
    a.label("L_helper")
    a.vm = []
    a.nstamp = 2
    a.sstamp = R_H
    a(f"""
    s_lshl_b32 s{T3}, s2, 2
    s_add_u32 s{T3}, s{T3}, s{sW}
    s_cmp_lg_u32 s{T3}, 3
    s_cbranch_scc1 L_noleader
    v_lshlrev_b32 v4, 8, v{vL}
    v_mov_b32 v5, 0
    s_mov_b32 s{T0}, 16384
    buffer_store_dword v5, v4, {R(R_CNT)}, 0 offen sc1
    buffer_store_dword v5, v4, {R(R_CNT)}, s{T0} offen sc1
    """)
    a.label("L_noleader")
    a(f"""
    s_lshl_b32 s{T0}, s{sE4}, 6
    s_lshl_b32 s{T1}, s{sW}, 4
    s_add_u32 s{T0}, s{T0}, s{T1}
    """)
    for n in range(4):
        a(f"""
        v_add_u32 v4, {4*n}, v{vG}
        v_xor_b32 v5, v4, v{vI}
        v_add_u32 v4, s{T0}, v4
        v_lshlrev_b32 v5, 4, v5
        v_lshl_add_u32 v{8+n}, v4, 10, v5
        """)
        if n == 0:
            a(f"""
            v_cmp_eq_u32 vcc, 0, v4
            v_add_u32 v12, 0x40000, v8
            s_nop 0
            v_cndmask_b32 v12, v8, v12, vcc
            """)
    for typ in range(2):
        for n in range(4):
            a(f"s_add_u32 m0, s{sC}, {L_GA + typ*4096 + n*1024}")
            a("s_nop 0")
            v = 12 if (typ == 0 and n == 0) else 8 + n
            a.vmem("A", f"buffer_load_dwordx4 v{v}, {R(R_DI if typ else R_DR)}, 0 offen lds")
    a(f"""
    s_cmp_lg_u32 s{T3}, 3
    s_cbranch_scc1 L_noleader2
    s_waitcnt vmcnt(8)
    v_mov_b32 v4, 1
    v_mov_b32 v5, 0
    s_mov_b64 exec, 1
    buffer_store_dword v4, v5, {R(R_DBG)}, 0 offen sc1
    s_mov_b64 exec, -1
    """)
    a.label("L_noleader2")
    a(f"""
    s_lshl_b32 s{T0}, s{sT}, 6
    s_add_u32 s{T0}, s{T0}, s{sP}
    s_and_b32 s{T1}, s{sW}, 1
    s_lshl_b32 s{T1}, s{T1}, 5
    s_add_u32 s{sA}, s{T0}, s{T1}
    s_lshl_b32 s{sD}, s{sA}, 12
    s_lshl_b32 s{sF}, s{sW}, 14
    s_cmp_ge_u32 s{sW}, 2
    s_cselect_b32 s{R_DR}, s{R_CI}, s{R_CR}
    s_cselect_b32 s{R_DR+1}, s{R_CI+1}, s{R_CR+1}
    s_mov_b32 s{R_DR+2}, {2048*4096}
    """)

    def trig_dma(q):
        a(f"""
        s_add_u32 s{T0}, s{sD}, {q*8192}
        s_add_u32 m0, s{sF}, {L_TR + q*1024}
        v_xor_b32 v4, {q*16}, v{vL16}
        """)
        a.vmem("T", f"buffer_load_dwordx4 v4, {R(R_DR)}, s{T0} offen lds")

    a(f"""
    s_lshl_b32 s{T0}, s{sE}, 6
    s_sub_u32 s{T1}, {960-64}, s{T0}
    s_cmp_ge_u32 s{sW}, 2
    s_cselect_b64 s[{sM}:{sM+1}], -1, 0
    """)
    for n in range(4):
        a(f"""
        v_add_u32 v4, {4*n}, v{vG}
        v_xor_b32 v5, v4, v{vI}
        v_lshl_add_u32 v4, v4, 1, s{sA}
        v_sub_u32 v6, 0x800, v4
        v_cmp_eq_u32 vcc, 0, v4
        v_mov_b32 v7, 0x400
        v_lshlrev_b32 v13, 4, v5
        v_cndmask_b32 v6, v6, v7, vcc
        v_cndmask_b32 v4, v4, v6, s[{sM}:{sM+1}]
        v_add_u32 v6, s{T0}, v13
        v_add_u32 v7, s{T1}, v13
        v_cmp_lt_u32 vcc, 3, v5
        v_mov_b32 v13, 512
        s_nop 0
        v_cndmask_b32 v6, v6, v7, vcc
        v_cmp_lt_u32 vcc, 8, v5
        s_nop 1
        v_cndmask_b32 v6, v6, v13, vcc
        v_lshl_add_u32 v{8+n}, v4, 10, v6
        """)
    a(f"s_lshl_b32 s{sB}, s{sW}, 12")

    def xt_dma(n):
        a(f"s_add_u32 m0, s{sB}, {L_XT + n*1024}")
        a("s_nop 0")
        a.vmem("T", f"buffer_load_dwordx4 v{8+n}, {R(R_X)}, 0 offen lds")

    a(f"""
    v_mul_u32_u24 v4, 0x4925, v{vL}
    v_lshrrev_b32 v4, 18, v4
    v_mul_u32_u24 v5, 14, v4
    v_sub_u32 v5, v{vL}, v5
    s_mul_i32 s{T0}, s{sC16}, 224
    v_lshl_add_u32 v5, v5, 4, s{T0}
    v_mul_u32_u24 v6, 3584, v4
    v_add_u32 v14, v5, v6
    v_sub_u32 v15, {3*3584}, v6
    v_add_u32 v15, v5, v15
    v_sub_u32 v16, {256*3584}, v6
    v_cmp_eq_u32 vcc, 0, v4
    v_add_u32 v16, v5, v16
    s_mul_i32 s{sH}, s{sW}, 7168
    s_add_u32 s{sG}, s{sRC}, s{sW}
    v_cndmask_b32 v16, v16, v5, vcc
    s_and_b32 s{T2}, s{sC16}, 1
    s_lshl_b32 s{T0}, s{T2}, 5
    s_cmp_eq_u32 s{T2}, 0
    s_cselect_b32 s{T1}, 192, 0
    s_add_u32 s{T0}, s{T0}, s{sH}
    s_add_u32 s{T1}, s{T1}, s{sH}
    v_lshrrev_b32 v4, 2, v{vL}
    v_mul_u32_u24 v4, 224, v4
    v_and_b32 v5, 3, v{vL}
    v_lshl_add_u32 v4, v5, 3, v4
    v_add_u32 v19, s{T0}, v4
    v_add_u32 v20, s{T1}, v4
    v_add_u32 v21, s{sH}, v{vL16}
    v_add_u32 v22, {8*7168}, v19
    v_add_u32 v23, {8*7168}, v20
    v_add_u32 v24, {8*7168}, v21
    s_mul_i32 s{T0}, s{sW}, 448
    s_add_u32 s{T0}, s{T0}, {L_CS}
    v_lshl_add_u32 v25, v{vG}, 4, s{T0}
    """)
    RLF, CSV, ONE = 196, 224, 252
    for r in range(4):
        a(f"v_mov_b32 v{ONE+r}, s{sONES}")

    W1S = 132

    def w1_dma(n, q):
        toreg = n >= 2
        dst = (vr(W1S + ((n - 2) * 8 + q) * 4, 4) + ", ") if toreg else ""
        sfx = "" if toreg else " lds"
        if q == 0:
            a(f"""
            s_add_u32 s{T2}, s{sG}, {4*n}
            s_and_b32 s{T2}, s{T2}, 15
            s_mul_i32 s{sCUR}, s{T2}, {16*3584}
            """)
        a(f"s_mov_b64 exec, s[{sEX}:{sEX+1}]")
        if not toreg:
            a(f"s_add_u32 m0, s{sH}, {n*4*7168 + q*896}")
        if q < 4:
            a(f"s_add_u32 s{T0}, s{sCUR}, {4*q*3584}")
            a.vmem(f"W1_{n}", f"buffer_load_dwordx4 {dst}v14, {R(R_W1)}, s{T0} offen{sfx}")
        elif q == 4:
            a(f"""
            s_sub_u32 s{T0}, {509*3584}, s{sCUR}
            s_cmp_eq_u32 s{sCUR}, 0
            s_cselect_b32 s{T0}, {256*3584}, s{T0}
            s_cselect_b64 s[{sM}:{sM+1}], -1, 0
            v_cndmask_b32 v4, v15, v16, s[{sM}:{sM+1}]
            """)
            a.vmem(f"W1_{n}", f"buffer_load_dwordx4 {dst}v4, {R(R_W1)}, s{T0} offen{sfx}")
        else:
            a(f"s_sub_u32 s{T0}, {(509-4*(q-4))*3584}, s{sCUR}")
            a.vmem(f"W1_{n}", f"buffer_load_dwordx4 {dst}v15, {R(R_W1)}, s{T0} offen{sfx}")
        a("s_mov_b64 exec, -1")

    def w1_unstage(n):
        a.vwait(f"W1_{n}")
        a(f"s_mov_b64 exec, s[{sEX}:{sEX+1}]")
        for q in range(8):
            a(f"ds_write_b128 v24, {vr(W1S+((n-2)*8+q)*4,4)} offset:{(n-2)*4*7168+q*896}")
        a("s_mov_b64 exec, -1")
        a("s_waitcnt lgkmcnt(0)")

    first_rl = [True]

    def relayout(n):
        a.vwait(f"W1_{n}")
        hi3 = 3 if n >= 2 else 0
        off0 = (n % 2) * 4 * 7168
        for u in range(7):
            base = (19 if u < 6 else 20) + hi3
            off = off0 + (u * 32 if u < 6 else 0)
            a(f"ds_read_b64_tr_b16 {vr(RLF+4*u,2)}, v{base} offset:{off}")
            a(f"ds_read_b64_tr_b16 {vr(RLF+4*u+2,2)}, v{base} offset:{off+3584}")
        a("s_waitcnt lgkmcnt(0)")
        for u in range(7):
            a(f"ds_write_b128 v{21+hi3}, {vr(RLF+4*u,4)} offset:{off0+u*1024}")
            mfma(a, vr(CSV + 4 * u, 4), vr(RLF + 4 * u, 4), vr(ONE, 4), "0" if first_rl[0] else None)
        first_rl[0] = False
        a("s_waitcnt lgkmcnt(0)")

    a(f"""
    v_bfe_u32 v4, v{vL}, 1, 2
    v_xor_b32 v4, v4, v{vG}
    v_and_b32 v5, 1, v{vL}
    v_lshl_or_b32 v4, v4, 1, v5
    v_lshrrev_b32 v5, 3, v{vL}
    v_lshlrev_b32 v5, 10, v5
    v_lshl_add_u32 v4, v4, 4, v5
    s_lshl_b32 s{T0}, s{sE}, 7
    s_mul_i32 s{T1}, s{sW}, {448*1024}
    s_add_u32 s{T0}, s{T0}, s{T1}
    v_add_u32 v17, s{T0}, v4
    s_mul_i32 s{T0}, s{sW}, {DSTR}
    v_add_u32 v18, s{T0}, v{vL16}
    v_mov_b32 v{hF}, {L_F}
    v_mov_b32 v{hONE}, 1
    s_lshl_b32 s{T0}, s{sW}, 2
    v_add_u32 v{hFw}, s{T0}, v{hF}
    v_lshl_add_u32 v4, v{vL}, 2, v{hF}
    v_mov_b32 v5, 0
    ds_write_b32 v4, v5
    """)
    W2B = 32

    def w2_load(i):
        if i % 4 == 0:
            pk = DPERM[i // 4]
            a(f"s_{'add' if pk < 7 else 'sub'}_u32 s{sA}, {pk}, s{sRD}\ns_lshl_b32 s{sA}, s{sA}, 15")
        a(f"s_add_u32 s{T1}, s{sA}, {(i%4)*8192}")
        a.vmem(f"W2_{i//4}", f"buffer_load_dwordx4 {vr(W2B+4*i,4)}, v17, {R(R_W2)}, s{T1} offen")

    W2SAFE = (RLF - W2B) // 4
    lo = [lambda i=i: w2_load(i) for i in range(56)]
    nlo = [0]

    npz = [0]

    def pause():
        if cfg["pause"]:
            npz[0] += 1
            waitf(a, f"L_hp{npz[0]}", F_PAUSE, hF, 31, 0, cmp="eq")

    def fill(n, limit=56):
        for k in range(n):
            if lo and nlo[0] < limit:
                if k % cfg["pchk"] == 0:
                    pause()
                lo.pop(0)()
                nlo[0] += 1

    def w1_slot(n):
        for qq in range(8):
            if qq % cfg["pchk"] == 0:
                pause()
            w1_dma(n, qq)

    q = cfg["q"]
    a(f"""
    v_lshrrev_b32 v4, 2, v{vI}
    v_and_b32 v5, 3, v{vI}
    v_xor_b32 v5, v5, v{vG}
    v_lshlrev_b32 v5, 4, v5
    v_lshl_add_u32 v5, v{vI}, 10, v5
    s_and_b32 s{T0}, s{sW}, 1
    s_lshl_b32 s{T1}, s{T0}, 14
    v_add_u32 v5, s{T1}, v5
    """)
    for k3 in range(4):
        a(f"v_xor_b32 v6, {k3}, v4")
        a(f"v_lshl_add_u32 v{100+k3}, v6, 6, v5")
    a(f"""
    s_lshl_b32 s{T0}, s{T0}, 6
    s_add_u32 s{T0}, s{T0}, {L_SA}
    v_lshl_add_u32 v104, v{vG}, 4, s{T0}
    v_lshl_add_u32 v105, v{vI}, 2, s{T0}
    v_cmp_eq_u32 s[{R_ST}:{R_ST+1}], v4, v{vG}
    v_and_b32 v106, 3, v{vI}
    """)
    a.stamp()
    for k in range(q[0]):
        trig_dma(k)
    a.vwait("A")
    a("s_waitcnt lgkmcnt(0)")
    a.stamp()
    a("s_barrier")
    a.stamp()
    for ks in range(16):
        a(f"ds_read_b128 {vr(32+4*ks,4)}, v{100+(ks&3)} offset:{L_XA + (ks>>2)*256}")
    a(f"""
    s_cmp_ge_u32 s{sW}, 2
    s_cbranch_scc1 L_h_sq
    """)
    for ks in range(16):
        a(f"s_waitcnt lgkmcnt({min(15, 15-ks)})")
        mfma(a, "v[96:99]", vr(32 + 4 * ks, 4), vr(ONE, 4), "0" if ks == 0 else None)
    a.nop(8)
    a("""
    s_mov_b32 exec_lo, 0x00010001
    s_mov_b32 exec_hi, 0x00010001
    ds_write_b128 v104, v[96:99]
    s_branch L_h_stat_done
    """)
    a.label("L_h_sq")
    for ks in range(16):
        a(f"s_waitcnt lgkmcnt({min(15, 15-ks)})")
        mfma(a, "v[96:99]", vr(32 + 4 * ks, 4), vr(32 + 4 * ks, 4), "0" if ks == 0 else None)
    a(f"""
    v_cmp_eq_u32 vcc, 1, v106
    v_cmp_eq_u32 s[{sM}:{sM+1}], 2, v106
    v_cmp_eq_u32 s[{R_ST+2}:{R_ST+3}], 3, v106
    """)
    a.nop(6)
    a(f"""
    v_cndmask_b32 v96, v96, v97, vcc
    v_cndmask_b32 v96, v96, v98, s[{sM}:{sM+1}]
    v_cndmask_b32 v96, v96, v99, s[{R_ST+2}:{R_ST+3}]
    s_mov_b64 exec, s[{R_ST}:{R_ST+1}]
    ds_write_b32 v105, v96 offset:128
    """)
    a.label("L_h_stat_done")
    a("s_mov_b64 exec, -1")
    for k in range(q[0], q[0] + q[1]):
        trig_dma(k)
    a("s_waitcnt lgkmcnt(0)")
    a.stamp()
    a("s_barrier")
    a.stamp()
    for k in range(q[0] + q[1], 16):
        trig_dma(k)
    for n in range(4):
        xt_dma(n)
    for qq in range(q[2]):
        w1_dma(0, qq)
    a.vwait("T")
    sig(a, F_TRIG, hF, hONE)
    a.stamp()
    if cfg["touch"] & 2:
        touch(a, R_W2, 26)
    for qq in range(q[2], 8):
        if qq % cfg["pchk"] == 0:
            pause()
        w1_dma(0, qq)
    w1_slot(1)
    w1_slot(2)
    w1_slot(3)
    a.stamp()
    W2S1 = (W1S - W2B) // 4
    relayout(0)
    fill(q[3], W2S1)
    relayout(1)
    fill(q[4], W2S1)
    a.stamp()
    waitf(a, "L_htc", F_TC, hF, 31, 256)
    a.stamp()
    w1_unstage(2)
    relayout(2)
    w1_unstage(3)
    relayout(3)
    a.nop(4)
    a("s_mov_b32 exec_lo, 0x00010001")
    a("s_mov_b32 exec_hi, 0x00010001")
    for u in range(7):
        a(f"ds_write_b128 v25, {vr(CSV+4*u,4)} offset:{u*64}")
    a("s_mov_b64 exec, -1")
    a("s_waitcnt lgkmcnt(0)")
    sig(a, F_W1, hF, hONE)
    a.stamp()
    fill(100)
    a.stamp()
    waitf(a, "L_hcd", F_CD, hF, 31, 256)
    a.stamp()

    def dump(ks):
        a.vwait(f"W2_{ks}")
        for p in range(4):
            a(f"ds_write_b128 v18, {vr(W2B+4*(ks*4+p),4)} offset:{(ks%DSL)*4096+p*1024}")

    for ks in range(DSL):
        dump(ks)
    a("s_waitcnt lgkmcnt(0)")
    sig(a, F_D1, hFw, hONE)
    a.stamp()
    a(f"""
    s_cmp_ge_u32 s{sW}, 2
    s_cbranch_scc1 L_hp3_done
    s_lshl_b32 s{T0}, s{sW}, 4
    s_add_u32 s{T0}, s{T0}, s{sRB}
    s_add_u32 s{T0}, s{T0}, 80
    s_lshl_b32 s{T0}, s{T0}, 8
    v_mov_b32 v4, s{T0}
    s_mul_i32 s{T0}, s{sW}, {4*(F_GO4-F_GO3)}
    v_add_u32 v5, s{T0}, v{hF}
    s_mov_b64 exec, 1
    s_mov_b32 s{T0}, 0
    """)
    a.label("L_hp3_loop")
    a(f"""
    buffer_load_dword v31, v4, {R(R_CNT)}, 0 offen sc1
    s_add_u32 s{T0}, s{T0}, 1
    s_cmp_ge_u32 s{T0}, 0x40000
    s_cbranch_scc1 L_hp3_exit
    s_waitcnt vmcnt(0)
    v_cmp_gt_u32 vcc, 16, v31
    s_cbranch_vccnz L_hp3_loop
    """)
    a.label("L_hp3_exit")
    a("s_mov_b64 exec, -1")
    sig(a, F_GO3, 5, hONE)
    a.label("L_hp3_done")
    waitf(a, "L_hs", F_S, hFw, 31, 64)
    for ks in range(DSL, 14):
        dump(ks)
    a("s_waitcnt lgkmcnt(0)")
    sig(a, F_D2, hFw, hONE)
    stamp_out(a, 4)


def main():
    cfg = {"hdepth": 4, "ddepth": 3, "h1ring": 7, "dump1": 8, "rot": 1, "diag": 0, "q": [8, 4, 4, 4, 4], "touch": 3, "pause": 1, "pchk": 4, "ar3a": 6}
    out = f"cdna_kernels/{NAME}.s"
    for arg in sys.argv[1:]:
        if "=" in arg:
            k, v = arg.split("=")
            cfg[k] = [int(x) for x in v.split(",")] if k == "q" else int(v)
        else:
            out = arg
    a = Asm()
    a.diag = cfg["diag"]
    a.vstamp = 27
    a.sstamp = R_ZA
    if a.diag:
        def stamp():
            n = a.nstamp
            a.nstamp += 1
            a(f"s_memtime s[{a.sstamp}:{a.sstamp+1}]")
            a("s_waitcnt lgkmcnt(0)")
            a(f"v_writelane_b32 v{a.vstamp}, s{a.sstamp}, {n}")
        a.stamp = stamp
    kname = NAME + "_kernel"
    a.raw(HEADER.rstrip("\n"))
    a.raw(f"; @launch grid=(256,1,1) block=(512,1,1) lds={LDS_TOTAL}")
    a.raw('.amdgcn_target "amdgcn-amd-amdhsa--gfx950"')
    a.raw(".text")
    a.raw(f".globl {kname}")
    a.raw(".p2align 8")
    a.raw(f".type {kname},@function")
    a.label(kname)
    prologue(a, cfg['rot'])
    compute(a, cfg)
    helper(a, cfg)
    a.label("L_end")
    a("s_endpgm")
    a.raw('.section .rodata,"a"')
    a.raw(".p2align 6")
    a.raw(f""".amdhsa_kernel {kname}
  .amdhsa_next_free_vgpr 256
  .amdhsa_next_free_sgpr 102
  .amdhsa_accum_offset 256
  .amdhsa_group_segment_fixed_size 0
  .amdhsa_kernarg_size 88
  .amdhsa_user_sgpr_count 2
  .amdhsa_user_sgpr_kernarg_segment_ptr 1
  .amdhsa_system_sgpr_workgroup_id_x 1
.end_amdhsa_kernel""")
    open(out, "w").write(a.text())


if __name__ == "__main__":
    main()
```

```python
import sys
from gen2 import (Asm, vr, srd, mfma, treduce4, allreduce_g, transpose4, NAME, ZA_OFF, ZA_SZ, Z512_OFF, Z512_SZ,
                  CNT_OFF, CNT_SZ, STAT_OFF, STAT_SZ, H_OFF, H_SZ, H1_OFF, H1_SZ, STAMP_OFF, OOB, HEADER)

LDS_TOTAL = 163840
CNT_SZ = 128 * 256
DPERM = [0, 1, 4, 5, 7, 8, 11, 12, 2, 3, 6, 9, 10, 13]
L_XA, L_GA, L_SA, L_XT, L_TR, L_F = 0, 32768, 65536, 81664, 98048, 163584
L_BX, L_CS = 147456, 151552
DSL, DSTR = 9, 9 * 4096
F_TRIG, F_TC, F_W1, F_CD, F_PAUSE, F_AR1, F_AR2, F_AR3, F_GO1, F_GO2, F_GO3 = range(11)
F_X, F_D1, F_S, F_D2 = 12, 16, 20, 24
F_AR4, F_GO4 = 28, 29
vF, vONE, vFw = 14, 15, 29
hF, hONE, hFw = 28, 29, 30

sW = 3
sRB, sC16, sSB, sE4, sPT, sE, sP, sT = 4, 5, 6, 7, 8, 9, 10, 11
R_X, R_CR, R_CI, R_DR, R_DI, R_W1, R_W2, R_OUT = 12, 16, 20, 24, 28, 32, 36, 40
R_ZA, R_Z5, R_CNT, R_ST, R_H, R_H1, R_DBG, R_CF = 44, 48, 52, 56, 60, 64, 68, 72
T0, T1, T2, T3 = 76, 77, 78, 79
sK4, sK8, sK12 = 80, 81, 82
sONES, sHI = 83, 84
sA, sB, sC, sD, sF, sG, sH = 85, 86, 87, 88, 89, 90, 91
sEX = 92
sRC, sRD, sCUR = 98, 99, 100
sM = 94
sWS = 96
vL, vG, vI, vL16 = 0, 1, 2, 3


def R(b):
    return f"s[{b}:{b+3}]"


def sig(a, word, vf, vone, per_wave=False):
    a("s_mov_b64 exec, 1")
    a(f"ds_add_u32 v{vf}, v{vone} offset:{4*word}")
    a("s_mov_b64 exec, -1")


def waitf(a, name, word, vf, vtmp, target, cmp="ge"):
    a(f"s_mov_b32 s{T3}, 0")
    a.label(f"{name}_l")
    a(f"""
    ds_read_b32 v{vtmp}, v{vf} offset:{4*word}
    s_add_u32 s{T3}, s{T3}, 1
    s_waitcnt lgkmcnt(0)
    v_readfirstlane_b32 s{T2}, v{vtmp}
    s_cmp_ge_u32 s{T3}, 0x200000
    s_cbranch_scc1 {name}_x
    s_cmp_{'lt' if cmp == 'ge' else 'lg'}_u32 s{T2}, {target // 64}
    s_cbranch_scc1 {name}_l
    """)
    a.label(f"{name}_x")


def poll(a, name, vaddr, vtmp, lanes_mask, target, goword, vf, vone):
    a(f"""
    s_cmp_lg_u32 s{sW}, 0
    s_cbranch_scc1 {name}_others
    s_mov_b64 exec, {lanes_mask}
    s_mov_b32 s{T0}, 0
    """)
    a.label(f"{name}_loop")
    a(f"""
    buffer_load_dword v{vtmp}, v{vaddr}, {R(R_CNT)}, 0 offen sc1
    s_add_u32 s{T0}, s{T0}, 1
    s_cmp_ge_u32 s{T0}, 0x40000
    s_cbranch_scc1 {name}_exit
    s_waitcnt vmcnt(0)
    v_cmp_gt_u32 vcc, {target}, v{vtmp}
    s_cbranch_vccnz {name}_loop
    """)
    a.label(f"{name}_exit")
    a("s_mov_b64 exec, -1")
    sig(a, goword, vf, vone)
    a(f"s_branch {name}_done")
    a.label(f"{name}_others")
    waitf(a, f"{name}_w", goword, vf, vtmp, 64)
    a.label(f"{name}_done")


def arrive(a, name, vaddr, vtmp, lanes_mask, arword, vf, vone):
    a(f"""
    s_mov_b64 exec, 1
    ds_add_rtn_u32 v{vtmp}, v{vf}, v{vone} offset:{4*arword}
    ds_sub_u32 v{vf}, v{vone} offset:{4*F_PAUSE}
    s_mov_b64 exec, -1
    s_waitcnt lgkmcnt(0)
    v_readfirstlane_b32 s{T0}, v{vtmp}
    s_nop 3
    s_cmp_lg_u32 s{T0}, 3
    s_cbranch_scc1 {name}_skip
    s_mov_b64 exec, {lanes_mask}
    buffer_atomic_add v{vone}, v{vaddr}, {R(R_CNT)}, 0 offen sc1
    s_mov_b64 exec, -1
    """)
    a.label(f"{name}_skip")


def touch(a, rsrc, vdst):
    a(f"""
    s_lshr_b32 s{T0}, s2, 3
    s_mul_i32 s{T0}, s{T0}, {448*128}
    s_lshl_b32 s{T1}, s{sW}, 13
    s_add_u32 s{T0}, s{T0}, s{T1}
    s_add_u32 s{T1}, s{T0}, 32768
    v_lshlrev_b32 v4, 7, v{vL}
    """)
    a.vmem("PF", f"buffer_load_dword v{vdst}, v4, {R(rsrc)}, s{T0} offen")
    a.vmem("PF", f"buffer_load_dword v{vdst}, v4, {R(rsrc)}, s{T1} offen")


def stamp_out(a, wave_add):
    if not a.diag:
        return
    a("s_waitcnt vmcnt(0)")
    a.stamp()
    srd(a, R_ZA, sWS, sWS + 1, 1 << 20, STAMP_OFF)
    a(f"""
    s_lshl_b32 s{T0}, s2, 3
    s_add_u32 s{T0}, s{T0}, s{sW}
    s_add_u32 s{T0}, s{T0}, {wave_add}
    s_lshl_b32 s{T0}, s{T0}, 8
    v_lshl_add_u32 v4, v{vL}, 2, s{T0}
    buffer_store_dword v{a.vstamp}, v4, {R(R_ZA)}, 0 offen
    """)


P_X, P_CR, P_CI, P_DR, P_DI, P_W1, P_W2, P_OUT, P_DBG = 44, 46, 48, 50, 52, 56, 58, 60, 62


def prologue(a, ROT):
    a(f"""
    s_cmp_ge_u32 s2, 256
    s_cbranch_scc1 L_end
    s_load_dwordx16 s[44:59], s[0:1], 0
    s_load_dwordx4 s[60:63], s[0:1], 64
    s_load_dwordx2 s[96:97], s[0:1], 80
    v_lshrrev_b32 v4, 6, v0
    v_and_b32 v0, 63, v0
    v_lshrrev_b32 v1, 4, v0
    v_readfirstlane_b32 s79, v4
    v_and_b32 v2, 15, v0
    v_lshlrev_b32 v3, 4, v0
    """)
    if a.diag:
        a(f"v_mov_b32 v{a.vstamp}, 0")
    a.stamp()
    a(f"""
    s_and_b32 s{sW}, s{T3}, 3
    s_and_b32 s{T0}, s2, 7
    s_lshr_b32 s{T1}, s2, 3
    s_lshl_b32 s{sSB}, s{T0}, 3
    s_and_b32 s{T2}, s{T1}, 7
    s_add_u32 s{sSB}, s{sSB}, s{T2}
    s_lshr_b32 s{sE4}, s{T1}, 3
    s_lshl_b32 s{sC}, s{sW}, 13
    s_cmp_ge_u32 s{T3}, 4
    s_cbranch_scc1 L_helper
    """)


def late_setup(a, ROT):
    a(f"""
    s_and_b32 s{T0}, s2, 7
    s_lshr_b32 s{T1}, s2, 3
    s_and_b32 s{T2}, s{T1}, 1
    s_lshl_b32 s{sRB}, s{T0}, 1
    s_add_u32 s{sRB}, s{sRB}, s{T2}
    s_lshr_b32 s{sC16}, s{T1}, 1
    s_and_b32 s{T2}, s{sC16}, 1
    s_lshl_b32 s{sPT}, s{sRB}, 1
    s_add_u32 s{sPT}, s{sPT}, s{T2}
    s_lshr_b32 s{sE}, s{sC16}, 1
    s_lshr_b32 s{sP}, s{sPT}, 4
    s_and_b32 s{sT}, s{sPT}, 15
    s_mov_b32 s{sK4}, 4096
    s_mov_b32 s{sK8}, 8192
    s_mov_b32 s{sK12}, 12288
    s_mov_b32 s{sONES}, 0x3f803f80
    s_mov_b32 s{sHI}, 0xffff0000
    s_mov_b32 s{sEX}, -1
    s_mov_b32 s{sEX+1}, 0x00ffffff
    s_and_b32 s{sRC}, s{sRB}, 14
    s_mul_i32 s{sRC}, s{sRC}, {ROT}
    s_bfe_u32 s{T0}, s{sRB}, 0x10001
    s_mul_i32 s{sRD}, s{T0}, {7*ROT}
    """)
    srd(a, R_DBG, P_DBG, P_DBG + 1, 256)
    a(f"""
    s_cmp_eq_u32 s{sP}, 0
    s_cselect_b32 s{R_CF}, s{P_CR}, s{P_CI}
    s_cselect_b32 s{R_CF+1}, s{P_CR+1}, s{P_CI+1}
    s_mov_b32 s{R_CF+2}, {2048*4096}
    s_mov_b32 s{R_CF+3}, 0x20000
    """)
    srd(a, R_OUT, P_OUT, P_OUT + 1, 2048 * 1024)
    srd(a, R_W2, P_W2, P_W2 + 1, 1792 * 1024)
    srd(a, R_W1, P_W1, P_W1 + 1, 512 * 3584)
    srd(a, R_CI, P_CI, P_CI + 1, 2048 * 4096)
    srd(a, R_CR, P_CR, P_CR + 1, 2048 * 4096)
    srd(a, R_X, P_X, P_X + 1, 2048 * 1024)
    srd(a, R_CNT, sWS, sWS + 1, CNT_SZ, CNT_OFF)


def compute(a, cfg):
    a.sstamp = R_DI
    a(f"""
    s_and_b32 s{T0}, s{sW}, 1
    s_lshl_b32 s{T1}, s{T0}, 2
    s_lshr_b32 s{T2}, s{sW}, 1
    s_add_u32 s{T1}, s{T1}, s{T2}
    s_lshl_b32 s{T2}, s{sSB}, 3
    s_add_u32 s{sA}, s{T1}, s{T2}
    s_lshl_b32 s{sB}, s{T0}, 7
    v_xor_b32 v13, s{sB}, v{vL16}
    s_waitcnt lgkmcnt(0)
    """)
    a.stamp()
    srd(a, R_X, P_X, P_X + 1, 2048 * 1024)
    for q in range(8):
        r = q & 3
        add = 2 * (q >> 2)
        if r == 0:
            a(f"s_add_u32 s{T0}, s{sA}, {add}")
        elif r == 1:
            a(f"s_sub_u32 s{T0}, {2048-add}, s{sA}")
            if add == 0:
                a(f"s_cmp_eq_u32 s{sA}, 0\ns_cselect_b32 s{T0}, 512, s{T0}")
        elif r == 2:
            a(f"s_add_u32 s{T0}, s{sA}, {1024+add}")
        else:
            a(f"s_sub_u32 s{T0}, {1024-add}, s{sA}")
            if add == 0:
                a(f"s_cmp_eq_u32 s{sA}, 0\ns_cselect_b32 s{T0}, 1536, s{T0}")
        a(f"""
        s_lshl_b32 s{T0}, s{T0}, 10
        s_add_u32 m0, s{sC}, {L_XA + q*1024}
        v_xor_b32 v4, {q*16}, v13
        """)
        a.vmem("A", f"buffer_load_dwordx4 v4, {R(R_X)}, s{T0} offen lds")
    late_setup(a, cfg["rot"])
    if cfg["touch"] & 1:
        touch(a, R_W1, 250)
    if cfg["touch"] & 4:
        touch(a, R_W2, 250)
    srd(a, R_ZA, sWS, sWS + 1, ZA_SZ, ZA_OFF)
    srd(a, R_Z5, sWS, sWS + 1, Z512_SZ, Z512_OFF)
    srd(a, R_ST, sWS, sWS + 1, STAT_SZ, STAT_OFF)
    srd(a, R_H, sWS, sWS + 1, H_SZ, H_OFF)
    srd(a, R_H1, sWS, sWS + 1, H1_SZ, H1_OFF)
    a.stamp()
    vT, vJ2 = 26, 28
    vC1a, vC1p, vC2 = 29, 30, 31
    CF0, CF1 = 24, 25
    a(f"""
    s_lshr_b32 s{sA}, s{sW}, 1
    s_and_b32 s{sB}, s{sW}, 1
    s_lshl_b32 s{T0}, s{sT}, 6
    s_add_u32 s{T0}, s{T0}, s{sP}
    s_lshl_b32 s{T1}, s{sA}, 5
    s_add_u32 s{T0}, s{T0}, s{T1}
    v_lshl_add_u32 v{vT}, v{vI}, 1, s{T0}
    v_cmp_eq_u32 vcc, 0, v{vT}
    s_lshl_b32 s{T0}, s{sE}, 6
    s_lshl_b32 s{T1}, s{sB}, 5
    s_add_u32 s{T0}, s{T0}, s{T1}
    v_lshl_add_u32 v{vJ2}, v{vG}, 3, s{T0}
    v_lshlrev_b32 v6, 12, v{vT}
    v_mov_b32 v7, {1024*4096}
    v_cndmask_b32 v7, v6, v7, vcc
    """)
    a.vmem("CF", f"buffer_load_ushort v{CF0}, v6, {R(R_CF)}, 0 offen offset:1024")
    a.vmem("CF", f"buffer_load_ushort v{CF1}, v7, {R(R_CF)}, 0 offen offset:1024")
    a(f"""
    s_lshl_b32 s{T0}, s{sE4}, 2
    s_and_b32 s{T1}, s{sSB}, 3
    s_add_u32 s{T0}, s{T0}, s{T1}
    s_lshl_b32 s{T0}, s{T0}, 10
    v_lshl_add_u32 v{vC1a}, v{vL}, 8, s{T0}
    s_lshr_b32 s{T0}, s{sE}, 1
    s_lshl_b32 s{T0}, s{T0}, 12
    s_and_b32 s{T1}, s{sPT}, 3
    s_lshl_b32 s{T1}, s{T1}, 8
    s_add_u32 s{T0}, s{T0}, s{T1}
    v_lshl_add_u32 v{vC1p}, v{vL}, 10, s{T0}
    s_lshl_b32 s{T0}, s{sRB}, 8
    s_add_u32 s{T0}, s{T0}, {64*256}
    v_mov_b32 v{vC2}, s{T0}
    """)
    a(f"""
    v_mov_b32 v{vF}, {L_F}
    v_mov_b32 v{vONE}, 1
    v_lshrrev_b32 v4, 2, v{vI}
    v_xor_b32 v4, s{sW}, v4
    v_and_b32 v5, 3, v{vI}
    v_xor_b32 v5, v5, v{vG}
    v_lshlrev_b32 v5, 4, v5
    s_add_u32 s{T0}, s{sC}, {L_GA}
    """)
    for kp in range(4):
        a(f"""
        v_xor_b32 v6, {kp}, v4
        v_lshl_add_u32 v6, v6, 6, v5
        v_lshl_add_u32 v{16+kp}, v{vI}, 10, v6
        v_lshl_add_u32 v6, v{vI}, 8, v6
        v_add_u32 v{20+kp}, s{T0}, v6
        """)
    GF, XFB, ACC = 32, 64, 128
    gf = lambda typ, kp: GF + (typ * 4 + kp) * 4
    xf = lambda b, Q, tau: XFB + b * 32 + (Q * 2 + tau) * 4
    acc = lambda Q, tau, typ: ACC + ((Q * 2 + tau) * 2 + typ) * 4
    CSA = 192
    for r in range(4):
        a(f"v_mov_b32 v{216+r}, s{sONES}")
    SIG, C1, S1, CSM = 200, 202, 204, 206
    a(f"""
    v_and_b32 v4, 1, v{vI}
    v_lshlrev_b32 v5, 31, v4
    v_or_b32 v{SIG}, 1.0, v5
    v_and_b32 v5, 2, v{vI}
    v_lshlrev_b32 v5, 30, v5
    v_or_b32 v5, 1.0, v5
    v_cmp_eq_u32 vcc, 0, v4
    v_mov_b32 v{SIG+1}, v{SIG}
    v_and_b32 v6, 3, v{vI}
    v_cndmask_b32 v{C1}, 0, v5, vcc
    v_cndmask_b32 v{S1}, v5, 0, vcc
    v_cmp_eq_u32 vcc, 0, v6
    v_mov_b32 v{C1+1}, v{C1}
    v_mov_b32 v{S1+1}, v{S1}
    v_cndmask_b32 v{CSM}, 0, 4.0, vcc
    """)
    a(f"""
    v_lshlrev_b32 v9, 4, v{vG}
    v_add_u32 v9, {L_SA}, v9
    s_lshl_b32 s{T0}, s{sE4}, 2
    s_add_u32 s{T0}, s{T0}, s{sW}
    s_lshl_b32 s{T0}, s{T0}, 14
    s_lshl_b32 s{T1}, s{sSB}, 8
    s_add_u32 s{T0}, s{T0}, s{T1}
    v_lshl_add_u32 v12, v{vI}, 4, s{T0}
    v_lshl_add_u32 v12, v{vG}, 18, v12
    v_or_b32 v13, s{sSB}, v{vG}
    v_cmp_eq_u32 s[{sM}:{sM+1}], 0, v13
    v_mov_b32 v220, 0x3b000000
    v_mov_b32 v221, 0x3b000000
    v_mov_b32 v222, 0x3727c5ac
    v_mov_b32 v223, 0x3727c5ac
    """)
    a.vwait("A")
    a("s_barrier")
    a.stamp()
    for typ in range(2):
        for kp in range(4):
            a(f"ds_read_b128 {vr(gf(typ,kp),4)}, v{20+kp} offset:{typ*4096}")

    def xreads(kp):
        for Q in range(4):
            for tau in range(2):
                a(f"ds_read_b128 {vr(xf(kp&1,Q,tau),4)}, v{16+kp} offset:{L_XA + Q*256 + tau*16384}")

    xreads(0)
    for kp in range(4):
        a("s_waitcnt lgkmcnt(0)")
        if kp < 3:
            xreads(kp + 1)
        if kp == 3:
            a.stamp()
            a("s_barrier")
            a("ds_read_b128 v[88:91], v9")
            a("ds_read_b128 v[92:95], v9 offset:64")
            a("ds_read_b128 v[80:83], v9 offset:128")
            a("ds_read_b128 v[84:87], v9 offset:192")
        fill = []
        if kp == 3:
            fill = ["s_nop 0"] * 9 + ["s_waitcnt lgkmcnt(0)"]
            for r in range(0, 8, 2):
                fill.append(f"v_pk_mul_f32 {vr(88+r,2)}, {vr(88+r,2)}, v[220:221]")
            for r in range(0, 8, 2):
                fill.append(f"v_pk_fma_f32 {vr(80+r,2)}, {vr(80+r,2)}, v[220:221], v[222:223]")
            for r in range(0, 8, 2):
                fill.append(f"v_pk_fma_f32 {vr(80+r,2)}, {vr(88+r,2)}, {vr(88+r,2)}, {vr(80+r,2)} neg_lo:[1,0,0] neg_hi:[1,0,0]")
            for r in range(8):
                fill.append(f"v_max_f32 v{80+r}, v222, v{80+r}")
            for r in range(8):
                fill.append(f"v_rsq_f32 v{80+r}, v{80+r}")
            fill += ["v_mov_b32 v73, v81", "v_mov_b32 v75, v83",
                     f"v_cndmask_b32 v81, v81, 0, s[{sM}:{sM+1}]", f"v_cndmask_b32 v83, v83, 0, s[{sM}:{sM+1}]"]
        per = (len(fill) + 15) // 16
        for typ in range(2):
            mfma(a, vr(CSA + 4 * typ, 4), "v[216:219]", vr(gf(typ, kp), 4), "0" if kp == 0 else None)
        for Q in range(4):
            for tau in range(2):
                for typ in range(2):
                    mfma(a, vr(acc(Q, tau, typ), 4), vr(xf(kp & 1, Q, tau), 4), vr(gf(typ, kp), 4), "0" if kp == 0 else None)
                    for _ in range(per):
                        if fill:
                            f = fill.pop(0)
                            if f != "s_nop 0":
                                a(f)
    sig(a, F_PAUSE, vF, vONE)
    a(f"v_mul_f32 v{CSA}, v{CSM}, v{CSA}")
    a(f"v_mul_f32 v{CSA+4}, v{CSM}, v{CSA+4}")
    a.stamp()
    KK, MM, KT = 80, 88, 72
    a.nop(4)
    for tau in range(2):
        for r in (0, 2):
            C = [acc(Q, tau, 0) + r for Q in range(4)]
            I = [acc(Q, tau, 1) + r for Q in range(4)]
            t0, t1, t2, t3 = 208, 210, 212, 214
            a(f"""
            v_pk_fma_f32 {vr(C[0],2)}, {vr(SIG,2)}, {vr(C[2],2)}, {vr(C[0],2)}
            v_pk_fma_f32 {vr(I[0],2)}, {vr(SIG,2)}, {vr(I[2],2)}, {vr(I[0],2)}
            v_pk_add_f32 {vr(t0,2)}, {vr(C[1],2)}, {vr(C[3],2)}
            v_pk_add_f32 {vr(t1,2)}, {vr(I[1],2)}, {vr(I[3],2)} neg_lo:[0,1] neg_hi:[0,1]
            v_pk_add_f32 {vr(t2,2)}, {vr(I[1],2)}, {vr(I[3],2)}
            v_pk_add_f32 {vr(t3,2)}, {vr(C[3],2)}, {vr(C[1],2)} neg_lo:[0,1] neg_hi:[0,1]
            v_pk_fma_f32 {vr(C[0],2)}, {vr(C1,2)}, {vr(t0,2)}, {vr(C[0],2)}
            v_pk_fma_f32 {vr(I[0],2)}, {vr(C1,2)}, {vr(t2,2)}, {vr(I[0],2)}
            v_pk_fma_f32 {vr(C[0],2)}, {vr(S1,2)}, {vr(t1,2)}, {vr(C[0],2)}
            v_pk_fma_f32 {vr(I[0],2)}, {vr(S1,2)}, {vr(t3,2)}, {vr(I[0],2)}
            """)
    OZ = 100
    for tau in range(2):
        for typ in range(2):
            d = acc(0, tau, typ)
            for r in range(4):
                a(f"v_fma_f32 v{d+r}, -v{MM+4*tau+r}, v{CSA+4*typ}, v{d+r}")
            sg = "-" if typ else ""
            e, f = 108, 109
            a(f"""
            v_mul_f32 v{e}, v{KK+4*tau}, v{d}
            v_mul_f32 v{f}, v{KK+4*tau+2}, v{d+2}
            v_fma_f32 v{e}, {sg}v{KK+4*tau+1}, v{d+1}, v{e}
            v_fma_f32 v{f}, {sg}v{KK+4*tau+3}, v{d+3}, v{f}
            v_add_f32 v{OZ+(typ*2+0)*2+tau}, v{e}, v{f}
            v_sub_f32 v{OZ+(typ*2+1)*2+tau}, v{e}, v{f}
            """)
    for arr in range(4):
        a(f"v_cvt_pk_bf16_f32 v{112+arr}, v{OZ+2*arr}, v{OZ+2*arr+1}")
    a.nop(2)
    transpose4(a, 112, 113, 114, 115)
    a.nop(1)
    a.vmem("SZ", f"buffer_store_dwordx4 v[112:115], v12, {R(R_ZA)}, 0 offen sc1")
    a(f"""
    s_cmp_lg_u32 s{sSB}, 0
    s_cbranch_scc1 L_noex
    v_mul_f32 v108, v{KT+1}, v{acc(0,0,0)+1}
    v_mul_f32 v109, v{KT+1}, v{acc(0,0,1)+1}
    v_fma_f32 v108, v{KT+3}, v{acc(0,0,0)+3}, v108
    v_fma_f32 v109, -v{KT+3}, v{acc(0,0,1)+3}, v109
    s_lshl_b32 s{T0}, s{sE4}, 8
    s_lshl_b32 s{T1}, s{sW}, 6
    s_add_u32 s{T0}, s{T0}, s{T1}
    v_lshl_add_u32 v110, v{vI}, 2, s{T0}
    s_mov_b64 exec, 0xffff
    buffer_store_dword v108, v110, {R(R_Z5)}, 0 offen sc1
    buffer_store_dword v109, v110, {R(R_Z5)}, 0 offen offset:1024 sc1
    s_mov_b64 exec, -1
    """)
    a.label("L_noex")
    a.stamp()
    a(f"""
    s_cmp_lg_u32 s{sW}, 0
    s_cbranch_scc1 L_rdy_done
    v_mov_b32 v4, 0
    s_mov_b64 exec, 1
    s_mov_b32 s{T0}, 0
    """)
    a.label("L_rdy_loop")
    a(f"""
    buffer_load_dword v5, v4, {R(R_DBG)}, 0 offen sc1
    s_add_u32 s{T0}, s{T0}, 1
    s_cmp_ge_u32 s{T0}, 0x40000
    s_cbranch_scc1 L_rdy_exit
    s_waitcnt vmcnt(0)
    v_cmp_eq_u32 vcc, 0, v5
    s_cbranch_vccnz L_rdy_loop
    """)
    a.label("L_rdy_exit")
    a("s_mov_b64 exec, -1")
    a.label("L_rdy_done")
    a(f"""
    v_lshrrev_b32 v4, 2, v{vI}
    v_and_b32 v5, 3, v{vI}
    v_xor_b32 v5, v5, v{vG}
    v_lshlrev_b32 v5, 4, v5
    v_lshl_add_u32 v5, v{vI}, 10, v5
    s_mul_i32 s{T0}, s{sA}, {32768+16384}
    s_add_u32 s{T0}, s{T0}, {L_TR}
    s_lshl_b32 s{T1}, s{sA}, 15
    s_sub_u32 s{T1}, 16384, s{T1}
    v_add_u32 v5, s{T0}, v5
    """)
    for k3 in range(4):
        a(f"""
        v_xor_b32 v6, {k3}, v4
        v_lshl_add_u32 v{8+k3}, v6, 6, v5
        v_add_u32 v{16+k3}, s{T1}, v{8+k3}
        """)
    a(f"""
    s_lshl_b32 s{T0}, s{sA}, 12
    s_add_u32 s{T0}, s{T0}, {L_XT}
    v_lshl_add_u32 v4, v{vI}, 8, s{T0}
    s_lshl_b32 s{T1}, s{sB}, 5
    v_lshl_add_u32 v5, v{vG}, 3, s{T1}
    v_lshlrev_b32 v7, 4, v{vI}
    v_xor_b32 v6, v5, v7
    v_add_u32 v20, v4, v6
    v_sub_u32 v6, {64+56}, v5
    v_xor_b32 v6, v6, v7
    v_add_u32 v21, v4, v6
    v_sub_u32 v6, {64+64}, v5
    v_cmp_eq_u32 s[{sM}:{sM+1}], 0, v{vJ2}
    v_mov_b32 v23, {9*16}
    s_nop 0
    v_cndmask_b32 v6, v6, v23, s[{sM}:{sM+1}]
    v_xor_b32 v6, v6, v7
    v_add_u32 v22, v4, v6
    """)
    a.vwait_all()
    a.stamp()
    arrive(a, "L_ar1", vC1a, 4, "0xf", F_AR1, vF, vONE)
    a(f"s_lshl_b32 s{T0}, s{sW}, 2")
    a(f"v_add_u32 v{vFw}, s{T0}, v{vF}")
    a.stamp()
    waitf(a, "L_wtrig", F_TRIG, vF, 4, 256)
    a.stamp()
    XR = 36
    for mir in range(2):
        a(f"ds_read_b64 {vr(XR+6*mir,2)}, v20 offset:{mir*8192}")
        a(f"ds_read_b64 {vr(XR+6*mir+2,2)}, v21 offset:{mir*8192}")
        a(f"ds_read_u16 v{XR+6*mir+4}, v22 offset:{mir*8192}")
    TF = 128
    tf = lambda tl, ks: TF + (tl * 16 + ks) * 4
    for ks in range(16):
        for tl in range(2):
            base = (8 if tl == 0 else 16) + (ks & 3)
            a(f"ds_read_b128 {vr(tf(tl,ks),4)}, v{base} offset:{(ks>>2)*256}")
    XU = 48
    a("s_waitcnt lgkmcnt(15)")
    for mir in range(2):
        b, x = XU + mir * 8, XR + 6 * mir
        a(f"""
        v_lshlrev_b32 v{b}, 16, v{x}
        v_and_b32 v{b+1}, s{sHI}, v{x}
        v_lshlrev_b32 v{b+2}, 16, v{x+1}
        v_and_b32 v{b+3}, s{sHI}, v{x+1}
        v_lshlrev_b32 v{b+4}, 16, v{x+4}
        v_and_b32 v{b+5}, s{sHI}, v{x+3}
        v_lshlrev_b32 v{b+6}, 16, v{x+3}
        v_and_b32 v{b+7}, s{sHI}, v{x+2}
        """)
    a(f"""
    v_lshlrev_b32 v{CF0}, 16, v{CF0}
    v_lshlrev_b32 v{CF1}, 16, v{CF1}
    s_lshl_b32 s{T0}, s{sA}, 1
    s_add_u32 s{T0}, s{T0}, s{sP}
    s_lshl_b32 s{T0}, s{T0}, 18
    s_lshl_b32 s{T1}, s{sE}, 1
    s_add_u32 s{T1}, s{T1}, s{sB}
    s_lshl_b32 s{T2}, s{T1}, 14
    s_add_u32 s{T0}, s{T0}, s{T2}
    v_add_u32 v8, s{T0}, v{vL16}
    v_lshlrev_b32 v9, 1, v{vJ2}
    s_lshl_b32 s{T0}, s{sP}, 10
    v_add_u32 v9, s{T0}, v9
    v_mov_b32 v32, 0xbf803f80
    v_mov_b32 v33, 0xbf803f80
    v_mov_b32 v34, 0xbf803f80
    v_mov_b32 v35, 0xbf803f80
    s_lshl_b32 s{T0}, s{sPT}, 16
    s_lshl_b32 s{T2}, s{sA}, 14
    s_add_u32 s{T0}, s{T0}, s{T2}
    s_lshl_b32 s{T2}, s{T1}, 10
    s_add_u32 s{T0}, s{T0}, s{T2}
    v_add_u32 v10, s{T0}, v{vL16}
    s_lshl_b32 s{T0}, s{sPT}, 13
    s_lshl_b32 s{T2}, s{sA}, 11
    s_add_u32 s{T0}, s{T0}, s{T2}
    s_lshl_b32 s{T1}, s{T1}, 7
    s_add_u32 s{T0}, s{T0}, s{T1}
    v_lshrrev_b32 v11, 1, v{vG}
    v_and_b32 v12, 1, v{vG}
    v_lshlrev_b32 v11, 12, v11
    v_lshl_add_u32 v11, v12, 2, v11
    v_lshl_add_u32 v11, v{vI}, 3, v11
    v_add_u32 v11, s{T0}, v11
    s_lshl_b32 s{T0}, s{sW}, 10
    s_add_u32 s{T0}, s{T0}, {L_BX}
    v_add_u32 v12, s{T0}, v{vL16}
    s_xor_b32 s{T0}, s{T0}, 0x800
    v_add_u32 v13, s{T0}, v{vL16}
    s_cmp_eq_u32 s{sP}, 0
    s_cselect_b32 s{sC}, 1.0, -1.0
    s_cmp_eq_u32 s{sA}, 0
    s_cselect_b32 s{sD}, 1.0, -1.0
    s_mov_b32 s{sG}, 0x8000
    s_waitcnt lgkmcnt(0)
    """)
    sig(a, F_TC, vF, vONE)
    a(f"v_xor_b32 v16, 8, v{vFw}")
    a.stamp()
    poll(a, "L_p1", vC1p, 4, "0xf", 16, F_GO1, vF, vONE)
    a.stamp()
    ZF, Z5 = 64, 20
    for ks in range(16):
        so = "0" if ks < 4 else f"s{sK4 - 1 + ks//4}"
        a.vmem(f"Z{ks}", f"buffer_load_dwordx4 {vr(ZF+4*ks,4)}, v8, {R(R_ZA)}, {so} offen offset:{(ks%4)*1024} sc1")
    a.vmem("Z5", f"buffer_load_dwordx4 {vr(Z5,4)}, v9, {R(R_Z5)}, 0 offen sc1")
    BA0, BA1, BAX = 36, 40, 44
    for ks in range(16):
        a.vwait(f"Z{ks}")
        c0 = "0" if ks == 0 else None
        mfma(a, vr(BA1, 4), vr(ZF + 4 * ks, 4), vr(tf(1, ks), 4), c0)
        mfma(a, vr(BA0, 4), vr(ZF + 4 * ks, 4), vr(tf(0, ks), 4), c0)
        mfma(a, vr(BAX, 4), vr(ZF + 4 * ks, 4), "v[32:35]", c0)
    sig(a, F_PAUSE, vF, vONE)
    waitf(a, "L_wtc", F_TC, vF, 4, 256)
    a(f"ds_write_b128 v12, {vr(BA1,4)}")
    a("s_waitcnt lgkmcnt(0)")
    sig(a, F_X, vFw, vONE)
    a.vwait("Z5")
    EX0, EX1, OT, Y = 64, 68, 72, 76
    for r in range(4):
        a(f"v_mul_f32 v{EX0+r}, v{CF0}, v{Z5+r}")
        a(f"v_mul_f32 v{EX1+r}, v{CF1}, v{Z5+r}")
    a(f"""
    v_cmp_eq_u32 vcc, 0, v{vT}
    """)
    waitf(a, "L_wx", F_X, 16, 4, 64)
    a(f"""
    ds_read_b128 {vr(OT,4)}, v13
    s_waitcnt lgkmcnt(0)
    """)
    a.stamp()
    for r in range(4):
        a(f"v_sub_f32 v{Y+r}, v{BA0+r}, v{OT+r}")
        a(f"v_add_f32 v{Y+4+r}, v{BA0+r}, v{OT+r}")
    for r in range(4):
        a(f"v_mul_f32 v{Y+r}, s{sD}, v{Y+r}")
        a(f"v_cndmask_b32 v{Y+8+r}, v{Y+4+r}, v{BAX+r}, vcc")
    for r in range(4):
        a(f"v_cndmask_b32 v{Y+12+r}, v{Y+r}, v{BAX+r}, vcc")
    for r in range(4):
        a(f"v_fmac_f32 v{Y+r}, s{sC}, v{EX0+r}")
        a(f"v_add_f32 v{Y+4+r}, v{Y+4+r}, v{EX0+r}")
        a(f"v_add_f32 v{Y+8+r}, v{Y+8+r}, v{EX1+r}")
        a(f"v_fmac_f32 v{Y+12+r}, s{sC}, v{EX1+r}")
    a(f"v_cndmask_b32 v{Y}, v{Y}, 0, s[{sM}:{sM+1}]")
    a(f"v_cndmask_b32 v{Y+8}, v{Y+8}, 0, s[{sM}:{sM+1}]")
    for r in range(0, 16, 2):
        a(f"v_pk_add_f32 {vr(Y+r,2)}, {vr(Y+r,2)}, {vr(XU+r,2)}")
    HP, S = 92, 100
    for r in range(8):
        a(f"v_cvt_pk_bf16_f32 v{HP+r}, v{Y+2*r}, v{Y+2*r+1}")
    for r in range(4):
        a(f"v_mov_b32 v{S+r}, 0")
    a.vmem("SH", f"buffer_store_dwordx4 {vr(HP,4)}, v10, {R(R_H)}, 0 offen sc1")
    a.vmem("SH", f"buffer_store_dwordx4 {vr(HP+4,4)}, v10, {R(R_H)}, s{sG} offen sc1")
    for mir in range(2):
        for d in range(4):
            a(f"v_dot2c_f32_bf16 v{S+2*mir}, s{sONES}, v{HP+4*mir+d}")
            a(f"v_dot2c_f32_bf16 v{S+2*mir+1}, v{HP+4*mir+d}, v{HP+4*mir+d}")
    a.nop(3)
    treduce4(a, S, S + 1, S + 2, S + 3)
    a.vmem("SH", f"buffer_store_dword v{S}, v11, {R(R_ST)}, 0 offen sc1")
    a.stamp()
    a(f"""
    s_and_b32 s{sA}, s{sC16}, 1
    v_add_u32 v24, {8*7168}, v{vL16}
    s_lshl_b32 s{T0}, s{sRB}, 17
    s_lshl_b32 s{T1}, s{sW}, 15
    s_add_u32 s{T0}, s{T0}, s{T1}
    v_add_u32 v10, s{T0}, v{vL16}
    v_add_u32 v11, 0x4000, v10
    s_lshl_b32 s{T0}, s{sRB}, 14
    s_lshl_b32 s{T1}, s{sW}, 12
    s_add_u32 s{T0}, s{T0}, s{T1}
    v_lshl_add_u32 v12, v{vI}, 3, s{T0}
    v_lshl_add_u32 v12, v{vG}, 9, v12
    v_lshlrev_b32 v13, 4, v{vG}
    v_add_u32 v13, {L_CS}, v13
    """)
    a.vwait_all()
    a.stamp()
    arrive(a, "L_ar2", vC2, 4, "1", F_AR2, vF, vONE)
    a.stamp()
    waitf(a, "L_ww1", F_W1, vF, 4, 256)
    a.stamp()
    poll(a, "L_p2", vC2, 4, "1", 16, F_GO2, vF, vONE)
    a.stamp()
    AC1, AC2, WF, HF = 36, 68, 92, 124
    cacc = lambda u, mt: (AC1 + (u * 2 + mt) * 4) if u < 4 else (AC2 + ((u - 4) * 2 + mt) * 4)
    wf = lambda b, u: WF + (b * 4 + (u % 4)) * 4
    hf = lambda mt, ks: HF + (ks * 2 + mt) * 4
    STT = AC2
    MEAN, RSTD = 16, 20

    def wread(ks, u):
        a(f"ds_read_b128 {vr(wf(ks&1,u),4)}, v{vL16 if ks < 8 else 24} offset:{(ks%8)*7168+u*1024}")

    def hload(ks, mts=(0, 1)):
        if mts[0] == 0:
            a(f"s_add_u32 s{sCUR}, s{sRC}, {ks}\ns_and_b32 s{sCUR}, s{sCUR}, 15\ns_lshl_b32 s{sCUR}, s{sCUR}, 10")
        for mt in mts:
            a.vmem(f"H{ks}", f"buffer_load_dwordx4 {vr(hf(mt,ks),4)}, v{10+mt}, {R(R_H)}, s{sCUR} offen sc1")

    HD = cfg["hdepth"]
    for ks in range(HD):
        hload(ks)
    for u in range(4):
        wread(0, u)
    a(f"""
    s_lshl_b32 s{T0}, s{sRB}, 3
    s_lshl_b32 s{T1}, s{sW}, 1
    s_add_u32 s{T0}, s{T0}, s{T1}
    s_mul_i32 s{T0}, s{T0}, 57344
    s_mul_i32 s{T1}, s{sC16}, 7
    s_add_u32 s{T2}, s{T1}, s{sA}
    s_lshl_b32 s{T2}, s{T2}, 9
    s_add_u32 s{T2}, s{T2}, s{T0}
    v_add_u32 v8, s{T2}, v{vL16}
    s_cmp_eq_u32 s{sA}, 0
    s_cselect_b32 s{T2}, 6, 0
    s_add_u32 s{T1}, s{T1}, s{T2}
    s_lshr_b32 s{T2}, s{T1}, 1
    s_lshl_b32 s{T2}, s{T2}, 10
    s_and_b32 s{T1}, s{T1}, 1
    s_lshl_b32 s{T1}, s{T1}, 3
    s_add_u32 s{T2}, s{T2}, s{T1}
    s_add_u32 s{T2}, s{T2}, s{T0}
    v_add_u32 v9, s{T2}, v{vL16}
    s_mov_b32 s{sG}, 57344
    s_mul_i32 s{sF}, s{sW}, {DSTR}
    v_add_u32 v{vC2}, {16*256}, v{vC2}
    """)

    def cpass(us, first):
        n = len(us)
        for ks in range(16):
            nxt = ks + 1
            if first:
                a.vwait(f"H{ks}")
                if cfg.get("fine") and ks in (0, 8):
                    a.stamp()
            for i, u in enumerate(us):
                if nxt < 16:
                    wread(nxt, u)
                    a(f"s_waitcnt lgkmcnt({n})")
                else:
                    a(f"s_waitcnt lgkmcnt({n-1-i})")
                for mt in range(2):
                    mfma(a, vr(cacc(u, mt), 4), vr(wf(ks & 1, u), 4), vr(hf(mt, ks), 4), "0" if ks == 0 else None)
                if first and i in (0, 2) and ks + HD < 16:
                    hload(ks + HD, (0,) if i == 0 else (1,))
                if first and i == 3 and ks + HD == 16:
                    for mt in range(2):
                        for pp in range(4):
                            a.vmem("ST", f"buffer_load_dwordx2 {vr(STT+mt*8+pp*2,2)}, v12, {R(R_ST)}, 0 offen offset:{mt*2048+pp*128} sc1")
            if not first and ks == cfg["ar3a"]:
                a.vwait("S1a")
                arrive(a, "L_ar3", vC2, 4, "1", F_AR3, vF, vONE)
                a(f"v_add_u32 v{vC2}, {16*256}, v{vC2}")

    def cepi(groups, tmp, outs, tag):
        tiles = [u for g in groups for u in g[1]]
        for i, u in enumerate(tiles):
            for v in range(4):
                a(f"ds_read_b128 {vr(tmp+(i*4+v)*4,4)}, v13 offset:{v*448+u*64}")
        return tiles

    cpass((0, 1, 2, 3), True)
    sig(a, F_PAUSE, vF, vONE)
    a.vwait("ST")
    for mt in range(2):
        b = STT + mt * 8
        a(f"""
        v_pk_add_f32 {vr(b,2)}, {vr(b,2)}, {vr(b+2,2)}
        v_pk_add_f32 {vr(b+4,2)}, {vr(b+4,2)}, {vr(b+6,2)}
        v_pk_add_f32 {vr(b,2)}, {vr(b,2)}, {vr(b+4,2)}
        """)
    for i in range(2):
        for v in range(4):
            a(f"ds_read_b128 {vr(WF+(i*4+v)*4,4)}, v13 offset:{v*448+i*64}")
    allreduce_g(a, [STT, STT + 1, STT + 8, STT + 9], [STT + 2, STT + 3, STT + 10, STT + 11])
    for mt in range(2):
        b = STT + mt * 8
        a(f"""
        v_mul_f32 v{MEAN+2*mt}, 0xbb000000, v{b}
        v_mul_f32 v{b+1}, 0x3b000000, v{b+1}
        v_fma_f32 v{b+1}, -v{MEAN+2*mt}, v{MEAN+2*mt}, v{b+1}
        v_max_f32 v{b+1}, 0, v{b+1}
        v_add_f32 v{b+1}, 0x3727c5ac, v{b+1}
        v_rsq_f32 v{RSTD+2*mt}, v{b+1}
        v_mov_b32 v{MEAN+2*mt+1}, v{MEAN+2*mt}
        """)
    a(f"v_mov_b32 v{RSTD+1}, v{RSTD}")
    a(f"v_mov_b32 v{RSTD+3}, v{RSTD+2}")
    a.stamp()

    def csum_reduce(t):
        for r in (0, 2):
            a(f"v_pk_add_f32 {vr(t+r,2)}, {vr(t+r,2)}, {vr(t+4+r,2)}")
            a(f"v_pk_add_f32 {vr(t+8+r,2)}, {vr(t+8+r,2)}, {vr(t+12+r,2)}")
            a(f"v_pk_add_f32 {vr(t+r,2)}, {vr(t+r,2)}, {vr(t+8+r,2)}")

    def finish(v, us, cs, outs, tag):
        for mt in range(2):
            o = outs[mt]
            for n, u in enumerate(us):
                d, c = cacc(u, mt), cs[n]
                a(f"v_pk_fma_f32 {vr(d,2)}, {vr(MEAN+2*mt,2)}, {vr(c,2)}, {vr(d,2)}")
                a(f"v_pk_fma_f32 {vr(d+2,2)}, {vr(MEAN+2*mt,2)}, {vr(c+2,2)}, {vr(d+2,2)}")
                a(f"v_pk_mul_f32 {vr(d,2)}, {vr(d,2)}, {vr(RSTD+2*mt,2)}")
                a(f"v_pk_mul_f32 {vr(d+2,2)}, {vr(d+2,2)}, {vr(RSTD+2*mt,2)}")
                a(f"v_cvt_pk_bf16_f32 v{o+2*n}, v{d}, v{d+1}")
                a(f"v_cvt_pk_bf16_f32 v{o+2*n+1}, v{d+2}, v{d+3}")
                a(f"v_pk_max_i16 v{o+2*n}, v{o+2*n}, 0")
                a(f"v_pk_max_i16 v{o+2*n+1}, v{o+2*n+1}, 0")
            so = "0" if mt == 0 else f"s{sG}"
            if v < 3:
                a.vmem(tag, f"buffer_store_dwordx4 {vr(o,4)}, v8, {R(R_H1)}, {so} offen offset:{v*1024} sc1")
            else:
                a.vmem(tag, f"buffer_store_dwordx2 {vr(o,2)}, v9, {R(R_H1)}, {so} offen sc1")

    a("s_waitcnt lgkmcnt(0)")
    csum_reduce(WF)
    csum_reduce(WF + 16)
    a(f"v_mov_b32 v{AC2}, v{WF}\nv_mov_b32 v{AC2+1}, v{WF+1}\nv_mov_b32 v{AC2+2}, v{WF+2}\nv_mov_b32 v{AC2+3}, v{WF+3}")
    a(f"v_mov_b32 v{AC2+4}, v{WF+16}\nv_mov_b32 v{AC2+5}, v{WF+17}\nv_mov_b32 v{AC2+6}, v{WF+18}\nv_mov_b32 v{AC2+7}, v{WF+19}")
    for i in range(2):
        for v in range(4):
            a(f"ds_read_b128 {vr(WF+(i*4+v)*4,4)}, v13 offset:{v*448+(2+i)*64}")
    finish(0, (0, 1), (AC2, AC2 + 4), (AC2 + 8, AC2 + 12), "S1a")
    a("s_waitcnt lgkmcnt(0)")
    csum_reduce(WF)
    csum_reduce(WF + 16)
    finish(1, (2, 3), (WF, WF + 16), (AC1, AC1 + 4), "S1a")
    a.stamp()
    for u in (4, 5, 6):
        wread(0, u)
    cpass((4, 5, 6), False)
    sig(a, F_PAUSE, vF, vONE)
    for i in range(3):
        for v in range(4):
            a(f"ds_read_b128 {vr(HF+(i*4+v)*4,4)}, v13 offset:{v*448+(4+i)*64}")
    a("s_waitcnt lgkmcnt(0)")
    sig(a, F_CD, vF, vONE)
    a.stamp()
    for i in range(3):
        csum_reduce(HF + 16 * i)
    finish(2, (4, 5), (HF, HF + 16), (HF + 48, HF + 52), "S1b")
    finish(3, (6,), (HF + 32,), (HF + 56, HF + 60), "S1b")
    a.stamp()
    for lm in range(4):
        a(f"""
        s_xor_b32 s{T0}, s{sW}, {lm}
        s_lshl_b32 s{T1}, s{sPT}, 2
        s_add_u32 s{T0}, s{T0}, s{T1}
        s_mul_i32 s{T0}, s{T0}, 57344
        s_mul_i32 s{T1}, s{sW}, {14*1024}
        s_add_u32 s{T0}, s{T0}, s{T1}
        v_add_u32 v{8+lm}, s{T0}, v{vL16}
        """)
    a(f"""
    v_lshrrev_b32 v4, 2, v{vL}
    v_bfe_u32 v5, v{vL}, 3, 2
    v_and_b32 v6, 3, v{vL}
    v_lshl_add_u32 v4, v4, 7, s{sF}
    v_lshl_add_u32 v4, v6, 3, v4
    """)
    for u in range(4):
        a(f"v_xor_b32 v6, {u}, v5")
        a(f"v_lshl_add_u32 v{32+u}, v6, 5, v4")
    a(f"""
    s_lshl_b32 s{T0}, s{sPT}, 2
    s_add_u32 s{T0}, s{T0}, s{sW}
    s_lshl_b32 s{T0}, s{T0}, 14
    v_lshl_add_u32 v16, v{vI}, 4, s{T0}
    s_cmp_ge_u32 s{sE}, 4
    s_cbranch_scc1 L_res_mirror
    s_lshl_b32 s{T0}, s{sE}, 12
    v_lshl_add_u32 v17, v{vG}, 8, v16
    v_add_u32 v17, s{T0}, v17
    v_mov_b32 v18, {OOB}
    v_mov_b32 v19, {OOB}
    s_branch L_res_done
    """)
    a.label("L_res_mirror")
    a(f"""
    s_lshl_b32 s{T0}, s{sE}, 2
    s_sub_u32 s{T0}, 28, s{T0}
    s_lshl_b32 s{T0}, s{T0}, 10
    s_add_u32 s{T0}, s{T0}, 8
    v_sub_u32 v18, 3, v{vG}
    v_lshl_add_u32 v17, v18, 8, v16
    v_add_u32 v17, s{T0}, v17
    v_add_u32 v18, 256, v17
    v_add_u32 v19, {256+3072}, v17
    v_add_u32 v22, 8, v16
    v_or_b32 v23, s{sE}, v{vL16}
    v_and_b32 v23, 0x307, v23
    v_cmp_eq_u32 vcc, 4, v23
    s_nop 1
    v_cndmask_b32 v19, v19, v22, vcc
    """)
    a.label("L_res_done")
    RES, RE1 = 36, 44
    for up in range(4):
        a.vmem("RES", f"buffer_load_dwordx2 {vr(RES+2*up,2)}, v17, {R(R_H)}, 0 offen offset:{up*1024} sc1")
    for up in range(3):
        a.vmem("RES", f"buffer_load_ushort v{RE1+up}, v18, {R(R_H)}, 0 offen offset:{up*1024} sc1")
    a.vmem("RES", f"buffer_load_ushort v{RE1+3}, v19, {R(R_H)}, 0 offen sc1")
    a(f"""
    s_lshl_b32 s{T0}, s{sT}, 6
    s_add_u32 s{T0}, s{T0}, s{sP}
    s_and_b32 s{T1}, s{sW}, 1
    s_lshl_b32 s{T1}, s{T1}, 5
    s_add_u32 s{T0}, s{T0}, s{T1}
    v_lshl_add_u32 v20, v{vI}, 1, s{T0}
    v_cmp_eq_u32 vcc, 0, v20
    v_sub_u32 v21, 0x800, v20
    v_mov_b32 v22, 0x400
    s_cmp_ge_u32 s{sW}, 2
    s_cselect_b64 s[{sM}:{sM+1}], -1, 0
    v_cndmask_b32 v21, v21, v22, vcc
    v_cndmask_b32 v20, v20, v21, s[{sM}:{sM+1}]
    s_lshl_b32 s{T0}, s{sE}, 7
    v_lshl_add_u32 v21, v{vG}, 5, s{T0}
    v_lshl_add_u32 v20, v20, 10, v21
    """)
    a.vwait("RES")
    DACC, DWF, H1F = 48, 112, 144
    NR = cfg["h1ring"]
    dacc = lambda u, lm: DACC + (u * 4 + lm) * 4
    dwf = lambda b, u: DWF + (b * 4 + u) * 4
    h1f = lambda lm, ks: H1F + ((ks % NR) * 4 + lm) * 4
    a(f"""
    s_cmp_ge_u32 s{sE}, 4
    s_cbranch_scc1 L_unp_mirror
    """)
    for u in range(4):
        s, d = RES + 2 * u, dacc(u, 0)
        a(f"""
        v_lshlrev_b32 v{d}, 16, v{s}
        v_and_b32 v{d+1}, s{sHI}, v{s}
        v_lshlrev_b32 v{d+2}, 16, v{s+1}
        v_and_b32 v{d+3}, s{sHI}, v{s+1}
        """)
    a("s_branch L_unp_done")
    a.label("L_unp_mirror")
    for u in range(4):
        s, d = RES + 2 * (3 - u), dacc(u, 0)
        a(f"""
        v_lshlrev_b32 v{d}, 16, v{RE1+3-u}
        v_and_b32 v{d+1}, s{sHI}, v{s+1}
        v_lshlrev_b32 v{d+2}, 16, v{s+1}
        v_and_b32 v{d+3}, s{sHI}, v{s}
        """)
    a.label("L_unp_done")
    a.stamp()
    arrive(a, "L_ar4", vC2, 4, "1", F_AR4, vF, vONE)
    a.stamp()
    waitf(a, "L_wd1", F_D1, vFw, 4, 64)
    a.stamp()
    waitf(a, "L_wg3", F_GO3, vF, 4, 64)
    a.stamp()

    def h1load(ks, lms=(0, 1, 2, 3)):
        if lms[0] == 0:
            if ks == 8 - cfg["probe"]:
                a.vmem("P4", f"buffer_load_dword v25, v{vC2}, {R(R_CNT)}, 0 offen sc1")
            if ks == 8:
                a.vwait("P4")
                a(f"""
                v_cmp_gt_u32 vcc, 16, v25
                s_mov_b32 s{T0}, 0
                s_cbranch_vccz L_p4_ok
                """)
                a.label("L_p4_loop")
                a(f"""
                buffer_load_dword v25, v{vC2}, {R(R_CNT)}, 0 offen sc1
                s_add_u32 s{T0}, s{T0}, 1
                s_cmp_ge_u32 s{T0}, 0x40000
                s_cbranch_scc1 L_p4_ok
                s_waitcnt vmcnt(0)
                v_cmp_gt_u32 vcc, 16, v25
                s_cbranch_vccnz L_p4_loop
                """)
                a.label("L_p4_ok")
            pk = DPERM[ks]
            a(f"s_{'add' if pk < 7 else 'sub'}_u32 s{sCUR}, {pk}, s{sRD}\ns_lshl_b32 s{sCUR}, s{sCUR}, 10")
        for lm in lms:
            a.vmem(f"G{ks}", f"buffer_load_dwordx4 {vr(h1f(lm,ks),4)}, v{8+lm}, {R(R_H1)}, s{sCUR} offen sc1")

    def dtr(ks, u):
        off = (ks % DSL) * 4096
        a(f"ds_read_b64_tr_b16 {vr(dwf(ks&1,u),2)}, v{32+u} offset:{off}")
        a(f"ds_read_b64_tr_b16 {vr(dwf(ks&1,u)+2,2)}, v{32+u} offset:{off+2048}")

    DD = cfg["ddepth"]
    assert DD < NR
    for ks in range(DD):
        h1load(ks)
    for u in range(4):
        dtr(0, u)
    lag = [0]
    for ks in range(14):
        nxt = ks + 1
        if ks != 14 - DSL:
            lag[0] = 0
        if ks == DSL - 1:
            waitf(a, "L_wd2", F_D2, vFw, 4, 64)
        a.vwait(f"G{ks}")
        if cfg.get("fine") and ks in (0, 1, 3, 4, 6, 9, 12):
            a.stamp()
        for u in range(4):
            if nxt < 14:
                dtr(nxt, u)
                a(f"s_waitcnt lgkmcnt({8 + lag[0]})")
            else:
                a(f"s_waitcnt lgkmcnt({6-2*u})")
            for lm in (1, 2, 3, 0):
                mfma(a, vr(dacc(u, lm), 4), vr(dwf(ks & 1, u), 4), vr(h1f(lm, ks), 4), "0" if (ks == 0 and lm) else None)
            if ks + DD < 14:
                h1load(ks + DD, (u,))
        if ks == 13 - DSL:
            sig(a, F_S, vFw, vONE)
            lag[0] = 1
    a.stamp()
    a(f"v_add_u32 v16, s{sF}, v{vL16}")
    for lm in range(1, 4):
        a(f"""
        s_xor_b32 s{T0}, s{sW}, {lm}
        s_mul_i32 s{T0}, s{T0}, {DSTR}
        s_add_u32 s{T0}, s{T0}, {(lm-1)*4096}
        v_add_u32 v{16+lm}, s{T0}, v{vL16}
        """)
    for lm in range(1, 4):
        for u in range(4):
            a(f"ds_write_b128 v16, {vr(dacc(u,lm),4)} offset:{(lm-1)*4096+u*1024}")
    a("""
    s_waitcnt lgkmcnt(0)
    s_barrier
    """)
    RD = 144
    for lm in range(1, 4):
        for u in range(4):
            a(f"ds_read_b128 {vr(RD+((lm-1)*4+u)*4,4)}, v{16+lm} offset:{u*1024}")
    for lm in range(1, 4):
        a(f"s_waitcnt lgkmcnt({8-4*(lm-1)})")
        for u in range(4):
            for r in (0, 2):
                a(f"v_pk_add_f32 {vr(dacc(u,0)+r,2)}, {vr(dacc(u,0)+r,2)}, {vr(RD+((lm-1)*4+u)*4+r,2)}")
    O = 112
    for u in range(4):
        a(f"v_cvt_pk_bf16_f32 v{O+2*u}, v{dacc(u,0)}, v{dacc(u,0)+1}")
        a(f"v_cvt_pk_bf16_f32 v{O+2*u+1}, v{dacc(u,0)+2}, v{dacc(u,0)+3}")
    a.nop(2)
    for d in range(2):
        a(f"v_permlane32_swap_b32 v{O+d}, v{O+4+d}")
        a(f"v_permlane32_swap_b32 v{O+2+d}, v{O+6+d}")
    a.nop(2)
    for d in range(2):
        a(f"v_permlane16_swap_b32 v{O+d}, v{O+2+d}")
        a(f"v_permlane16_swap_b32 v{O+4+d}, v{O+6+d}")
    a.nop(2)
    a(f"buffer_store_dwordx4 {vr(O,4)}, v20, {R(R_OUT)}, 0 offen")
    a(f"buffer_store_dwordx4 {vr(O+4,4)}, v20, {R(R_OUT)}, 0 offen offset:16")
    stamp_out(a, 0)
    a("s_branch L_end")


def helper(a, cfg):
    a.label("L_helper")
    a.vm = []
    a.nstamp = 1
    a.sstamp = R_H1
    a(f"""
    s_lshl_b32 s{T0}, s{sE4}, 6
    s_lshl_b32 s{T1}, s{sW}, 4
    s_add_u32 s{T0}, s{T0}, s{T1}
    """)
    for n in range(4):
        a(f"""
        v_add_u32 v4, {4*n}, v{vG}
        v_xor_b32 v5, v4, v{vI}
        v_add_u32 v4, s{T0}, v4
        v_lshlrev_b32 v5, 4, v5
        v_lshl_add_u32 v{8+n}, v4, 10, v5
        """)
        if n == 0:
            a(f"""
            v_cmp_eq_u32 vcc, 0, v4
            v_add_u32 v12, 0x40000, v8
            s_nop 0
            v_cndmask_b32 v12, v8, v12, vcc
            """)
    a("s_waitcnt lgkmcnt(0)")
    a.stamp()
    srd(a, R_DI, P_DI, P_DI + 1, 512 * 1024)
    srd(a, R_DR, P_DR, P_DR + 1, 512 * 1024)
    for typ in range(2):
        for n in range(4):
            a(f"s_add_u32 m0, s{sC}, {L_GA + typ*4096 + n*1024}")
            a("s_nop 0")
            v = 12 if (typ == 0 and n == 0) else 8 + n
            a.vmem("A", f"buffer_load_dwordx4 v{v}, {R(R_DI if typ else R_DR)}, 0 offen lds")
    late_setup(a, cfg["rot"])
    a(f"""
    s_lshl_b32 s{T3}, s2, 2
    s_add_u32 s{T3}, s{T3}, s{sW}
    s_cmp_lg_u32 s{T3}, 3
    s_cbranch_scc1 L_noleader2
    v_lshlrev_b32 v4, 8, v{vL}
    v_mov_b32 v5, 0
    s_mov_b32 s{T0}, 16384
    buffer_store_dword v5, v4, {R(R_CNT)}, 0 offen sc1
    buffer_store_dword v5, v4, {R(R_CNT)}, s{T0} offen sc1
    s_waitcnt vmcnt(0)
    v_mov_b32 v4, 1
    s_mov_b64 exec, 1
    buffer_store_dword v4, v5, {R(R_DBG)}, 0 offen sc1
    s_mov_b64 exec, -1
    """)
    a.label("L_noleader2")
    a(f"""
    s_lshl_b32 s{T0}, s{sT}, 6
    s_add_u32 s{T0}, s{T0}, s{sP}
    s_and_b32 s{T1}, s{sW}, 1
    s_lshl_b32 s{T1}, s{T1}, 5
    s_add_u32 s{sA}, s{T0}, s{T1}
    s_lshl_b32 s{sD}, s{sA}, 12
    s_lshl_b32 s{sF}, s{sW}, 14
    s_cmp_ge_u32 s{sW}, 2
    s_cselect_b32 s{R_DR}, s{R_CI}, s{R_CR}
    s_cselect_b32 s{R_DR+1}, s{R_CI+1}, s{R_CR+1}
    s_mov_b32 s{R_DR+2}, {2048*4096}
    """)

    def trig_dma(q):
        a(f"""
        s_add_u32 s{T0}, s{sD}, {q*8192}
        s_add_u32 m0, s{sF}, {L_TR + q*1024}
        v_xor_b32 v4, {q*16}, v{vL16}
        """)
        a.vmem("T", f"buffer_load_dwordx4 v4, {R(R_DR)}, s{T0} offen lds")

    a(f"""
    s_lshl_b32 s{T0}, s{sE}, 6
    s_sub_u32 s{T1}, {960-64}, s{T0}
    s_cmp_ge_u32 s{sW}, 2
    s_cselect_b64 s[{sM}:{sM+1}], -1, 0
    """)
    for n in range(4):
        a(f"""
        v_add_u32 v4, {4*n}, v{vG}
        v_xor_b32 v5, v4, v{vI}
        v_lshl_add_u32 v4, v4, 1, s{sA}
        v_sub_u32 v6, 0x800, v4
        v_cmp_eq_u32 vcc, 0, v4
        v_mov_b32 v7, 0x400
        v_lshlrev_b32 v13, 4, v5
        v_cndmask_b32 v6, v6, v7, vcc
        v_cndmask_b32 v4, v4, v6, s[{sM}:{sM+1}]
        v_add_u32 v6, s{T0}, v13
        v_add_u32 v7, s{T1}, v13
        v_cmp_lt_u32 vcc, 3, v5
        v_mov_b32 v13, 512
        s_nop 0
        v_cndmask_b32 v6, v6, v7, vcc
        v_cmp_lt_u32 vcc, 8, v5
        s_nop 1
        v_cndmask_b32 v6, v6, v13, vcc
        v_lshl_add_u32 v{8+n}, v4, 10, v6
        """)
    a(f"s_lshl_b32 s{sB}, s{sW}, 12")

    def xt_dma(n):
        a(f"s_add_u32 m0, s{sB}, {L_XT + n*1024}")
        a("s_nop 0")
        a.vmem("T", f"buffer_load_dwordx4 v{8+n}, {R(R_X)}, 0 offen lds")

    a(f"""
    v_mul_u32_u24 v4, 0x4925, v{vL}
    v_lshrrev_b32 v4, 18, v4
    v_mul_u32_u24 v5, 14, v4
    v_sub_u32 v5, v{vL}, v5
    s_mul_i32 s{T0}, s{sC16}, 224
    v_lshl_add_u32 v5, v5, 4, s{T0}
    v_mul_u32_u24 v6, 3584, v4
    v_add_u32 v14, v5, v6
    v_sub_u32 v15, {3*3584}, v6
    v_add_u32 v15, v5, v15
    v_sub_u32 v16, {256*3584}, v6
    v_cmp_eq_u32 vcc, 0, v4
    v_add_u32 v16, v5, v16
    s_mul_i32 s{sH}, s{sW}, 7168
    s_add_u32 s{sG}, s{sRC}, s{sW}
    v_cndmask_b32 v16, v16, v5, vcc
    s_and_b32 s{T2}, s{sC16}, 1
    s_lshl_b32 s{T0}, s{T2}, 5
    s_cmp_eq_u32 s{T2}, 0
    s_cselect_b32 s{T1}, 192, 0
    s_add_u32 s{T0}, s{T0}, s{sH}
    s_add_u32 s{T1}, s{T1}, s{sH}
    v_lshrrev_b32 v4, 2, v{vL}
    v_mul_u32_u24 v4, 224, v4
    v_and_b32 v5, 3, v{vL}
    v_lshl_add_u32 v4, v5, 3, v4
    v_add_u32 v19, s{T0}, v4
    v_add_u32 v20, s{T1}, v4
    v_add_u32 v21, s{sH}, v{vL16}
    v_add_u32 v22, {8*7168}, v19
    v_add_u32 v23, {8*7168}, v20
    v_add_u32 v24, {8*7168}, v21
    s_mul_i32 s{T0}, s{sW}, 448
    s_add_u32 s{T0}, s{T0}, {L_CS}
    v_lshl_add_u32 v25, v{vG}, 4, s{T0}
    """)
    RLF, CSV, ONE = 196, 224, 252
    for r in range(4):
        a(f"v_mov_b32 v{ONE+r}, s{sONES}")

    W1S = 132

    def w1_dma(n, q):
        toreg = n >= 2
        dst = (vr(W1S + ((n - 2) * 8 + q) * 4, 4) + ", ") if toreg else ""
        sfx = "" if toreg else " lds"
        if q == 0:
            a(f"""
            s_add_u32 s{T2}, s{sG}, {4*n}
            s_and_b32 s{T2}, s{T2}, 15
            s_mul_i32 s{sCUR}, s{T2}, {16*3584}
            """)
        a(f"s_mov_b64 exec, s[{sEX}:{sEX+1}]")
        if not toreg:
            a(f"s_add_u32 m0, s{sH}, {n*4*7168 + q*896}")
        if q < 4:
            a(f"s_add_u32 s{T0}, s{sCUR}, {4*q*3584}")
            a.vmem(f"W1_{n}", f"buffer_load_dwordx4 {dst}v14, {R(R_W1)}, s{T0} offen{sfx}")
        elif q == 4:
            a(f"""
            s_sub_u32 s{T0}, {509*3584}, s{sCUR}
            s_cmp_eq_u32 s{sCUR}, 0
            s_cselect_b32 s{T0}, {256*3584}, s{T0}
            s_cselect_b64 s[{sM}:{sM+1}], -1, 0
            v_cndmask_b32 v4, v15, v16, s[{sM}:{sM+1}]
            """)
            a.vmem(f"W1_{n}", f"buffer_load_dwordx4 {dst}v4, {R(R_W1)}, s{T0} offen{sfx}")
        else:
            a(f"s_sub_u32 s{T0}, {(509-4*(q-4))*3584}, s{sCUR}")
            a.vmem(f"W1_{n}", f"buffer_load_dwordx4 {dst}v15, {R(R_W1)}, s{T0} offen{sfx}")
        a("s_mov_b64 exec, -1")

    def w1_unstage(n):
        a.vwait(f"W1_{n}")
        a(f"s_mov_b64 exec, s[{sEX}:{sEX+1}]")
        for q in range(8):
            a(f"ds_write_b128 v24, {vr(W1S+((n-2)*8+q)*4,4)} offset:{(n-2)*4*7168+q*896}")
        a("s_mov_b64 exec, -1")
        a("s_waitcnt lgkmcnt(0)")

    first_rl = [True]

    def relayout(n):
        a.vwait(f"W1_{n}")
        hi3 = 3 if n >= 2 else 0
        off0 = (n % 2) * 4 * 7168
        for u in range(7):
            base = (19 if u < 6 else 20) + hi3
            off = off0 + (u * 32 if u < 6 else 0)
            a(f"ds_read_b64_tr_b16 {vr(RLF+4*u,2)}, v{base} offset:{off}")
            a(f"ds_read_b64_tr_b16 {vr(RLF+4*u+2,2)}, v{base} offset:{off+3584}")
        a("s_waitcnt lgkmcnt(0)")
        for u in range(7):
            a(f"ds_write_b128 v{21+hi3}, {vr(RLF+4*u,4)} offset:{off0+u*1024}")
            mfma(a, vr(CSV + 4 * u, 4), vr(RLF + 4 * u, 4), vr(ONE, 4), "0" if first_rl[0] else None)
        first_rl[0] = False
        a("s_waitcnt lgkmcnt(0)")

    a(f"""
    v_bfe_u32 v4, v{vL}, 1, 2
    v_xor_b32 v4, v4, v{vG}
    v_and_b32 v5, 1, v{vL}
    v_lshl_or_b32 v4, v4, 1, v5
    v_lshrrev_b32 v5, 3, v{vL}
    v_lshlrev_b32 v5, 10, v5
    v_lshl_add_u32 v4, v4, 4, v5
    s_lshl_b32 s{T0}, s{sE}, 7
    s_mul_i32 s{T1}, s{sW}, {448*1024}
    s_add_u32 s{T0}, s{T0}, s{T1}
    v_add_u32 v17, s{T0}, v4
    s_mul_i32 s{T0}, s{sW}, {DSTR}
    v_add_u32 v18, s{T0}, v{vL16}
    v_mov_b32 v{hF}, {L_F}
    v_mov_b32 v{hONE}, 1
    s_lshl_b32 s{T0}, s{sW}, 2
    v_add_u32 v{hFw}, s{T0}, v{hF}
    v_lshl_add_u32 v4, v{vL}, 2, v{hF}
    v_mov_b32 v5, 0
    ds_write_b32 v4, v5
    """)
    W2B = 32

    def w2_load(i):
        if i % 4 == 0:
            pk = DPERM[i // 4]
            a(f"s_{'add' if pk < 7 else 'sub'}_u32 s{sA}, {pk}, s{sRD}\ns_lshl_b32 s{sA}, s{sA}, 15")
        a(f"s_add_u32 s{T1}, s{sA}, {(i%4)*8192}")
        a.vmem(f"W2_{i//4}", f"buffer_load_dwordx4 {vr(W2B+4*i,4)}, v17, {R(R_W2)}, s{T1} offen")

    W2SAFE = (RLF - W2B) // 4
    lo = [lambda i=i: w2_load(i) for i in range(56)]
    nlo = [0]

    npz = [0]

    def pause():
        if cfg["pause"]:
            npz[0] += 1
            waitf(a, f"L_hp{npz[0]}", F_PAUSE, hF, 31, 0, cmp="eq")

    def fill(n, limit=56):
        for k in range(n):
            if lo and nlo[0] < limit:
                if k % cfg["pchk"] == 0:
                    pause()
                lo.pop(0)()
                nlo[0] += 1

    def w1_slot(n):
        for qq in range(8):
            if qq % cfg["pchk"] == 0:
                pause()
            w1_dma(n, qq)

    q = cfg["q"]
    a(f"""
    v_lshrrev_b32 v4, 2, v{vI}
    v_and_b32 v5, 3, v{vI}
    v_xor_b32 v5, v5, v{vG}
    v_lshlrev_b32 v5, 4, v5
    v_lshl_add_u32 v5, v{vI}, 10, v5
    s_and_b32 s{T0}, s{sW}, 1
    s_lshl_b32 s{T1}, s{T0}, 14
    v_add_u32 v5, s{T1}, v5
    """)
    for k3 in range(4):
        a(f"v_xor_b32 v6, {k3}, v4")
        a(f"v_lshl_add_u32 v{100+k3}, v6, 6, v5")
    a(f"""
    s_lshl_b32 s{T0}, s{T0}, 6
    s_add_u32 s{T0}, s{T0}, {L_SA}
    v_lshl_add_u32 v104, v{vG}, 4, s{T0}
    v_lshl_add_u32 v105, v{vI}, 2, s{T0}
    v_cmp_eq_u32 s[{R_ST}:{R_ST+1}], v4, v{vG}
    v_and_b32 v106, 3, v{vI}
    """)
    a.stamp()
    for k in range(q[0]):
        trig_dma(k)
    a.vwait("A")
    a("s_waitcnt lgkmcnt(0)")
    a.stamp()
    a("s_barrier")
    a.stamp()
    for ks in range(16):
        a(f"ds_read_b128 {vr(32+4*ks,4)}, v{100+(ks&3)} offset:{L_XA + (ks>>2)*256}")
    a(f"""
    s_cmp_ge_u32 s{sW}, 2
    s_cbranch_scc1 L_h_sq
    """)
    for ks in range(16):
        a(f"s_waitcnt lgkmcnt({min(15, 15-ks)})")
        mfma(a, "v[96:99]", vr(32 + 4 * ks, 4), vr(ONE, 4), "0" if ks == 0 else None)
    a.nop(8)
    a("""
    s_mov_b32 exec_lo, 0x00010001
    s_mov_b32 exec_hi, 0x00010001
    ds_write_b128 v104, v[96:99]
    s_branch L_h_stat_done
    """)
    a.label("L_h_sq")
    for ks in range(16):
        a(f"s_waitcnt lgkmcnt({min(15, 15-ks)})")
        mfma(a, "v[96:99]", vr(32 + 4 * ks, 4), vr(32 + 4 * ks, 4), "0" if ks == 0 else None)
    a(f"""
    v_cmp_eq_u32 vcc, 1, v106
    v_cmp_eq_u32 s[{sM}:{sM+1}], 2, v106
    v_cmp_eq_u32 s[{R_ST+2}:{R_ST+3}], 3, v106
    """)
    a.nop(6)
    a(f"""
    v_cndmask_b32 v96, v96, v97, vcc
    v_cndmask_b32 v96, v96, v98, s[{sM}:{sM+1}]
    v_cndmask_b32 v96, v96, v99, s[{R_ST+2}:{R_ST+3}]
    s_mov_b64 exec, s[{R_ST}:{R_ST+1}]
    ds_write_b32 v105, v96 offset:128
    """)
    a.label("L_h_stat_done")
    a("s_mov_b64 exec, -1")
    for k in range(q[0], q[0] + q[1]):
        trig_dma(k)
    a("s_waitcnt lgkmcnt(0)")
    a.stamp()
    a("s_barrier")
    a.stamp()
    for k in range(q[0] + q[1], 16):
        trig_dma(k)
    for n in range(4):
        xt_dma(n)
    for qq in range(q[2]):
        w1_dma(0, qq)
    a.vwait("T")
    sig(a, F_TRIG, hF, hONE)
    a.stamp()
    if cfg["touch"] & 2:
        touch(a, R_W2, 26)
    for qq in range(q[2], 8):
        if qq % cfg["pchk"] == 0:
            pause()
        w1_dma(0, qq)
    w1_slot(1)
    w1_slot(2)
    w1_slot(3)
    a.stamp()
    W2S1 = (W1S - W2B) // 4
    relayout(0)
    fill(q[3], W2S1)
    relayout(1)
    fill(q[4], W2S1)
    a.stamp()
    waitf(a, "L_htc", F_TC, hF, 31, 256)
    a.stamp()
    w1_unstage(2)
    relayout(2)
    w1_unstage(3)
    relayout(3)
    a.nop(4)
    a("s_mov_b32 exec_lo, 0x00010001")
    a("s_mov_b32 exec_hi, 0x00010001")
    for u in range(7):
        a(f"ds_write_b128 v25, {vr(CSV+4*u,4)} offset:{u*64}")
    a("s_mov_b64 exec, -1")
    a("s_waitcnt lgkmcnt(0)")
    sig(a, F_W1, hF, hONE)
    a.stamp()
    fill(100)
    a.stamp()
    waitf(a, "L_hcd", F_CD, hF, 31, 256)
    a.stamp()

    def dump(ks):
        a.vwait(f"W2_{ks}")
        for p in range(4):
            a(f"ds_write_b128 v18, {vr(W2B+4*(ks*4+p),4)} offset:{(ks%DSL)*4096+p*1024}")

    for ks in range(DSL):
        dump(ks)
    a("s_waitcnt lgkmcnt(0)")
    sig(a, F_D1, hFw, hONE)
    a.stamp()
    a(f"""
    s_cmp_ge_u32 s{sW}, 1
    s_cbranch_scc1 L_hp3_done
    s_lshl_b32 s{T0}, s{sW}, 4
    s_add_u32 s{T0}, s{T0}, s{sRB}
    s_add_u32 s{T0}, s{T0}, 80
    s_lshl_b32 s{T0}, s{T0}, 8
    v_mov_b32 v4, s{T0}
    s_mul_i32 s{T0}, s{sW}, {4*(F_GO4-F_GO3)}
    v_add_u32 v5, s{T0}, v{hF}
    s_mov_b64 exec, 1
    s_mov_b32 s{T0}, 0
    """)
    a.label("L_hp3_loop")
    a(f"""
    buffer_load_dword v31, v4, {R(R_CNT)}, 0 offen sc1
    s_add_u32 s{T0}, s{T0}, 1
    s_cmp_ge_u32 s{T0}, 0x40000
    s_cbranch_scc1 L_hp3_exit
    s_waitcnt vmcnt(0)
    v_cmp_gt_u32 vcc, 16, v31
    s_cbranch_vccnz L_hp3_loop
    """)
    a.label("L_hp3_exit")
    a("s_mov_b64 exec, -1")
    sig(a, F_GO3, 5, hONE)
    a.label("L_hp3_done")
    waitf(a, "L_hs", F_S, hFw, 31, 64)
    for ks in range(DSL, 14):
        dump(ks)
    a("s_waitcnt lgkmcnt(0)")
    sig(a, F_D2, hFw, hONE)
    stamp_out(a, 4)


def main():
    cfg = {"hdepth": 4, "ddepth": 3, "h1ring": 7, "dump1": 8, "rot": 1, "diag": 0, "q": [2, 2, 4, 4, 4], "touch": 0, "probe": 2, "pause": 1, "pchk": 4, "ar3a": 6}
    out = f"cdna_kernels/{NAME}.s"
    for arg in sys.argv[1:]:
        if "=" in arg:
            k, v = arg.split("=")
            cfg[k] = [int(x) for x in v.split(",")] if k == "q" else int(v)
        else:
            out = arg
    a = Asm()
    a.diag = cfg["diag"]
    a.vstamp = 27
    a.sstamp = R_H1
    if a.diag:
        def stamp():
            n = a.nstamp
            a.nstamp += 1
            a(f"s_memtime s[{a.sstamp}:{a.sstamp+1}]")
            a("s_waitcnt lgkmcnt(0)")
            a(f"v_writelane_b32 v{a.vstamp}, s{a.sstamp}, {n}")
        a.stamp = stamp
    kname = NAME + "_kernel"
    a.raw(HEADER.rstrip("\n"))
    a.raw(f"; @launch grid=(256,1,1) block=(512,1,1) lds={LDS_TOTAL}")
    a.raw('.amdgcn_target "amdgcn-amd-amdhsa--gfx950"')
    a.raw(".text")
    a.raw(f".globl {kname}")
    a.raw(".p2align 8")
    a.raw(f".type {kname},@function")
    a.label(kname)
    prologue(a, cfg['rot'])
    compute(a, cfg)
    helper(a, cfg)
    a.label("L_end")
    a("s_endpgm")
    a.raw('.section .rodata,"a"')
    a.raw(".p2align 6")
    a.raw(f""".amdhsa_kernel {kname}
  .amdhsa_next_free_vgpr 256
  .amdhsa_next_free_sgpr 102
  .amdhsa_accum_offset 256
  .amdhsa_group_segment_fixed_size 0
  .amdhsa_kernarg_size 88
  .amdhsa_user_sgpr_count 2
  .amdhsa_user_sgpr_kernarg_segment_ptr 1
  .amdhsa_system_sgpr_workgroup_id_x 1
.end_amdhsa_kernel""")
    open(out, "w").write(a.text())


if __name__ == "__main__":
    main()
```

```python
import sys
from gen2 import (Asm, vr, srd, mfma, treduce4, allreduce_g, transpose4, NAME, ZA_OFF, ZA_SZ, Z512_OFF, Z512_SZ,
                  CNT_OFF, CNT_SZ, STAT_OFF, STAT_SZ, H_OFF, H_SZ, H1_OFF, H1_SZ, STAMP_OFF, OOB, HEADER)

LDS_TOTAL = 163840
CNT_SZ = 128 * 256
DPERM = [0, 1, 4, 5, 7, 8, 11, 12, 2, 3, 6, 9, 10, 13]
L_XA, L_GA, L_SA, L_XT, L_TR, L_F = 0, 32768, 65536, 81664, 98048, 163584
L_BX, L_CS = 147456, 151552
DSL, DSTR = 9, 9 * 4096
F_TRIG, F_TC, F_W1, F_CD, F_PAUSE, F_AR1, F_AR2, F_AR3, F_GO1, F_GO2, F_GO3 = range(11)
F_X, F_D1, F_S, F_D2 = 12, 16, 20, 24
F_AR4, F_GO4 = 28, 29
vF, vONE, vFw = 14, 15, 29
hF, hONE, hFw = 28, 29, 30

sW = 3
sRB, sC16, sSB, sE4, sPT, sE, sP, sT = 4, 5, 6, 7, 8, 9, 10, 11
R_X, R_CR, R_CI, R_DR, R_DI, R_W1, R_W2, R_OUT = 12, 16, 20, 24, 28, 32, 36, 40
R_ZA, R_Z5, R_CNT, R_ST, R_H, R_H1, R_DBG, R_CF = 44, 48, 52, 56, 60, 64, 68, 72
T0, T1, T2, T3 = 76, 77, 78, 79
sK4, sK8, sK12 = 80, 81, 82
sONES, sHI = 83, 84
sA, sB, sC, sD, sF, sG, sH = 85, 86, 87, 88, 89, 90, 91
sEX = 92
sRC, sRD, sCUR = 98, 99, 100
sM = 94
sWS = 96
vL, vG, vI, vL16 = 0, 1, 2, 3


def R(b):
    return f"s[{b}:{b+3}]"


def sig(a, word, vf, vone, per_wave=False):
    a("s_mov_b64 exec, 1")
    a(f"ds_add_u32 v{vf}, v{vone} offset:{4*word}")
    a("s_mov_b64 exec, -1")


def waitf(a, name, word, vf, vtmp, target, cmp="ge"):
    a(f"s_mov_b32 s{T3}, 0")
    a.label(f"{name}_l")
    a(f"""
    ds_read_b32 v{vtmp}, v{vf} offset:{4*word}
    s_add_u32 s{T3}, s{T3}, 1
    s_waitcnt lgkmcnt(0)
    v_readfirstlane_b32 s{T2}, v{vtmp}
    s_cmp_ge_u32 s{T3}, 0x200000
    s_cbranch_scc1 {name}_x
    s_cmp_{'lt' if cmp == 'ge' else 'lg'}_u32 s{T2}, {target // 64}
    s_cbranch_scc1 {name}_l
    """)
    a.label(f"{name}_x")


def poll(a, name, vaddr, vtmp, lanes_mask, target, goword, vf, vone):
    a(f"""
    s_cmp_lg_u32 s{sW}, 0
    s_cbranch_scc1 {name}_others
    s_mov_b64 exec, {lanes_mask}
    s_mov_b32 s{T0}, 0
    """)
    a.label(f"{name}_loop")
    a(f"""
    buffer_load_dword v{vtmp}, v{vaddr}, {R(R_CNT)}, 0 offen sc1
    s_add_u32 s{T0}, s{T0}, 1
    s_cmp_ge_u32 s{T0}, 0x40000
    s_cbranch_scc1 {name}_exit
    s_waitcnt vmcnt(0)
    v_cmp_gt_u32 vcc, {target}, v{vtmp}
    s_cbranch_vccnz {name}_loop
    """)
    a.label(f"{name}_exit")
    a("s_mov_b64 exec, -1")
    sig(a, goword, vf, vone)
    a(f"s_branch {name}_done")
    a.label(f"{name}_others")
    waitf(a, f"{name}_w", goword, vf, vtmp, 64)
    a.label(f"{name}_done")


def arrive(a, name, vaddr, vtmp, lanes_mask, arword, vf, vone):
    a(f"""
    s_mov_b64 exec, 1
    ds_add_rtn_u32 v{vtmp}, v{vf}, v{vone} offset:{4*arword}
    ds_sub_u32 v{vf}, v{vone} offset:{4*F_PAUSE}
    s_mov_b64 exec, -1
    s_waitcnt lgkmcnt(0)
    v_readfirstlane_b32 s{T0}, v{vtmp}
    s_nop 3
    s_cmp_lg_u32 s{T0}, 3
    s_cbranch_scc1 {name}_skip
    s_mov_b64 exec, {lanes_mask}
    buffer_atomic_add v{vone}, v{vaddr}, {R(R_CNT)}, 0 offen sc1
    s_mov_b64 exec, -1
    """)
    a.label(f"{name}_skip")


def touch(a, rsrc, vdst):
    a(f"""
    s_lshr_b32 s{T0}, s2, 3
    s_mul_i32 s{T0}, s{T0}, {448*128}
    s_lshl_b32 s{T1}, s{sW}, 13
    s_add_u32 s{T0}, s{T0}, s{T1}
    s_add_u32 s{T1}, s{T0}, 32768
    v_lshlrev_b32 v4, 7, v{vL}
    """)
    a.vmem("PF", f"buffer_load_dword v{vdst}, v4, {R(rsrc)}, s{T0} offen")
    a.vmem("PF", f"buffer_load_dword v{vdst}, v4, {R(rsrc)}, s{T1} offen")


def stamp_out(a, wave_add):
    if not a.diag:
        return
    a("s_waitcnt vmcnt(0)")
    a.stamp()
    srd(a, R_ZA, sWS, sWS + 1, 1 << 20, STAMP_OFF)
    a(f"""
    s_lshl_b32 s{T0}, s2, 3
    s_add_u32 s{T0}, s{T0}, s{sW}
    s_add_u32 s{T0}, s{T0}, {wave_add}
    s_lshl_b32 s{T0}, s{T0}, 8
    v_lshl_add_u32 v4, v{vL}, 2, s{T0}
    buffer_store_dword v{a.vstamp}, v4, {R(R_ZA)}, 0 offen
    """)


P_X, P_CR, P_CI, P_DR, P_DI, P_W1, P_W2, P_OUT, P_DBG = 44, 46, 48, 50, 52, 56, 58, 60, 62


def prologue(a, ROT):
    a(f"""
    s_cmp_ge_u32 s2, 256
    s_cbranch_scc1 L_end
    s_load_dwordx16 s[44:59], s[0:1], 0
    s_load_dwordx4 s[60:63], s[0:1], 64
    s_load_dwordx2 s[96:97], s[0:1], 80
    v_lshrrev_b32 v4, 6, v0
    v_and_b32 v0, 63, v0
    v_lshrrev_b32 v1, 4, v0
    v_readfirstlane_b32 s79, v4
    v_and_b32 v2, 15, v0
    v_lshlrev_b32 v3, 4, v0
    """)
    if a.diag:
        a(f"v_mov_b32 v{a.vstamp}, 0")
    a.stamp()
    a(f"""
    s_and_b32 s{sW}, s{T3}, 3
    s_and_b32 s{T0}, s2, 7
    s_lshr_b32 s{T1}, s2, 3
    s_lshl_b32 s{sSB}, s{T0}, 3
    s_and_b32 s{T2}, s{T1}, 7
    s_add_u32 s{sSB}, s{sSB}, s{T2}
    s_lshr_b32 s{sE4}, s{T1}, 3
    s_lshl_b32 s{sC}, s{sW}, 13
    s_cmp_ge_u32 s{T3}, 4
    s_cbranch_scc1 L_helper
    """)


def late_setup(a, ROT):
    a(f"""
    s_and_b32 s{T0}, s2, 7
    s_lshr_b32 s{T1}, s2, 3
    s_and_b32 s{T2}, s{T1}, 1
    s_lshl_b32 s{sRB}, s{T0}, 1
    s_add_u32 s{sRB}, s{sRB}, s{T2}
    s_lshr_b32 s{sC16}, s{T1}, 1
    s_and_b32 s{T2}, s{sC16}, 1
    s_lshl_b32 s{sPT}, s{sRB}, 1
    s_add_u32 s{sPT}, s{sPT}, s{T2}
    s_lshr_b32 s{sE}, s{sC16}, 1
    s_lshr_b32 s{sP}, s{sPT}, 4
    s_and_b32 s{sT}, s{sPT}, 15
    s_mov_b32 s{sK4}, 4096
    s_mov_b32 s{sK8}, 8192
    s_mov_b32 s{sK12}, 12288
    s_mov_b32 s{sONES}, 0x3f803f80
    s_mov_b32 s{sHI}, 0xffff0000
    s_mov_b32 s{sEX}, -1
    s_mov_b32 s{sEX+1}, 0x00ffffff
    s_and_b32 s{sRC}, s{sRB}, 14
    s_mul_i32 s{sRC}, s{sRC}, {ROT}
    s_bfe_u32 s{T0}, s{sRB}, 0x10001
    s_mul_i32 s{sRD}, s{T0}, {7*ROT}
    """)
    srd(a, R_DBG, P_DBG, P_DBG + 1, 256)
    a(f"""
    s_cmp_eq_u32 s{sP}, 0
    s_cselect_b32 s{R_CF}, s{P_CR}, s{P_CI}
    s_cselect_b32 s{R_CF+1}, s{P_CR+1}, s{P_CI+1}
    s_mov_b32 s{R_CF+2}, {2048*4096}
    s_mov_b32 s{R_CF+3}, 0x20000
    """)
    srd(a, R_OUT, P_OUT, P_OUT + 1, 2048 * 1024)
    srd(a, R_W2, P_W2, P_W2 + 1, 1792 * 1024)
    srd(a, R_W1, P_W1, P_W1 + 1, 512 * 3584)
    srd(a, R_CI, P_CI, P_CI + 1, 2048 * 4096)
    srd(a, R_CR, P_CR, P_CR + 1, 2048 * 4096)
    srd(a, R_X, P_X, P_X + 1, 2048 * 1024)
    srd(a, R_CNT, sWS, sWS + 1, CNT_SZ, CNT_OFF)


def compute(a, cfg):
    a.sstamp = R_DI
    a(f"""
    s_and_b32 s{T0}, s{sW}, 1
    s_lshl_b32 s{T1}, s{T0}, 2
    s_lshr_b32 s{T2}, s{sW}, 1
    s_add_u32 s{T1}, s{T1}, s{T2}
    s_lshl_b32 s{T2}, s{sSB}, 3
    s_add_u32 s{sA}, s{T1}, s{T2}
    s_lshl_b32 s{sB}, s{T0}, 7
    v_xor_b32 v13, s{sB}, v{vL16}
    s_waitcnt lgkmcnt(0)
    """)
    a.stamp()
    srd(a, R_X, P_X, P_X + 1, 2048 * 1024)
    for q in range(8):
        r = q & 3
        add = 2 * (q >> 2)
        if r == 0:
            a(f"s_add_u32 s{T0}, s{sA}, {add}")
        elif r == 1:
            a(f"s_sub_u32 s{T0}, {2048-add}, s{sA}")
            if add == 0:
                a(f"s_cmp_eq_u32 s{sA}, 0\ns_cselect_b32 s{T0}, 512, s{T0}")
        elif r == 2:
            a(f"s_add_u32 s{T0}, s{sA}, {1024+add}")
        else:
            a(f"s_sub_u32 s{T0}, {1024-add}, s{sA}")
            if add == 0:
                a(f"s_cmp_eq_u32 s{sA}, 0\ns_cselect_b32 s{T0}, 1536, s{T0}")
        a(f"""
        s_lshl_b32 s{T0}, s{T0}, 10
        s_add_u32 m0, s{sC}, {L_XA + q*1024}
        v_xor_b32 v4, {q*16}, v13
        """)
        a.vmem("A", f"buffer_load_dwordx4 v4, {R(R_X)}, s{T0} offen lds")
    late_setup(a, cfg["rot"])
    if cfg["touch"] & 1:
        touch(a, R_W1, 250)
    if cfg["touch"] & 4:
        touch(a, R_W2, 250)
    srd(a, R_ZA, sWS, sWS + 1, ZA_SZ, ZA_OFF)
    srd(a, R_Z5, sWS, sWS + 1, Z512_SZ, Z512_OFF)
    srd(a, R_ST, sWS, sWS + 1, STAT_SZ, STAT_OFF)
    srd(a, R_H, sWS, sWS + 1, H_SZ, H_OFF)
    srd(a, R_H1, sWS, sWS + 1, H1_SZ, H1_OFF)
    a.stamp()
    vT, vJ2 = 26, 28
    vC1a, vC1p, vC2 = 29, 30, 31
    CF0, CF1 = 24, 25
    a(f"""
    s_lshr_b32 s{sA}, s{sW}, 1
    s_and_b32 s{sB}, s{sW}, 1
    s_lshl_b32 s{T0}, s{sT}, 6
    s_add_u32 s{T0}, s{T0}, s{sP}
    s_lshl_b32 s{T1}, s{sA}, 5
    s_add_u32 s{T0}, s{T0}, s{T1}
    v_lshl_add_u32 v{vT}, v{vI}, 1, s{T0}
    v_cmp_eq_u32 vcc, 0, v{vT}
    s_lshl_b32 s{T0}, s{sE}, 6
    s_lshl_b32 s{T1}, s{sB}, 5
    s_add_u32 s{T0}, s{T0}, s{T1}
    v_lshl_add_u32 v{vJ2}, v{vG}, 3, s{T0}
    v_lshlrev_b32 v6, 12, v{vT}
    v_mov_b32 v7, {1024*4096}
    v_cndmask_b32 v7, v6, v7, vcc
    """)
    a.vmem("CF", f"buffer_load_ushort v{CF0}, v6, {R(R_CF)}, 0 offen offset:1024")
    a.vmem("CF", f"buffer_load_ushort v{CF1}, v7, {R(R_CF)}, 0 offen offset:1024")
    a(f"""
    s_lshl_b32 s{T0}, s{sE4}, 2
    s_and_b32 s{T1}, s{sSB}, 3
    s_add_u32 s{T0}, s{T0}, s{T1}
    s_lshl_b32 s{T0}, s{T0}, 10
    v_lshl_add_u32 v{vC1a}, v{vL}, 8, s{T0}
    s_lshr_b32 s{T0}, s{sE}, 1
    s_lshl_b32 s{T0}, s{T0}, 12
    s_and_b32 s{T1}, s{sPT}, 3
    s_lshl_b32 s{T1}, s{T1}, 8
    s_add_u32 s{T0}, s{T0}, s{T1}
    v_lshl_add_u32 v{vC1p}, v{vL}, 10, s{T0}
    s_lshl_b32 s{T0}, s{sRB}, 8
    s_add_u32 s{T0}, s{T0}, {64*256}
    v_mov_b32 v{vC2}, s{T0}
    """)
    a(f"""
    v_mov_b32 v{vF}, {L_F}
    v_mov_b32 v{vONE}, 1
    v_lshrrev_b32 v4, 2, v{vI}
    v_xor_b32 v4, s{sW}, v4
    v_and_b32 v5, 3, v{vI}
    v_xor_b32 v5, v5, v{vG}
    v_lshlrev_b32 v5, 4, v5
    s_add_u32 s{T0}, s{sC}, {L_GA}
    """)
    for kp in range(4):
        a(f"""
        v_xor_b32 v6, {kp}, v4
        v_lshl_add_u32 v6, v6, 6, v5
        v_lshl_add_u32 v{16+kp}, v{vI}, 10, v6
        v_lshl_add_u32 v6, v{vI}, 8, v6
        v_add_u32 v{20+kp}, s{T0}, v6
        """)
    GF, XFB, ACC = 32, 64, 128
    gf = lambda typ, kp: GF + (typ * 4 + kp) * 4
    xf = lambda b, Q, tau: XFB + b * 32 + (Q * 2 + tau) * 4
    acc = lambda Q, tau, typ: ACC + ((Q * 2 + tau) * 2 + typ) * 4
    CSA = 192
    for r in range(4):
        a(f"v_mov_b32 v{216+r}, s{sONES}")
    SIG, C1, S1, CSM = 200, 202, 204, 206
    a(f"""
    v_and_b32 v4, 1, v{vI}
    v_lshlrev_b32 v5, 31, v4
    v_or_b32 v{SIG}, 1.0, v5
    v_and_b32 v5, 2, v{vI}
    v_lshlrev_b32 v5, 30, v5
    v_or_b32 v5, 1.0, v5
    v_cmp_eq_u32 vcc, 0, v4
    v_mov_b32 v{SIG+1}, v{SIG}
    v_and_b32 v6, 3, v{vI}
    v_cndmask_b32 v{C1}, 0, v5, vcc
    v_cndmask_b32 v{S1}, v5, 0, vcc
    v_cmp_eq_u32 vcc, 0, v6
    v_mov_b32 v{C1+1}, v{C1}
    v_mov_b32 v{S1+1}, v{S1}
    v_cndmask_b32 v{CSM}, 0, 4.0, vcc
    """)
    a(f"""
    v_lshlrev_b32 v9, 4, v{vG}
    v_add_u32 v9, {L_SA}, v9
    s_lshl_b32 s{T0}, s{sE4}, 2
    s_add_u32 s{T0}, s{T0}, s{sW}
    s_lshl_b32 s{T0}, s{T0}, 14
    s_lshl_b32 s{T1}, s{sSB}, 8
    s_add_u32 s{T0}, s{T0}, s{T1}
    v_lshl_add_u32 v12, v{vI}, 4, s{T0}
    v_lshl_add_u32 v12, v{vG}, 18, v12
    v_or_b32 v13, s{sSB}, v{vG}
    v_cmp_eq_u32 s[{sM}:{sM+1}], 0, v13
    v_mov_b32 v220, 0x3b000000
    v_mov_b32 v221, 0x3b000000
    v_mov_b32 v222, 0x3727c5ac
    v_mov_b32 v223, 0x3727c5ac
    """)
    a.vwait("A")
    a("s_barrier")
    a.stamp()
    for typ in range(2):
        for kp in range(4):
            a(f"ds_read_b128 {vr(gf(typ,kp),4)}, v{20+kp} offset:{typ*4096}")

    def xreads(kp):
        for Q in range(4):
            for tau in range(2):
                a(f"ds_read_b128 {vr(xf(kp&1,Q,tau),4)}, v{16+kp} offset:{L_XA + Q*256 + tau*16384}")

    xreads(0)
    for kp in range(4):
        a("s_waitcnt lgkmcnt(0)")
        if kp < 3:
            xreads(kp + 1)
        if kp == 3:
            a.stamp()
            a("s_barrier")
            a("ds_read_b128 v[88:91], v9")
            a("ds_read_b128 v[92:95], v9 offset:64")
            a("ds_read_b128 v[80:83], v9 offset:128")
            a("ds_read_b128 v[84:87], v9 offset:192")
        fill = []
        if kp == 3:
            fill = ["s_nop 0"] * 9 + ["s_waitcnt lgkmcnt(0)"]
            for r in range(0, 8, 2):
                fill.append(f"v_pk_mul_f32 {vr(88+r,2)}, {vr(88+r,2)}, v[220:221]")
            for r in range(0, 8, 2):
                fill.append(f"v_pk_fma_f32 {vr(80+r,2)}, {vr(80+r,2)}, v[220:221], v[222:223]")
            for r in range(0, 8, 2):
                fill.append(f"v_pk_fma_f32 {vr(80+r,2)}, {vr(88+r,2)}, {vr(88+r,2)}, {vr(80+r,2)} neg_lo:[1,0,0] neg_hi:[1,0,0]")
            for r in range(8):
                fill.append(f"v_max_f32 v{80+r}, v222, v{80+r}")
            for r in range(8):
                fill.append(f"v_rsq_f32 v{80+r}, v{80+r}")
            fill += ["v_mov_b32 v73, v81", "v_mov_b32 v75, v83",
                     f"v_cndmask_b32 v81, v81, 0, s[{sM}:{sM+1}]", f"v_cndmask_b32 v83, v83, 0, s[{sM}:{sM+1}]"]
        per = (len(fill) + 15) // 16
        for typ in range(2):
            mfma(a, vr(CSA + 4 * typ, 4), "v[216:219]", vr(gf(typ, kp), 4), "0" if kp == 0 else None)
        for Q in range(4):
            for tau in range(2):
                for typ in range(2):
                    mfma(a, vr(acc(Q, tau, typ), 4), vr(xf(kp & 1, Q, tau), 4), vr(gf(typ, kp), 4), "0" if kp == 0 else None)
                    for _ in range(per):
                        if fill:
                            f = fill.pop(0)
                            if f != "s_nop 0":
                                a(f)
    sig(a, F_PAUSE, vF, vONE)
    a(f"v_mul_f32 v{CSA}, v{CSM}, v{CSA}")
    a(f"v_mul_f32 v{CSA+4}, v{CSM}, v{CSA+4}")
    a.stamp()
    KK, MM, KT = 80, 88, 72
    a.nop(4)
    for tau in range(2):
        for r in (0, 2):
            C = [acc(Q, tau, 0) + r for Q in range(4)]
            I = [acc(Q, tau, 1) + r for Q in range(4)]
            t0, t1, t2, t3 = 208, 210, 212, 214
            a(f"""
            v_pk_fma_f32 {vr(C[0],2)}, {vr(SIG,2)}, {vr(C[2],2)}, {vr(C[0],2)}
            v_pk_fma_f32 {vr(I[0],2)}, {vr(SIG,2)}, {vr(I[2],2)}, {vr(I[0],2)}
            v_pk_add_f32 {vr(t0,2)}, {vr(C[1],2)}, {vr(C[3],2)}
            v_pk_add_f32 {vr(t1,2)}, {vr(I[1],2)}, {vr(I[3],2)} neg_lo:[0,1] neg_hi:[0,1]
            v_pk_add_f32 {vr(t2,2)}, {vr(I[1],2)}, {vr(I[3],2)}
            v_pk_add_f32 {vr(t3,2)}, {vr(C[3],2)}, {vr(C[1],2)} neg_lo:[0,1] neg_hi:[0,1]
            v_pk_fma_f32 {vr(C[0],2)}, {vr(C1,2)}, {vr(t0,2)}, {vr(C[0],2)}
            v_pk_fma_f32 {vr(I[0],2)}, {vr(C1,2)}, {vr(t2,2)}, {vr(I[0],2)}
            v_pk_fma_f32 {vr(C[0],2)}, {vr(S1,2)}, {vr(t1,2)}, {vr(C[0],2)}
            v_pk_fma_f32 {vr(I[0],2)}, {vr(S1,2)}, {vr(t3,2)}, {vr(I[0],2)}
            """)
    OZ = 100
    for tau in range(2):
        for typ in range(2):
            d = acc(0, tau, typ)
            for r in range(4):
                a(f"v_fma_f32 v{d+r}, -v{MM+4*tau+r}, v{CSA+4*typ}, v{d+r}")
            sg = "-" if typ else ""
            e, f = 108, 109
            a(f"""
            v_mul_f32 v{e}, v{KK+4*tau}, v{d}
            v_mul_f32 v{f}, v{KK+4*tau+2}, v{d+2}
            v_fma_f32 v{e}, {sg}v{KK+4*tau+1}, v{d+1}, v{e}
            v_fma_f32 v{f}, {sg}v{KK+4*tau+3}, v{d+3}, v{f}
            v_add_f32 v{OZ+(typ*2+0)*2+tau}, v{e}, v{f}
            v_sub_f32 v{OZ+(typ*2+1)*2+tau}, v{e}, v{f}
            """)
    for arr in range(4):
        a(f"v_cvt_pk_bf16_f32 v{112+arr}, v{OZ+2*arr}, v{OZ+2*arr+1}")
    a.nop(2)
    transpose4(a, 112, 113, 114, 115)
    a.nop(1)
    a.vmem("SZ", f"buffer_store_dwordx4 v[112:115], v12, {R(R_ZA)}, 0 offen sc1")
    a(f"""
    s_cmp_lg_u32 s{sSB}, 0
    s_cbranch_scc1 L_noex
    v_mul_f32 v108, v{KT+1}, v{acc(0,0,0)+1}
    v_mul_f32 v109, v{KT+1}, v{acc(0,0,1)+1}
    v_fma_f32 v108, v{KT+3}, v{acc(0,0,0)+3}, v108
    v_fma_f32 v109, -v{KT+3}, v{acc(0,0,1)+3}, v109
    s_lshl_b32 s{T0}, s{sE4}, 8
    s_lshl_b32 s{T1}, s{sW}, 6
    s_add_u32 s{T0}, s{T0}, s{T1}
    v_lshl_add_u32 v110, v{vI}, 2, s{T0}
    s_mov_b64 exec, 0xffff
    buffer_store_dword v108, v110, {R(R_Z5)}, 0 offen sc1
    buffer_store_dword v109, v110, {R(R_Z5)}, 0 offen offset:1024 sc1
    s_mov_b64 exec, -1
    """)
    a.label("L_noex")
    a.stamp()
    a(f"""
    s_cmp_lg_u32 s{sW}, 0
    s_cbranch_scc1 L_rdy_done
    v_mov_b32 v4, 0
    s_mov_b64 exec, 1
    s_mov_b32 s{T0}, 0
    """)
    a.label("L_rdy_loop")
    a(f"""
    buffer_load_dword v5, v4, {R(R_DBG)}, 0 offen sc1
    s_add_u32 s{T0}, s{T0}, 1
    s_cmp_ge_u32 s{T0}, 0x40000
    s_cbranch_scc1 L_rdy_exit
    s_waitcnt vmcnt(0)
    v_cmp_eq_u32 vcc, 0, v5
    s_cbranch_vccnz L_rdy_loop
    """)
    a.label("L_rdy_exit")
    a("s_mov_b64 exec, -1")
    a.label("L_rdy_done")
    a(f"""
    v_lshrrev_b32 v4, 2, v{vI}
    v_and_b32 v5, 3, v{vI}
    v_xor_b32 v5, v5, v{vG}
    v_lshlrev_b32 v5, 4, v5
    v_lshl_add_u32 v5, v{vI}, 10, v5
    s_mul_i32 s{T0}, s{sA}, {32768+16384}
    s_add_u32 s{T0}, s{T0}, {L_TR}
    s_lshl_b32 s{T1}, s{sA}, 15
    s_sub_u32 s{T1}, 16384, s{T1}
    v_add_u32 v5, s{T0}, v5
    """)
    for k3 in range(4):
        a(f"""
        v_xor_b32 v6, {k3}, v4
        v_lshl_add_u32 v{8+k3}, v6, 6, v5
        v_add_u32 v{16+k3}, s{T1}, v{8+k3}
        """)
    a(f"""
    s_lshl_b32 s{T0}, s{sA}, 12
    s_add_u32 s{T0}, s{T0}, {L_XT}
    v_lshl_add_u32 v4, v{vI}, 8, s{T0}
    s_lshl_b32 s{T1}, s{sB}, 5
    v_lshl_add_u32 v5, v{vG}, 3, s{T1}
    v_lshlrev_b32 v7, 4, v{vI}
    v_xor_b32 v6, v5, v7
    v_add_u32 v20, v4, v6
    v_sub_u32 v6, {64+56}, v5
    v_xor_b32 v6, v6, v7
    v_add_u32 v21, v4, v6
    v_sub_u32 v6, {64+64}, v5
    v_cmp_eq_u32 s[{sM}:{sM+1}], 0, v{vJ2}
    v_mov_b32 v23, {9*16}
    s_nop 0
    v_cndmask_b32 v6, v6, v23, s[{sM}:{sM+1}]
    v_xor_b32 v6, v6, v7
    v_add_u32 v22, v4, v6
    """)
    a.vwait_all()
    a.stamp()
    arrive(a, "L_ar1", vC1a, 4, "0xf", F_AR1, vF, vONE)
    a(f"s_lshl_b32 s{T0}, s{sW}, 2")
    a(f"v_add_u32 v{vFw}, s{T0}, v{vF}")
    a.stamp()
    waitf(a, "L_wtrig", F_TRIG, vF, 4, 256)
    a.stamp()
    XR = 36
    for mir in range(2):
        a(f"ds_read_b64 {vr(XR+6*mir,2)}, v20 offset:{mir*8192}")
        a(f"ds_read_b64 {vr(XR+6*mir+2,2)}, v21 offset:{mir*8192}")
        a(f"ds_read_u16 v{XR+6*mir+4}, v22 offset:{mir*8192}")
    TF = 128
    tf = lambda tl, ks: TF + (tl * 16 + ks) * 4
    for ks in range(16):
        for tl in range(2):
            base = (8 if tl == 0 else 16) + (ks & 3)
            a(f"ds_read_b128 {vr(tf(tl,ks),4)}, v{base} offset:{(ks>>2)*256}")
    XU = 48
    a("s_waitcnt lgkmcnt(15)")
    for mir in range(2):
        b, x = XU + mir * 8, XR + 6 * mir
        a(f"""
        v_lshlrev_b32 v{b}, 16, v{x}
        v_and_b32 v{b+1}, s{sHI}, v{x}
        v_lshlrev_b32 v{b+2}, 16, v{x+1}
        v_and_b32 v{b+3}, s{sHI}, v{x+1}
        v_lshlrev_b32 v{b+4}, 16, v{x+4}
        v_and_b32 v{b+5}, s{sHI}, v{x+3}
        v_lshlrev_b32 v{b+6}, 16, v{x+3}
        v_and_b32 v{b+7}, s{sHI}, v{x+2}
        """)
    a(f"""
    v_lshlrev_b32 v{CF0}, 16, v{CF0}
    v_lshlrev_b32 v{CF1}, 16, v{CF1}
    s_lshl_b32 s{T0}, s{sA}, 1
    s_add_u32 s{T0}, s{T0}, s{sP}
    s_lshl_b32 s{T0}, s{T0}, 18
    s_lshl_b32 s{T1}, s{sE}, 1
    s_add_u32 s{T1}, s{T1}, s{sB}
    s_lshl_b32 s{T2}, s{T1}, 14
    s_add_u32 s{T0}, s{T0}, s{T2}
    v_add_u32 v8, s{T0}, v{vL16}
    v_lshlrev_b32 v9, 1, v{vJ2}
    s_lshl_b32 s{T0}, s{sP}, 10
    v_add_u32 v9, s{T0}, v9
    v_mov_b32 v32, 0xbf803f80
    v_mov_b32 v33, 0xbf803f80
    v_mov_b32 v34, 0xbf803f80
    v_mov_b32 v35, 0xbf803f80
    s_lshl_b32 s{T0}, s{sPT}, 16
    s_lshl_b32 s{T2}, s{sA}, 14
    s_add_u32 s{T0}, s{T0}, s{T2}
    s_lshl_b32 s{T2}, s{T1}, 10
    s_add_u32 s{T0}, s{T0}, s{T2}
    v_add_u32 v10, s{T0}, v{vL16}
    s_lshl_b32 s{T0}, s{sPT}, 13
    s_lshl_b32 s{T2}, s{sA}, 11
    s_add_u32 s{T0}, s{T0}, s{T2}
    s_lshl_b32 s{T1}, s{T1}, 7
    s_add_u32 s{T0}, s{T0}, s{T1}
    v_lshrrev_b32 v11, 1, v{vG}
    v_and_b32 v12, 1, v{vG}
    v_lshlrev_b32 v11, 12, v11
    v_lshl_add_u32 v11, v12, 2, v11
    v_lshl_add_u32 v11, v{vI}, 3, v11
    v_add_u32 v11, s{T0}, v11
    s_lshl_b32 s{T0}, s{sW}, 10
    s_add_u32 s{T0}, s{T0}, {L_BX}
    v_add_u32 v12, s{T0}, v{vL16}
    s_xor_b32 s{T0}, s{T0}, 0x800
    v_add_u32 v13, s{T0}, v{vL16}
    s_cmp_eq_u32 s{sP}, 0
    s_cselect_b32 s{sC}, 1.0, -1.0
    s_cmp_eq_u32 s{sA}, 0
    s_cselect_b32 s{sD}, 1.0, -1.0
    s_mov_b32 s{sG}, 0x8000
    s_waitcnt lgkmcnt(0)
    """)
    sig(a, F_TC, vF, vONE)
    a(f"v_xor_b32 v16, 8, v{vFw}")
    a.stamp()
    poll(a, "L_p1", vC1p, 4, "0xf", 16, F_GO1, vF, vONE)
    if cfg["pb"]:
        sig(a, F_PAUSE, vF, vONE)
    a.stamp()
    ZF, Z5 = 64, 20
    for ks in range(16):
        so = "0" if ks < 4 else f"s{sK4 - 1 + ks//4}"
        a.vmem(f"Z{ks}", f"buffer_load_dwordx4 {vr(ZF+4*ks,4)}, v8, {R(R_ZA)}, {so} offen offset:{(ks%4)*1024} sc1")
    a.vmem("Z5", f"buffer_load_dwordx4 {vr(Z5,4)}, v9, {R(R_Z5)}, 0 offen sc1")
    BA0, BA1, BAX = 36, 40, 44
    for ks in range(16):
        a.vwait(f"Z{ks}")
        c0 = "0" if ks == 0 else None
        mfma(a, vr(BA1, 4), vr(ZF + 4 * ks, 4), vr(tf(1, ks), 4), c0)
        mfma(a, vr(BA0, 4), vr(ZF + 4 * ks, 4), vr(tf(0, ks), 4), c0)
        mfma(a, vr(BAX, 4), vr(ZF + 4 * ks, 4), "v[32:35]", c0)
    if not cfg["pb"]:
        sig(a, F_PAUSE, vF, vONE)
    waitf(a, "L_wtc", F_TC, vF, 4, 256)
    a(f"ds_write_b128 v12, {vr(BA1,4)}")
    a("s_waitcnt lgkmcnt(0)")
    sig(a, F_X, vFw, vONE)
    a.vwait("Z5")
    EX0, EX1, OT, Y = 64, 68, 72, 76
    for r in range(4):
        a(f"v_mul_f32 v{EX0+r}, v{CF0}, v{Z5+r}")
        a(f"v_mul_f32 v{EX1+r}, v{CF1}, v{Z5+r}")
    a(f"""
    v_cmp_eq_u32 vcc, 0, v{vT}
    """)
    waitf(a, "L_wx", F_X, 16, 4, 64)
    a(f"""
    ds_read_b128 {vr(OT,4)}, v13
    s_waitcnt lgkmcnt(0)
    """)
    a.stamp()
    for r in range(4):
        a(f"v_sub_f32 v{Y+r}, v{BA0+r}, v{OT+r}")
        a(f"v_add_f32 v{Y+4+r}, v{BA0+r}, v{OT+r}")
    for r in range(4):
        a(f"v_mul_f32 v{Y+r}, s{sD}, v{Y+r}")
        a(f"v_cndmask_b32 v{Y+8+r}, v{Y+4+r}, v{BAX+r}, vcc")
    for r in range(4):
        a(f"v_cndmask_b32 v{Y+12+r}, v{Y+r}, v{BAX+r}, vcc")
    for r in range(4):
        a(f"v_fmac_f32 v{Y+r}, s{sC}, v{EX0+r}")
        a(f"v_add_f32 v{Y+4+r}, v{Y+4+r}, v{EX0+r}")
        a(f"v_add_f32 v{Y+8+r}, v{Y+8+r}, v{EX1+r}")
        a(f"v_fmac_f32 v{Y+12+r}, s{sC}, v{EX1+r}")
    a(f"v_cndmask_b32 v{Y}, v{Y}, 0, s[{sM}:{sM+1}]")
    a(f"v_cndmask_b32 v{Y+8}, v{Y+8}, 0, s[{sM}:{sM+1}]")
    for r in range(0, 16, 2):
        a(f"v_pk_add_f32 {vr(Y+r,2)}, {vr(Y+r,2)}, {vr(XU+r,2)}")
    HP, S = 92, 100
    for r in range(8):
        a(f"v_cvt_pk_bf16_f32 v{HP+r}, v{Y+2*r}, v{Y+2*r+1}")
    for r in range(4):
        a(f"v_mov_b32 v{S+r}, 0")
    a.vmem("SH", f"buffer_store_dwordx4 {vr(HP,4)}, v10, {R(R_H)}, 0 offen sc1")
    a.vmem("SH", f"buffer_store_dwordx4 {vr(HP+4,4)}, v10, {R(R_H)}, s{sG} offen sc1")
    for mir in range(2):
        for d in range(4):
            a(f"v_dot2c_f32_bf16 v{S+2*mir}, s{sONES}, v{HP+4*mir+d}")
            a(f"v_dot2c_f32_bf16 v{S+2*mir+1}, v{HP+4*mir+d}, v{HP+4*mir+d}")
    a.nop(3)
    treduce4(a, S, S + 1, S + 2, S + 3)
    a.vmem("SH", f"buffer_store_dword v{S}, v11, {R(R_ST)}, 0 offen sc1")
    a.stamp()
    a(f"""
    s_and_b32 s{sA}, s{sC16}, 1
    v_add_u32 v24, {8*7168}, v{vL16}
    s_lshl_b32 s{T0}, s{sRB}, 17
    s_lshl_b32 s{T1}, s{sW}, 15
    s_add_u32 s{T0}, s{T0}, s{T1}
    v_add_u32 v10, s{T0}, v{vL16}
    v_add_u32 v11, 0x4000, v10
    s_lshl_b32 s{T0}, s{sRB}, 14
    s_lshl_b32 s{T1}, s{sW}, 12
    s_add_u32 s{T0}, s{T0}, s{T1}
    v_lshl_add_u32 v12, v{vI}, 3, s{T0}
    v_lshl_add_u32 v12, v{vG}, 9, v12
    v_lshlrev_b32 v13, 4, v{vG}
    v_add_u32 v13, {L_CS}, v13
    """)
    a.vwait_all()
    a.stamp()
    arrive(a, "L_ar2", vC2, 4, "1", F_AR2, vF, vONE)
    a.stamp()
    waitf(a, "L_ww1", F_W1, vF, 4, 256)
    a.stamp()
    poll(a, "L_p2", vC2, 4, "1", 16, F_GO2, vF, vONE)
    if cfg["pc"]:
        sig(a, F_PAUSE, vF, vONE)
    a.stamp()
    AC1, AC2, WF, HF = 36, 68, 92, 124
    cacc = lambda u, mt: (AC1 + (u * 2 + mt) * 4) if u < 4 else (AC2 + ((u - 4) * 2 + mt) * 4)
    wf = lambda b, u: WF + (b * 4 + (u % 4)) * 4
    hf = lambda mt, ks: HF + (ks * 2 + mt) * 4
    STT = AC2
    MEAN, RSTD = 16, 20

    def wread(ks, u):
        a(f"ds_read_b128 {vr(wf(ks&1,u),4)}, v{vL16 if ks < 8 else 24} offset:{(ks%8)*7168+u*1024}")

    def hload(ks, mts=(0, 1)):
        if mts[0] == 0:
            a(f"s_add_u32 s{sCUR}, s{sRC}, {ks}\ns_and_b32 s{sCUR}, s{sCUR}, 15\ns_lshl_b32 s{sCUR}, s{sCUR}, 10")
        for mt in mts:
            a.vmem(f"H{ks}", f"buffer_load_dwordx4 {vr(hf(mt,ks),4)}, v{10+mt}, {R(R_H)}, s{sCUR} offen sc1")

    HD = cfg["hdepth"]
    for ks in range(HD):
        hload(ks)
    for u in range(4):
        wread(0, u)
    a(f"""
    s_lshl_b32 s{T0}, s{sRB}, 3
    s_lshl_b32 s{T1}, s{sW}, 1
    s_add_u32 s{T0}, s{T0}, s{T1}
    s_mul_i32 s{T0}, s{T0}, 57344
    s_mul_i32 s{T1}, s{sC16}, 7
    s_add_u32 s{T2}, s{T1}, s{sA}
    s_lshl_b32 s{T2}, s{T2}, 9
    s_add_u32 s{T2}, s{T2}, s{T0}
    v_add_u32 v8, s{T2}, v{vL16}
    s_cmp_eq_u32 s{sA}, 0
    s_cselect_b32 s{T2}, 6, 0
    s_add_u32 s{T1}, s{T1}, s{T2}
    s_lshr_b32 s{T2}, s{T1}, 1
    s_lshl_b32 s{T2}, s{T2}, 10
    s_and_b32 s{T1}, s{T1}, 1
    s_lshl_b32 s{T1}, s{T1}, 3
    s_add_u32 s{T2}, s{T2}, s{T1}
    s_add_u32 s{T2}, s{T2}, s{T0}
    v_add_u32 v9, s{T2}, v{vL16}
    s_mov_b32 s{sG}, 57344
    s_mul_i32 s{sF}, s{sW}, {DSTR}
    v_add_u32 v{vC2}, {16*256}, v{vC2}
    """)

    def cpass(us, first):
        n = len(us)
        for ks in range(16):
            nxt = ks + 1
            if first:
                a.vwait(f"H{ks}")
                if cfg.get("fine") and ks in (0, 8):
                    a.stamp()
            for i, u in enumerate(us):
                if nxt < 16:
                    wread(nxt, u)
                    a(f"s_waitcnt lgkmcnt({n})")
                else:
                    a(f"s_waitcnt lgkmcnt({n-1-i})")
                for mt in range(2):
                    mfma(a, vr(cacc(u, mt), 4), vr(wf(ks & 1, u), 4), vr(hf(mt, ks), 4), "0" if ks == 0 else None)
                if first and i in (0, 2) and ks + HD < 16:
                    hload(ks + HD, (0,) if i == 0 else (1,))
                if first and i == 3 and ks + HD == 16:
                    for mt in range(2):
                        for pp in range(4):
                            a.vmem("ST", f"buffer_load_dwordx2 {vr(STT+mt*8+pp*2,2)}, v12, {R(R_ST)}, 0 offen offset:{mt*2048+pp*128} sc1")
            if not first and ks == cfg["ar3a"]:
                a.vwait("S1a")
                arrive(a, "L_ar3", vC2, 4, "1", F_AR3, vF, vONE)
                a(f"v_add_u32 v{vC2}, {16*256}, v{vC2}")

    def cepi(groups, tmp, outs, tag):
        tiles = [u for g in groups for u in g[1]]
        for i, u in enumerate(tiles):
            for v in range(4):
                a(f"ds_read_b128 {vr(tmp+(i*4+v)*4,4)}, v13 offset:{v*448+u*64}")
        return tiles

    cpass((0, 1, 2, 3), True)
    if not cfg["pc"]:
        sig(a, F_PAUSE, vF, vONE)
    a.vwait("ST")
    for mt in range(2):
        b = STT + mt * 8
        a(f"""
        v_pk_add_f32 {vr(b,2)}, {vr(b,2)}, {vr(b+2,2)}
        v_pk_add_f32 {vr(b+4,2)}, {vr(b+4,2)}, {vr(b+6,2)}
        v_pk_add_f32 {vr(b,2)}, {vr(b,2)}, {vr(b+4,2)}
        """)
    for i in range(2):
        for v in range(4):
            a(f"ds_read_b128 {vr(WF+(i*4+v)*4,4)}, v13 offset:{v*448+i*64}")
    allreduce_g(a, [STT, STT + 1, STT + 8, STT + 9], [STT + 2, STT + 3, STT + 10, STT + 11])
    for mt in range(2):
        b = STT + mt * 8
        a(f"""
        v_mul_f32 v{MEAN+2*mt}, 0xbb000000, v{b}
        v_mul_f32 v{b+1}, 0x3b000000, v{b+1}
        v_fma_f32 v{b+1}, -v{MEAN+2*mt}, v{MEAN+2*mt}, v{b+1}
        v_max_f32 v{b+1}, 0, v{b+1}
        v_add_f32 v{b+1}, 0x3727c5ac, v{b+1}
        v_rsq_f32 v{RSTD+2*mt}, v{b+1}
        v_mov_b32 v{MEAN+2*mt+1}, v{MEAN+2*mt}
        """)
    a(f"v_mov_b32 v{RSTD+1}, v{RSTD}")
    a(f"v_mov_b32 v{RSTD+3}, v{RSTD+2}")
    a.stamp()

    def csum_reduce(t):
        for r in (0, 2):
            a(f"v_pk_add_f32 {vr(t+r,2)}, {vr(t+r,2)}, {vr(t+4+r,2)}")
            a(f"v_pk_add_f32 {vr(t+8+r,2)}, {vr(t+8+r,2)}, {vr(t+12+r,2)}")
            a(f"v_pk_add_f32 {vr(t+r,2)}, {vr(t+r,2)}, {vr(t+8+r,2)}")

    def finish(v, us, cs, outs, tag):
        for mt in range(2):
            o = outs[mt]
            for n, u in enumerate(us):
                d, c = cacc(u, mt), cs[n]
                a(f"v_pk_fma_f32 {vr(d,2)}, {vr(MEAN+2*mt,2)}, {vr(c,2)}, {vr(d,2)}")
                a(f"v_pk_fma_f32 {vr(d+2,2)}, {vr(MEAN+2*mt,2)}, {vr(c+2,2)}, {vr(d+2,2)}")
                a(f"v_pk_mul_f32 {vr(d,2)}, {vr(d,2)}, {vr(RSTD+2*mt,2)}")
                a(f"v_pk_mul_f32 {vr(d+2,2)}, {vr(d+2,2)}, {vr(RSTD+2*mt,2)}")
                a(f"v_cvt_pk_bf16_f32 v{o+2*n}, v{d}, v{d+1}")
                a(f"v_cvt_pk_bf16_f32 v{o+2*n+1}, v{d+2}, v{d+3}")
                a(f"v_pk_max_i16 v{o+2*n}, v{o+2*n}, 0")
                a(f"v_pk_max_i16 v{o+2*n+1}, v{o+2*n+1}, 0")
            so = "0" if mt == 0 else f"s{sG}"
            if v < 3:
                a.vmem(tag, f"buffer_store_dwordx4 {vr(o,4)}, v8, {R(R_H1)}, {so} offen offset:{v*1024} sc1")
            else:
                a.vmem(tag, f"buffer_store_dwordx2 {vr(o,2)}, v9, {R(R_H1)}, {so} offen sc1")

    a("s_waitcnt lgkmcnt(0)")
    csum_reduce(WF)
    csum_reduce(WF + 16)
    a(f"v_mov_b32 v{AC2}, v{WF}\nv_mov_b32 v{AC2+1}, v{WF+1}\nv_mov_b32 v{AC2+2}, v{WF+2}\nv_mov_b32 v{AC2+3}, v{WF+3}")
    a(f"v_mov_b32 v{AC2+4}, v{WF+16}\nv_mov_b32 v{AC2+5}, v{WF+17}\nv_mov_b32 v{AC2+6}, v{WF+18}\nv_mov_b32 v{AC2+7}, v{WF+19}")
    for i in range(2):
        for v in range(4):
            a(f"ds_read_b128 {vr(WF+(i*4+v)*4,4)}, v13 offset:{v*448+(2+i)*64}")
    finish(0, (0, 1), (AC2, AC2 + 4), (AC2 + 8, AC2 + 12), "S1a")
    a("s_waitcnt lgkmcnt(0)")
    csum_reduce(WF)
    csum_reduce(WF + 16)
    finish(1, (2, 3), (WF, WF + 16), (AC1, AC1 + 4), "S1a")
    a.stamp()
    for u in (4, 5, 6):
        wread(0, u)
    cpass((4, 5, 6), False)
    sig(a, F_PAUSE, vF, vONE)
    for i in range(3):
        for v in range(4):
            a(f"ds_read_b128 {vr(HF+(i*4+v)*4,4)}, v13 offset:{v*448+(4+i)*64}")
    a("s_waitcnt lgkmcnt(0)")
    sig(a, F_CD, vF, vONE)
    a.stamp()
    for i in range(3):
        csum_reduce(HF + 16 * i)
    finish(2, (4, 5), (HF, HF + 16), (HF + 48, HF + 52), "S1b")
    finish(3, (6,), (HF + 32,), (HF + 56, HF + 60), "S1b")
    a.stamp()
    for lm in range(4):
        a(f"""
        s_xor_b32 s{T0}, s{sW}, {lm}
        s_lshl_b32 s{T1}, s{sPT}, 2
        s_add_u32 s{T0}, s{T0}, s{T1}
        s_mul_i32 s{T0}, s{T0}, 57344
        s_mul_i32 s{T1}, s{sW}, {14*1024}
        s_add_u32 s{T0}, s{T0}, s{T1}
        v_add_u32 v{8+lm}, s{T0}, v{vL16}
        """)
    a(f"""
    v_lshrrev_b32 v4, 2, v{vL}
    v_bfe_u32 v5, v{vL}, 3, 2
    v_and_b32 v6, 3, v{vL}
    v_lshl_add_u32 v4, v4, 7, s{sF}
    v_lshl_add_u32 v4, v6, 3, v4
    """)
    for u in range(4):
        a(f"v_xor_b32 v6, {u}, v5")
        a(f"v_lshl_add_u32 v{32+u}, v6, 5, v4")
    a(f"""
    s_lshl_b32 s{T0}, s{sPT}, 2
    s_add_u32 s{T0}, s{T0}, s{sW}
    s_lshl_b32 s{T0}, s{T0}, 14
    v_lshl_add_u32 v16, v{vI}, 4, s{T0}
    s_cmp_ge_u32 s{sE}, 4
    s_cbranch_scc1 L_res_mirror
    s_lshl_b32 s{T0}, s{sE}, 12
    v_lshl_add_u32 v17, v{vG}, 8, v16
    v_add_u32 v17, s{T0}, v17
    v_mov_b32 v18, {OOB}
    v_mov_b32 v19, {OOB}
    s_branch L_res_done
    """)
    a.label("L_res_mirror")
    a(f"""
    s_lshl_b32 s{T0}, s{sE}, 2
    s_sub_u32 s{T0}, 28, s{T0}
    s_lshl_b32 s{T0}, s{T0}, 10
    s_add_u32 s{T0}, s{T0}, 8
    v_sub_u32 v18, 3, v{vG}
    v_lshl_add_u32 v17, v18, 8, v16
    v_add_u32 v17, s{T0}, v17
    v_add_u32 v18, 256, v17
    v_add_u32 v19, {256+3072}, v17
    v_add_u32 v22, 8, v16
    v_or_b32 v23, s{sE}, v{vL16}
    v_and_b32 v23, 0x307, v23
    v_cmp_eq_u32 vcc, 4, v23
    s_nop 1
    v_cndmask_b32 v19, v19, v22, vcc
    """)
    a.label("L_res_done")
    RES, RE1 = 36, 44
    for up in range(4):
        a.vmem("RES", f"buffer_load_dwordx2 {vr(RES+2*up,2)}, v17, {R(R_H)}, 0 offen offset:{up*1024} sc1")
    for up in range(3):
        a.vmem("RES", f"buffer_load_ushort v{RE1+up}, v18, {R(R_H)}, 0 offen offset:{up*1024} sc1")
    a.vmem("RES", f"buffer_load_ushort v{RE1+3}, v19, {R(R_H)}, 0 offen sc1")
    a(f"""
    s_lshl_b32 s{T0}, s{sT}, 6
    s_add_u32 s{T0}, s{T0}, s{sP}
    s_and_b32 s{T1}, s{sW}, 1
    s_lshl_b32 s{T1}, s{T1}, 5
    s_add_u32 s{T0}, s{T0}, s{T1}
    v_lshl_add_u32 v20, v{vI}, 1, s{T0}
    v_cmp_eq_u32 vcc, 0, v20
    v_sub_u32 v21, 0x800, v20
    v_mov_b32 v22, 0x400
    s_cmp_ge_u32 s{sW}, 2
    s_cselect_b64 s[{sM}:{sM+1}], -1, 0
    v_cndmask_b32 v21, v21, v22, vcc
    v_cndmask_b32 v20, v20, v21, s[{sM}:{sM+1}]
    s_lshl_b32 s{T0}, s{sE}, 7
    v_lshl_add_u32 v21, v{vG}, 5, s{T0}
    v_lshl_add_u32 v20, v20, 10, v21
    """)
    a.vwait("RES")
    DACC, DWF, H1F = 48, 112, 144
    NR = cfg["h1ring"]
    dacc = lambda u, lm: DACC + (u * 4 + lm) * 4
    dwf = lambda b, u: DWF + (b * 4 + u) * 4
    h1f = lambda lm, ks: H1F + ((ks % NR) * 4 + lm) * 4
    a(f"""
    s_cmp_ge_u32 s{sE}, 4
    s_cbranch_scc1 L_unp_mirror
    """)
    for u in range(4):
        s, d = RES + 2 * u, dacc(u, 0)
        a(f"""
        v_lshlrev_b32 v{d}, 16, v{s}
        v_and_b32 v{d+1}, s{sHI}, v{s}
        v_lshlrev_b32 v{d+2}, 16, v{s+1}
        v_and_b32 v{d+3}, s{sHI}, v{s+1}
        """)
    a("s_branch L_unp_done")
    a.label("L_unp_mirror")
    for u in range(4):
        s, d = RES + 2 * (3 - u), dacc(u, 0)
        a(f"""
        v_lshlrev_b32 v{d}, 16, v{RE1+3-u}
        v_and_b32 v{d+1}, s{sHI}, v{s+1}
        v_lshlrev_b32 v{d+2}, 16, v{s+1}
        v_and_b32 v{d+3}, s{sHI}, v{s}
        """)
    a.label("L_unp_done")
    a.stamp()
    arrive(a, "L_ar4", vC2, 4, "1", F_AR4, vF, vONE)
    a.stamp()
    waitf(a, "L_wd1", F_D1, vFw, 4, 64)
    a.stamp()
    waitf(a, "L_wg3", F_GO3, vF, 4, 64)
    a.stamp()

    def h1load(ks, lms=(0, 1, 2, 3)):
        if lms[0] == 0:
            if ks == 8 - cfg["probe"]:
                a.vmem("P4", f"buffer_load_dword v25, v{vC2}, {R(R_CNT)}, 0 offen sc1")
            if ks == 8:
                a.vwait("P4")
                a(f"""
                v_cmp_gt_u32 vcc, 16, v25
                s_mov_b32 s{T0}, 0
                s_cbranch_vccz L_p4_ok
                """)
                a.label("L_p4_loop")
                a(f"""
                buffer_load_dword v25, v{vC2}, {R(R_CNT)}, 0 offen sc1
                s_add_u32 s{T0}, s{T0}, 1
                s_cmp_ge_u32 s{T0}, 0x40000
                s_cbranch_scc1 L_p4_ok
                s_waitcnt vmcnt(0)
                v_cmp_gt_u32 vcc, 16, v25
                s_cbranch_vccnz L_p4_loop
                """)
                a.label("L_p4_ok")
            pk = DPERM[ks]
            a(f"s_{'add' if pk < 7 else 'sub'}_u32 s{sCUR}, {pk}, s{sRD}\ns_lshl_b32 s{sCUR}, s{sCUR}, 10")
        for lm in lms:
            a.vmem(f"G{ks}", f"buffer_load_dwordx4 {vr(h1f(lm,ks),4)}, v{8+lm}, {R(R_H1)}, s{sCUR} offen sc1")

    def dtr(ks, u):
        off = (ks % DSL) * 4096
        a(f"ds_read_b64_tr_b16 {vr(dwf(ks&1,u),2)}, v{32+u} offset:{off}")
        a(f"ds_read_b64_tr_b16 {vr(dwf(ks&1,u)+2,2)}, v{32+u} offset:{off+2048}")

    DD = cfg["ddepth"]
    assert DD < NR
    for ks in range(DD):
        h1load(ks)
    for u in range(4):
        dtr(0, u)
    lag = [0]
    for ks in range(14):
        nxt = ks + 1
        if ks != 14 - DSL:
            lag[0] = 0
        if ks == DSL - 1:
            waitf(a, "L_wd2", F_D2, vFw, 4, 64)
        a.vwait(f"G{ks}")
        if cfg.get("fine") and ks in (0, 1, 3, 4, 6, 9, 12):
            a.stamp()
        for u in range(4):
            if nxt < 14:
                dtr(nxt, u)
                a(f"s_waitcnt lgkmcnt({8 + lag[0]})")
            else:
                a(f"s_waitcnt lgkmcnt({6-2*u})")
            for lm in (1, 2, 3, 0):
                mfma(a, vr(dacc(u, lm), 4), vr(dwf(ks & 1, u), 4), vr(h1f(lm, ks), 4), "0" if (ks == 0 and lm) else None)
            if ks + DD < 14:
                h1load(ks + DD, (u,))
        if ks == 13 - DSL:
            sig(a, F_S, vFw, vONE)
            lag[0] = 1
    a.stamp()
    a(f"v_add_u32 v16, s{sF}, v{vL16}")
    for lm in range(1, 4):
        a(f"""
        s_xor_b32 s{T0}, s{sW}, {lm}
        s_mul_i32 s{T0}, s{T0}, {DSTR}
        s_add_u32 s{T0}, s{T0}, {(lm-1)*4096}
        v_add_u32 v{16+lm}, s{T0}, v{vL16}
        """)
    for lm in range(1, 4):
        for u in range(4):
            a(f"ds_write_b128 v16, {vr(dacc(u,lm),4)} offset:{(lm-1)*4096+u*1024}")
    a("""
    s_waitcnt lgkmcnt(0)
    s_barrier
    """)
    RD = 144
    for lm in range(1, 4):
        for u in range(4):
            a(f"ds_read_b128 {vr(RD+((lm-1)*4+u)*4,4)}, v{16+lm} offset:{u*1024}")
    for lm in range(1, 4):
        a(f"s_waitcnt lgkmcnt({8-4*(lm-1)})")
        for u in range(4):
            for r in (0, 2):
                a(f"v_pk_add_f32 {vr(dacc(u,0)+r,2)}, {vr(dacc(u,0)+r,2)}, {vr(RD+((lm-1)*4+u)*4+r,2)}")
    O = 112
    for u in range(4):
        a(f"v_cvt_pk_bf16_f32 v{O+2*u}, v{dacc(u,0)}, v{dacc(u,0)+1}")
        a(f"v_cvt_pk_bf16_f32 v{O+2*u+1}, v{dacc(u,0)+2}, v{dacc(u,0)+3}")
    a.nop(2)
    for d in range(2):
        a(f"v_permlane32_swap_b32 v{O+d}, v{O+4+d}")
        a(f"v_permlane32_swap_b32 v{O+2+d}, v{O+6+d}")
    a.nop(2)
    for d in range(2):
        a(f"v_permlane16_swap_b32 v{O+d}, v{O+2+d}")
        a(f"v_permlane16_swap_b32 v{O+4+d}, v{O+6+d}")
    a.nop(2)
    a(f"buffer_store_dwordx4 {vr(O,4)}, v20, {R(R_OUT)}, 0 offen")
    a(f"buffer_store_dwordx4 {vr(O+4,4)}, v20, {R(R_OUT)}, 0 offen offset:16")
    stamp_out(a, 0)
    a("s_branch L_end")


def helper(a, cfg):
    a.label("L_helper")
    a.vm = []
    a.nstamp = 1
    a.sstamp = R_H1
    a(f"""
    s_lshl_b32 s{T0}, s{sE4}, 6
    s_lshl_b32 s{T1}, s{sW}, 4
    s_add_u32 s{T0}, s{T0}, s{T1}
    """)
    for n in range(4):
        a(f"""
        v_add_u32 v4, {4*n}, v{vG}
        v_xor_b32 v5, v4, v{vI}
        v_add_u32 v4, s{T0}, v4
        v_lshlrev_b32 v5, 4, v5
        v_lshl_add_u32 v{8+n}, v4, 10, v5
        """)
        if n == 0:
            a(f"""
            v_cmp_eq_u32 vcc, 0, v4
            v_add_u32 v12, 0x40000, v8
            s_nop 0
            v_cndmask_b32 v12, v8, v12, vcc
            """)
    a("s_waitcnt lgkmcnt(0)")
    a.stamp()
    srd(a, R_DI, P_DI, P_DI + 1, 512 * 1024)
    srd(a, R_DR, P_DR, P_DR + 1, 512 * 1024)
    for typ in range(2):
        for n in range(4):
            a(f"s_add_u32 m0, s{sC}, {L_GA + typ*4096 + n*1024}")
            a("s_nop 0")
            v = 12 if (typ == 0 and n == 0) else 8 + n
            a.vmem("A", f"buffer_load_dwordx4 v{v}, {R(R_DI if typ else R_DR)}, 0 offen lds")
    late_setup(a, cfg["rot"])
    a(f"""
    s_lshl_b32 s{T3}, s2, 2
    s_add_u32 s{T3}, s{T3}, s{sW}
    s_cmp_lg_u32 s{T3}, 3
    s_cbranch_scc1 L_noleader2
    v_lshlrev_b32 v4, 8, v{vL}
    v_mov_b32 v5, 0
    s_mov_b32 s{T0}, 16384
    buffer_store_dword v5, v4, {R(R_CNT)}, 0 offen sc1
    buffer_store_dword v5, v4, {R(R_CNT)}, s{T0} offen sc1
    s_waitcnt vmcnt(0)
    v_mov_b32 v4, 1
    s_mov_b64 exec, 1
    buffer_store_dword v4, v5, {R(R_DBG)}, 0 offen sc1
    s_mov_b64 exec, -1
    """)
    a.label("L_noleader2")
    a(f"""
    s_lshl_b32 s{T0}, s{sT}, 6
    s_add_u32 s{T0}, s{T0}, s{sP}
    s_and_b32 s{T1}, s{sW}, 1
    s_lshl_b32 s{T1}, s{T1}, 5
    s_add_u32 s{sA}, s{T0}, s{T1}
    s_lshl_b32 s{sD}, s{sA}, 12
    s_lshl_b32 s{sF}, s{sW}, 14
    s_cmp_ge_u32 s{sW}, 2
    s_cselect_b32 s{R_DR}, s{R_CI}, s{R_CR}
    s_cselect_b32 s{R_DR+1}, s{R_CI+1}, s{R_CR+1}
    s_mov_b32 s{R_DR+2}, {2048*4096}
    """)

    def trig_dma(q):
        a(f"""
        s_add_u32 s{T0}, s{sD}, {q*8192}
        s_add_u32 m0, s{sF}, {L_TR + q*1024}
        v_xor_b32 v4, {q*16}, v{vL16}
        """)
        a.vmem("T", f"buffer_load_dwordx4 v4, {R(R_DR)}, s{T0} offen lds")

    a(f"""
    s_lshl_b32 s{T0}, s{sE}, 6
    s_sub_u32 s{T1}, {960-64}, s{T0}
    s_cmp_ge_u32 s{sW}, 2
    s_cselect_b64 s[{sM}:{sM+1}], -1, 0
    """)
    for n in range(4):
        a(f"""
        v_add_u32 v4, {4*n}, v{vG}
        v_xor_b32 v5, v4, v{vI}
        v_lshl_add_u32 v4, v4, 1, s{sA}
        v_sub_u32 v6, 0x800, v4
        v_cmp_eq_u32 vcc, 0, v4
        v_mov_b32 v7, 0x400
        v_lshlrev_b32 v13, 4, v5
        v_cndmask_b32 v6, v6, v7, vcc
        v_cndmask_b32 v4, v4, v6, s[{sM}:{sM+1}]
        v_add_u32 v6, s{T0}, v13
        v_add_u32 v7, s{T1}, v13
        v_cmp_lt_u32 vcc, 3, v5
        v_mov_b32 v13, 512
        s_nop 0
        v_cndmask_b32 v6, v6, v7, vcc
        v_cmp_lt_u32 vcc, 8, v5
        s_nop 1
        v_cndmask_b32 v6, v6, v13, vcc
        v_lshl_add_u32 v{8+n}, v4, 10, v6
        """)
    a(f"s_lshl_b32 s{sB}, s{sW}, 12")

    def xt_dma(n):
        a(f"s_add_u32 m0, s{sB}, {L_XT + n*1024}")
        a("s_nop 0")
        a.vmem("T", f"buffer_load_dwordx4 v{8+n}, {R(R_X)}, 0 offen lds")

    a(f"""
    v_mul_u32_u24 v4, 0x4925, v{vL}
    v_lshrrev_b32 v4, 18, v4
    v_mul_u32_u24 v5, 14, v4
    v_sub_u32 v5, v{vL}, v5
    s_mul_i32 s{T0}, s{sC16}, 224
    v_lshl_add_u32 v5, v5, 4, s{T0}
    v_mul_u32_u24 v6, 3584, v4
    v_add_u32 v14, v5, v6
    v_sub_u32 v15, {3*3584}, v6
    v_add_u32 v15, v5, v15
    v_sub_u32 v16, {256*3584}, v6
    v_cmp_eq_u32 vcc, 0, v4
    v_add_u32 v16, v5, v16
    s_mul_i32 s{sH}, s{sW}, 7168
    s_add_u32 s{sG}, s{sRC}, s{sW}
    v_cndmask_b32 v16, v16, v5, vcc
    s_and_b32 s{T2}, s{sC16}, 1
    s_lshl_b32 s{T0}, s{T2}, 5
    s_cmp_eq_u32 s{T2}, 0
    s_cselect_b32 s{T1}, 192, 0
    s_add_u32 s{T0}, s{T0}, s{sH}
    s_add_u32 s{T1}, s{T1}, s{sH}
    v_lshrrev_b32 v4, 2, v{vL}
    v_mul_u32_u24 v4, 224, v4
    v_and_b32 v5, 3, v{vL}
    v_lshl_add_u32 v4, v5, 3, v4
    v_add_u32 v19, s{T0}, v4
    v_add_u32 v20, s{T1}, v4
    v_add_u32 v21, s{sH}, v{vL16}
    v_add_u32 v22, {8*7168}, v19
    v_add_u32 v23, {8*7168}, v20
    v_add_u32 v24, {8*7168}, v21
    s_mul_i32 s{T0}, s{sW}, 448
    s_add_u32 s{T0}, s{T0}, {L_CS}
    v_lshl_add_u32 v25, v{vG}, 4, s{T0}
    """)
    RLF, CSV, ONE = 196, 224, 252
    for r in range(4):
        a(f"v_mov_b32 v{ONE+r}, s{sONES}")

    W1S = 132

    def w1_dma(n, q):
        toreg = n >= 2
        dst = (vr(W1S + ((n - 2) * 8 + q) * 4, 4) + ", ") if toreg else ""
        sfx = "" if toreg else " lds"
        if q == 0:
            a(f"""
            s_add_u32 s{T2}, s{sG}, {4*n}
            s_and_b32 s{T2}, s{T2}, 15
            s_mul_i32 s{sCUR}, s{T2}, {16*3584}
            """)
        a(f"s_mov_b64 exec, s[{sEX}:{sEX+1}]")
        if not toreg:
            a(f"s_add_u32 m0, s{sH}, {n*4*7168 + q*896}")
        if q < 4:
            a(f"s_add_u32 s{T0}, s{sCUR}, {4*q*3584}")
            a.vmem(f"W1_{n}", f"buffer_load_dwordx4 {dst}v14, {R(R_W1)}, s{T0} offen{sfx}")
        elif q == 4:
            a(f"""
            s_sub_u32 s{T0}, {509*3584}, s{sCUR}
            s_cmp_eq_u32 s{sCUR}, 0
            s_cselect_b32 s{T0}, {256*3584}, s{T0}
            s_cselect_b64 s[{sM}:{sM+1}], -1, 0
            v_cndmask_b32 v4, v15, v16, s[{sM}:{sM+1}]
            """)
            a.vmem(f"W1_{n}", f"buffer_load_dwordx4 {dst}v4, {R(R_W1)}, s{T0} offen{sfx}")
        else:
            a(f"s_sub_u32 s{T0}, {(509-4*(q-4))*3584}, s{sCUR}")
            a.vmem(f"W1_{n}", f"buffer_load_dwordx4 {dst}v15, {R(R_W1)}, s{T0} offen{sfx}")
        a("s_mov_b64 exec, -1")

    def w1_unstage(n):
        a.vwait(f"W1_{n}")
        a(f"s_mov_b64 exec, s[{sEX}:{sEX+1}]")
        for q in range(8):
            a(f"ds_write_b128 v24, {vr(W1S+((n-2)*8+q)*4,4)} offset:{(n-2)*4*7168+q*896}")
        a("s_mov_b64 exec, -1")
        a("s_waitcnt lgkmcnt(0)")

    first_rl = [True]

    def relayout(n):
        a.vwait(f"W1_{n}")
        hi3 = 3 if n >= 2 else 0
        off0 = (n % 2) * 4 * 7168
        for u in range(7):
            base = (19 if u < 6 else 20) + hi3
            off = off0 + (u * 32 if u < 6 else 0)
            a(f"ds_read_b64_tr_b16 {vr(RLF+4*u,2)}, v{base} offset:{off}")
            a(f"ds_read_b64_tr_b16 {vr(RLF+4*u+2,2)}, v{base} offset:{off+3584}")
        a("s_waitcnt lgkmcnt(0)")
        for u in range(7):
            a(f"ds_write_b128 v{21+hi3}, {vr(RLF+4*u,4)} offset:{off0+u*1024}")
            mfma(a, vr(CSV + 4 * u, 4), vr(RLF + 4 * u, 4), vr(ONE, 4), "0" if first_rl[0] else None)
        first_rl[0] = False
        a("s_waitcnt lgkmcnt(0)")

    a(f"""
    v_bfe_u32 v4, v{vL}, 1, 2
    v_xor_b32 v4, v4, v{vG}
    v_and_b32 v5, 1, v{vL}
    v_lshl_or_b32 v4, v4, 1, v5
    v_lshrrev_b32 v5, 3, v{vL}
    v_lshlrev_b32 v5, 10, v5
    v_lshl_add_u32 v4, v4, 4, v5
    s_lshl_b32 s{T0}, s{sE}, 7
    s_mul_i32 s{T1}, s{sW}, {448*1024}
    s_add_u32 s{T0}, s{T0}, s{T1}
    v_add_u32 v17, s{T0}, v4
    s_mul_i32 s{T0}, s{sW}, {DSTR}
    v_add_u32 v18, s{T0}, v{vL16}
    v_mov_b32 v{hF}, {L_F}
    v_mov_b32 v{hONE}, 1
    s_lshl_b32 s{T0}, s{sW}, 2
    v_add_u32 v{hFw}, s{T0}, v{hF}
    v_lshl_add_u32 v4, v{vL}, 2, v{hF}
    v_mov_b32 v5, 0
    ds_write_b32 v4, v5
    """)
    W2B = 32

    def w2_load(i):
        if i % 4 == 0:
            pk = DPERM[i // 4]
            a(f"s_{'add' if pk < 7 else 'sub'}_u32 s{sA}, {pk}, s{sRD}\ns_lshl_b32 s{sA}, s{sA}, 15")
        a(f"s_add_u32 s{T1}, s{sA}, {(i%4)*8192}")
        a.vmem(f"W2_{i//4}", f"buffer_load_dwordx4 {vr(W2B+4*i,4)}, v17, {R(R_W2)}, s{T1} offen")

    W2SAFE = (RLF - W2B) // 4
    lo = [lambda i=i: w2_load(i) for i in range(56)]
    nlo = [0]

    npz = [0]

    def pause():
        if cfg["pause"]:
            npz[0] += 1
            waitf(a, f"L_hp{npz[0]}", F_PAUSE, hF, 31, 0, cmp="eq")

    def fill(n, limit=56):
        for k in range(n):
            if lo and nlo[0] < limit:
                if k % cfg["pchk"] == 0:
                    pause()
                lo.pop(0)()
                nlo[0] += 1

    def w1_slot(n):
        for qq in range(8):
            if qq % cfg["pchk"] == 0:
                pause()
            w1_dma(n, qq)

    q = cfg["q"]
    a(f"""
    v_lshrrev_b32 v4, 2, v{vI}
    v_and_b32 v5, 3, v{vI}
    v_xor_b32 v5, v5, v{vG}
    v_lshlrev_b32 v5, 4, v5
    v_lshl_add_u32 v5, v{vI}, 10, v5
    s_and_b32 s{T0}, s{sW}, 1
    s_lshl_b32 s{T1}, s{T0}, 14
    v_add_u32 v5, s{T1}, v5
    """)
    for k3 in range(4):
        a(f"v_xor_b32 v6, {k3}, v4")
        a(f"v_lshl_add_u32 v{100+k3}, v6, 6, v5")
    a(f"""
    s_lshl_b32 s{T0}, s{T0}, 6
    s_add_u32 s{T0}, s{T0}, {L_SA}
    v_lshl_add_u32 v104, v{vG}, 4, s{T0}
    v_lshl_add_u32 v105, v{vI}, 2, s{T0}
    v_cmp_eq_u32 s[{R_ST}:{R_ST+1}], v4, v{vG}
    v_and_b32 v106, 3, v{vI}
    """)
    a.stamp()
    for k in range(q[0]):
        trig_dma(k)
    a.vwait("A")
    a("s_waitcnt lgkmcnt(0)")
    a.stamp()
    a("s_barrier")
    a.stamp()
    for ks in range(16):
        a(f"ds_read_b128 {vr(32+4*ks,4)}, v{100+(ks&3)} offset:{L_XA + (ks>>2)*256}")
    a(f"""
    s_cmp_ge_u32 s{sW}, 2
    s_cbranch_scc1 L_h_sq
    """)
    for ks in range(16):
        a(f"s_waitcnt lgkmcnt({min(15, 15-ks)})")
        mfma(a, "v[96:99]", vr(32 + 4 * ks, 4), vr(ONE, 4), "0" if ks == 0 else None)
    a.nop(8)
    a("""
    s_mov_b32 exec_lo, 0x00010001
    s_mov_b32 exec_hi, 0x00010001
    ds_write_b128 v104, v[96:99]
    s_branch L_h_stat_done
    """)
    a.label("L_h_sq")
    for ks in range(16):
        a(f"s_waitcnt lgkmcnt({min(15, 15-ks)})")
        mfma(a, "v[96:99]", vr(32 + 4 * ks, 4), vr(32 + 4 * ks, 4), "0" if ks == 0 else None)
    a(f"""
    v_cmp_eq_u32 vcc, 1, v106
    v_cmp_eq_u32 s[{sM}:{sM+1}], 2, v106
    v_cmp_eq_u32 s[{R_ST+2}:{R_ST+3}], 3, v106
    """)
    a.nop(6)
    a(f"""
    v_cndmask_b32 v96, v96, v97, vcc
    v_cndmask_b32 v96, v96, v98, s[{sM}:{sM+1}]
    v_cndmask_b32 v96, v96, v99, s[{R_ST+2}:{R_ST+3}]
    s_mov_b64 exec, s[{R_ST}:{R_ST+1}]
    ds_write_b32 v105, v96 offset:128
    """)
    a.label("L_h_stat_done")
    a("s_mov_b64 exec, -1")
    for k in range(q[0], q[0] + q[1]):
        trig_dma(k)
    a("s_waitcnt lgkmcnt(0)")
    a.stamp()
    a("s_barrier")
    a.stamp()
    for k in range(q[0] + q[1], 16):
        trig_dma(k)
    for n in range(4):
        xt_dma(n)
    for qq in range(q[2]):
        w1_dma(0, qq)
    a.vwait("T")
    sig(a, F_TRIG, hF, hONE)
    a.stamp()
    if cfg["touch"] & 2:
        touch(a, R_W2, 26)
    for qq in range(q[2], 8):
        if qq % cfg["pchk"] == 0:
            pause()
        w1_dma(0, qq)
    w1_slot(1)
    w1_slot(2)
    w1_slot(3)
    a.stamp()
    W2S1 = (W1S - W2B) // 4
    relayout(0)
    fill(q[3], W2S1)
    relayout(1)
    fill(q[4], W2S1)
    a.stamp()
    waitf(a, "L_htc", F_TC, hF, 31, 256)
    a.stamp()
    w1_unstage(2)
    relayout(2)
    w1_unstage(3)
    relayout(3)
    a.nop(4)
    a("s_mov_b32 exec_lo, 0x00010001")
    a("s_mov_b32 exec_hi, 0x00010001")
    for u in range(7):
        a(f"ds_write_b128 v25, {vr(CSV+4*u,4)} offset:{u*64}")
    a("s_mov_b64 exec, -1")
    a("s_waitcnt lgkmcnt(0)")
    sig(a, F_W1, hF, hONE)
    a.stamp()
    fill(100)
    a.stamp()
    waitf(a, "L_hcd", F_CD, hF, 31, 256)
    a.stamp()

    def dump(ks):
        a.vwait(f"W2_{ks}")
        for p in range(4):
            a(f"ds_write_b128 v18, {vr(W2B+4*(ks*4+p),4)} offset:{(ks%DSL)*4096+p*1024}")

    for ks in range(DSL):
        dump(ks)
    a("s_waitcnt lgkmcnt(0)")
    sig(a, F_D1, hFw, hONE)
    a.stamp()
    a(f"""
    s_cmp_ge_u32 s{sW}, 1
    s_cbranch_scc1 L_hp3_done
    s_lshl_b32 s{T0}, s{sW}, 4
    s_add_u32 s{T0}, s{T0}, s{sRB}
    s_add_u32 s{T0}, s{T0}, 80
    s_lshl_b32 s{T0}, s{T0}, 8
    v_mov_b32 v4, s{T0}
    s_mul_i32 s{T0}, s{sW}, {4*(F_GO4-F_GO3)}
    v_add_u32 v5, s{T0}, v{hF}
    s_mov_b64 exec, 1
    s_mov_b32 s{T0}, 0
    """)
    a.label("L_hp3_loop")
    a(f"""
    buffer_load_dword v31, v4, {R(R_CNT)}, 0 offen sc1
    s_add_u32 s{T0}, s{T0}, 1
    s_cmp_ge_u32 s{T0}, 0x40000
    s_cbranch_scc1 L_hp3_exit
    s_waitcnt vmcnt(0)
    v_cmp_gt_u32 vcc, 16, v31
    s_cbranch_vccnz L_hp3_loop
    """)
    a.label("L_hp3_exit")
    a("s_mov_b64 exec, -1")
    sig(a, F_GO3, 5, hONE)
    a.label("L_hp3_done")
    waitf(a, "L_hs", F_S, hFw, 31, 64)
    for ks in range(DSL, 14):
        dump(ks)
    a("s_waitcnt lgkmcnt(0)")
    sig(a, F_D2, hFw, hONE)
    stamp_out(a, 4)


def main():
    cfg = {"hdepth": 4, "ddepth": 3, "h1ring": 7, "dump1": 8, "rot": 1, "diag": 0, "q": [2, 2, 4, 4, 4], "touch": 0, "probe": 2, "pb": 0, "pc": 0, "pause": 1, "pchk": 4, "ar3a": 6}
    out = f"cdna_kernels/{NAME}.s"
    for arg in sys.argv[1:]:
        if "=" in arg:
            k, v = arg.split("=")
            cfg[k] = [int(x) for x in v.split(",")] if k == "q" else int(v)
        else:
            out = arg
    a = Asm()
    a.diag = cfg["diag"]
    a.vstamp = 27
    a.sstamp = R_H1
    if a.diag:
        def stamp():
            n = a.nstamp
            a.nstamp += 1
            a(f"s_memtime s[{a.sstamp}:{a.sstamp+1}]")
            a("s_waitcnt lgkmcnt(0)")
            a(f"v_writelane_b32 v{a.vstamp}, s{a.sstamp}, {n}")
        a.stamp = stamp
    kname = NAME + "_kernel"
    a.raw(HEADER.rstrip("\n"))
    a.raw(f"; @launch grid=(256,1,1) block=(512,1,1) lds={LDS_TOTAL}")
    a.raw('.amdgcn_target "amdgcn-amd-amdhsa--gfx950"')
    a.raw(".text")
    a.raw(f".globl {kname}")
    a.raw(".p2align 8")
    a.raw(f".type {kname},@function")
    a.label(kname)
    prologue(a, cfg['rot'])
    compute(a, cfg)
    helper(a, cfg)
    a.label("L_end")
    a("s_endpgm")
    a.raw('.section .rodata,"a"')
    a.raw(".p2align 6")
    a.raw(f""".amdhsa_kernel {kname}
  .amdhsa_next_free_vgpr 256
  .amdhsa_next_free_sgpr 102
  .amdhsa_accum_offset 256
  .amdhsa_group_segment_fixed_size 0
  .amdhsa_kernarg_size 88
  .amdhsa_user_sgpr_count 2
  .amdhsa_user_sgpr_kernarg_segment_ptr 1
  .amdhsa_system_sgpr_workgroup_id_x 1
.end_amdhsa_kernel""")
    open(out, "w").write(a.text())


if __name__ == "__main__":
    main()
```

```python
import sys
from gen2 import (Asm, vr, srd, mfma, treduce4, allreduce_g, transpose4, NAME, ZA_OFF, ZA_SZ, Z512_OFF, Z512_SZ,
                  CNT_OFF, CNT_SZ, STAT_OFF, STAT_SZ, H_OFF, H_SZ, H1_OFF, H1_SZ, STAMP_OFF, OOB, HEADER)

LDS_TOTAL = 163840
CNT_SZ = 128 * 256
DPERM = [0, 1, 4, 5, 7, 8, 11, 12, 2, 3, 6, 9, 10, 13]
L_XA, L_GA, L_SA, L_XT, L_TR, L_F = 0, 32768, 65536, 81664, 98048, 163584
L_BX, L_CS = 147456, 151552
DSL, DSTR = 9, 9 * 4096
F_TRIG, F_TC, F_W1, F_CD, F_PAUSE, F_AR1, F_AR2, F_AR3, F_GO1, F_GO2, F_GO3 = range(11)
F_X, F_D1, F_S, F_D2 = 12, 16, 20, 24
F_AR4, F_GO4 = 28, 29
vF, vONE, vFw = 14, 15, 29
hF, hONE, hFw = 28, 29, 30

sW = 3
sRB, sC16, sSB, sE4, sPT, sE, sP, sT = 4, 5, 6, 7, 8, 9, 10, 11
R_X, R_CR, R_CI, R_DR, R_DI, R_W1, R_W2, R_OUT = 12, 16, 20, 24, 28, 32, 36, 40
R_ZA, R_Z5, R_CNT, R_ST, R_H, R_H1, R_DBG, R_CF = 44, 48, 52, 56, 60, 64, 68, 72
T0, T1, T2, T3 = 76, 77, 78, 79
sK4, sK8, sK12 = 80, 81, 82
sONES, sHI = 83, 84
sA, sB, sC, sD, sF, sG, sH = 85, 86, 87, 88, 89, 90, 91
sEX = 92
sRC, sRD, sCUR = 98, 99, 100
sM = 94
sWS = 96
vL, vG, vI, vL16 = 0, 1, 2, 3


def R(b):
    return f"s[{b}:{b+3}]"


USE_PAUSE = [0]


def sig(a, word, vf, vone, per_wave=False):
    if word == F_PAUSE and not USE_PAUSE[0]:
        return
    a("s_mov_b64 exec, 1")
    a(f"ds_add_u32 v{vf}, v{vone} offset:{4*word}")
    a("s_mov_b64 exec, -1")


def waitf(a, name, word, vf, vtmp, target, cmp="ge"):
    a(f"s_mov_b32 s{T3}, 0")
    a.label(f"{name}_l")
    a(f"""
    ds_read_b32 v{vtmp}, v{vf} offset:{4*word}
    s_add_u32 s{T3}, s{T3}, 1
    s_waitcnt lgkmcnt(0)
    v_readfirstlane_b32 s{T2}, v{vtmp}
    s_cmp_ge_u32 s{T3}, 0x200000
    s_cbranch_scc1 {name}_x
    s_cmp_{'lt' if cmp == 'ge' else 'lg'}_u32 s{T2}, {target // 64}
    s_cbranch_scc1 {name}_l
    """)
    a.label(f"{name}_x")


def poll(a, name, vaddr, vtmp, lanes_mask, target, goword, vf, vone):
    a(f"""
    s_cmp_lg_u32 s{sW}, 0
    s_cbranch_scc1 {name}_others
    s_mov_b64 exec, {lanes_mask}
    s_mov_b32 s{T0}, 0
    """)
    a.label(f"{name}_loop")
    a(f"""
    buffer_load_dword v{vtmp}, v{vaddr}, {R(R_CNT)}, 0 offen sc1
    s_add_u32 s{T0}, s{T0}, 1
    s_cmp_ge_u32 s{T0}, 0x40000
    s_cbranch_scc1 {name}_exit
    s_waitcnt vmcnt(0)
    v_cmp_gt_u32 vcc, {target}, v{vtmp}
    s_cbranch_vccnz {name}_loop
    """)
    a.label(f"{name}_exit")
    a("s_mov_b64 exec, -1")
    sig(a, goword, vf, vone)
    a(f"s_branch {name}_done")
    a.label(f"{name}_others")
    waitf(a, f"{name}_w", goword, vf, vtmp, 64)
    a.label(f"{name}_done")


def arrive(a, name, vaddr, vtmp, lanes_mask, arword, vf, vone):
    a(f"""
    s_mov_b64 exec, 1
    ds_add_rtn_u32 v{vtmp}, v{vf}, v{vone} offset:{4*arword}
    {f"ds_sub_u32 v{vf}, v{vone} offset:{4*F_PAUSE}" if USE_PAUSE[0] else ""}
    s_mov_b64 exec, -1
    s_waitcnt lgkmcnt(0)
    v_readfirstlane_b32 s{T0}, v{vtmp}
    s_nop 3
    s_cmp_lg_u32 s{T0}, 3
    s_cbranch_scc1 {name}_skip
    s_mov_b64 exec, {lanes_mask}
    buffer_atomic_add v{vone}, v{vaddr}, {R(R_CNT)}, 0 offen sc1
    s_mov_b64 exec, -1
    """)
    a.label(f"{name}_skip")


def touch(a, rsrc, vdst):
    a(f"""
    s_lshr_b32 s{T0}, s2, 3
    s_mul_i32 s{T0}, s{T0}, {448*128}
    s_lshl_b32 s{T1}, s{sW}, 13
    s_add_u32 s{T0}, s{T0}, s{T1}
    s_add_u32 s{T1}, s{T0}, 32768
    v_lshlrev_b32 v4, 7, v{vL}
    """)
    a.vmem("PF", f"buffer_load_dword v{vdst}, v4, {R(rsrc)}, s{T0} offen")
    a.vmem("PF", f"buffer_load_dword v{vdst}, v4, {R(rsrc)}, s{T1} offen")


def stamp_out(a, wave_add):
    if not a.diag:
        return
    a("s_waitcnt vmcnt(0)")
    a.stamp()
    srd(a, R_ZA, sWS, sWS + 1, 1 << 20, STAMP_OFF)
    a(f"""
    s_lshl_b32 s{T0}, s2, 3
    s_add_u32 s{T0}, s{T0}, s{sW}
    s_add_u32 s{T0}, s{T0}, {wave_add}
    s_lshl_b32 s{T0}, s{T0}, 8
    v_lshl_add_u32 v4, v{vL}, 2, s{T0}
    buffer_store_dword v{a.vstamp}, v4, {R(R_ZA)}, 0 offen
    """)


P_X, P_CR, P_CI, P_DR, P_DI, P_W1, P_W2, P_OUT, P_DBG = 44, 46, 48, 50, 52, 56, 58, 60, 62


def prologue(a, ROT):
    a(f"""
    s_cmp_ge_u32 s2, 256
    s_cbranch_scc1 L_end
    s_load_dwordx16 s[44:59], s[0:1], 0
    s_load_dwordx4 s[60:63], s[0:1], 64
    s_load_dwordx2 s[96:97], s[0:1], 80
    v_lshrrev_b32 v4, 6, v0
    v_and_b32 v0, 63, v0
    v_lshrrev_b32 v1, 4, v0
    v_readfirstlane_b32 s79, v4
    v_and_b32 v2, 15, v0
    v_lshlrev_b32 v3, 4, v0
    """)
    if a.diag:
        a(f"v_mov_b32 v{a.vstamp}, 0")
    a.stamp()
    a(f"""
    s_and_b32 s{sW}, s{T3}, 3
    s_and_b32 s{T0}, s2, 7
    s_lshr_b32 s{T1}, s2, 3
    s_lshl_b32 s{sSB}, s{T0}, 3
    s_and_b32 s{T2}, s{T1}, 7
    s_add_u32 s{sSB}, s{sSB}, s{T2}
    s_lshr_b32 s{sE4}, s{T1}, 3
    s_lshl_b32 s{sC}, s{sW}, 13
    s_cmp_ge_u32 s{T3}, 4
    s_cbranch_scc1 L_helper
    """)


def late_setup(a, ROT):
    a(f"""
    s_and_b32 s{T0}, s2, 7
    s_lshr_b32 s{T1}, s2, 3
    s_and_b32 s{T2}, s{T1}, 1
    s_lshl_b32 s{sRB}, s{T0}, 1
    s_add_u32 s{sRB}, s{sRB}, s{T2}
    s_lshr_b32 s{sC16}, s{T1}, 1
    s_and_b32 s{T2}, s{sC16}, 1
    s_lshl_b32 s{sPT}, s{sRB}, 1
    s_add_u32 s{sPT}, s{sPT}, s{T2}
    s_lshr_b32 s{sE}, s{sC16}, 1
    s_lshr_b32 s{sP}, s{sPT}, 4
    s_and_b32 s{sT}, s{sPT}, 15
    s_mov_b32 s{sK4}, 4096
    s_mov_b32 s{sK8}, 8192
    s_mov_b32 s{sK12}, 12288
    s_mov_b32 s{sONES}, 0x3f803f80
    s_mov_b32 s{sHI}, 0xffff0000
    s_mov_b32 s{sEX}, -1
    s_mov_b32 s{sEX+1}, 0x00ffffff
    s_and_b32 s{sRC}, s{sRB}, 14
    s_mul_i32 s{sRC}, s{sRC}, {ROT}
    s_bfe_u32 s{T0}, s{sRB}, 0x10001
    s_mul_i32 s{sRD}, s{T0}, {7*ROT}
    """)
    srd(a, R_DBG, P_DBG, P_DBG + 1, 256)
    a(f"""
    s_cmp_eq_u32 s{sP}, 0
    s_cselect_b32 s{R_CF}, s{P_CR}, s{P_CI}
    s_cselect_b32 s{R_CF+1}, s{P_CR+1}, s{P_CI+1}
    s_mov_b32 s{R_CF+2}, {2048*4096}
    s_mov_b32 s{R_CF+3}, 0x20000
    """)
    srd(a, R_OUT, P_OUT, P_OUT + 1, 2048 * 1024)
    srd(a, R_W2, P_W2, P_W2 + 1, 1792 * 1024)
    srd(a, R_W1, P_W1, P_W1 + 1, 512 * 3584)
    srd(a, R_CI, P_CI, P_CI + 1, 2048 * 4096)
    srd(a, R_CR, P_CR, P_CR + 1, 2048 * 4096)
    srd(a, R_X, P_X, P_X + 1, 2048 * 1024)
    srd(a, R_CNT, sWS, sWS + 1, CNT_SZ, CNT_OFF)


def compute(a, cfg):
    a.sstamp = R_DI
    a(f"""
    s_and_b32 s{T0}, s{sW}, 1
    s_lshl_b32 s{T1}, s{T0}, 2
    s_lshr_b32 s{T2}, s{sW}, 1
    s_add_u32 s{T1}, s{T1}, s{T2}
    s_lshl_b32 s{T2}, s{sSB}, 3
    s_add_u32 s{sA}, s{T1}, s{T2}
    s_lshl_b32 s{sB}, s{T0}, 7
    v_xor_b32 v13, s{sB}, v{vL16}
    s_waitcnt lgkmcnt(0)
    """)
    a.stamp()
    srd(a, R_X, P_X, P_X + 1, 2048 * 1024)
    for q in range(8):
        r = q & 3
        add = 2 * (q >> 2)
        if r == 0:
            a(f"s_add_u32 s{T0}, s{sA}, {add}")
        elif r == 1:
            a(f"s_sub_u32 s{T0}, {2048-add}, s{sA}")
            if add == 0:
                a(f"s_cmp_eq_u32 s{sA}, 0\ns_cselect_b32 s{T0}, 512, s{T0}")
        elif r == 2:
            a(f"s_add_u32 s{T0}, s{sA}, {1024+add}")
        else:
            a(f"s_sub_u32 s{T0}, {1024-add}, s{sA}")
            if add == 0:
                a(f"s_cmp_eq_u32 s{sA}, 0\ns_cselect_b32 s{T0}, 1536, s{T0}")
        a(f"""
        s_lshl_b32 s{T0}, s{T0}, 10
        s_add_u32 m0, s{sC}, {L_XA + q*1024}
        v_xor_b32 v4, {q*16}, v13
        """)
        a.vmem("A", f"buffer_load_dwordx4 v4, {R(R_X)}, s{T0} offen lds")
    late_setup(a, cfg["rot"])
    if cfg["touch"] & 1:
        touch(a, R_W1, 250)
    if cfg["touch"] & 4:
        touch(a, R_W2, 250)
    srd(a, R_ZA, sWS, sWS + 1, ZA_SZ, ZA_OFF)
    srd(a, R_Z5, sWS, sWS + 1, Z512_SZ, Z512_OFF)
    srd(a, R_ST, sWS, sWS + 1, STAT_SZ, STAT_OFF)
    srd(a, R_H, sWS, sWS + 1, H_SZ, H_OFF)
    srd(a, R_H1, sWS, sWS + 1, H1_SZ, H1_OFF)
    a.stamp()
    vT, vJ2 = 26, 28
    vC1a, vC1p, vC2 = 29, 30, 31
    CF0, CF1 = 24, 25
    a(f"""
    s_lshr_b32 s{sA}, s{sW}, 1
    s_and_b32 s{sB}, s{sW}, 1
    s_lshl_b32 s{T0}, s{sT}, 6
    s_add_u32 s{T0}, s{T0}, s{sP}
    s_lshl_b32 s{T1}, s{sA}, 5
    s_add_u32 s{T0}, s{T0}, s{T1}
    v_lshl_add_u32 v{vT}, v{vI}, 1, s{T0}
    v_cmp_eq_u32 vcc, 0, v{vT}
    s_lshl_b32 s{T0}, s{sE}, 6
    s_lshl_b32 s{T1}, s{sB}, 5
    s_add_u32 s{T0}, s{T0}, s{T1}
    v_lshl_add_u32 v{vJ2}, v{vG}, 3, s{T0}
    v_lshlrev_b32 v6, 12, v{vT}
    v_mov_b32 v7, {1024*4096}
    v_cndmask_b32 v7, v6, v7, vcc
    """)
    a.vmem("CF", f"buffer_load_ushort v{CF0}, v6, {R(R_CF)}, 0 offen offset:1024")
    a.vmem("CF", f"buffer_load_ushort v{CF1}, v7, {R(R_CF)}, 0 offen offset:1024")
    a(f"""
    s_lshl_b32 s{T0}, s{sE4}, 2
    s_and_b32 s{T1}, s{sSB}, 3
    s_add_u32 s{T0}, s{T0}, s{T1}
    s_lshl_b32 s{T0}, s{T0}, 10
    v_lshl_add_u32 v{vC1a}, v{vL}, 8, s{T0}
    s_lshr_b32 s{T0}, s{sE}, 1
    s_lshl_b32 s{T0}, s{T0}, 12
    s_and_b32 s{T1}, s{sPT}, 3
    s_lshl_b32 s{T1}, s{T1}, 8
    s_add_u32 s{T0}, s{T0}, s{T1}
    v_lshl_add_u32 v{vC1p}, v{vL}, 10, s{T0}
    s_lshl_b32 s{T0}, s{sRB}, 8
    s_add_u32 s{T0}, s{T0}, {64*256}
    v_mov_b32 v{vC2}, s{T0}
    """)
    a(f"""
    v_mov_b32 v{vF}, {L_F}
    v_mov_b32 v{vONE}, 1
    v_lshrrev_b32 v4, 2, v{vI}
    v_xor_b32 v4, s{sW}, v4
    v_and_b32 v5, 3, v{vI}
    v_xor_b32 v5, v5, v{vG}
    v_lshlrev_b32 v5, 4, v5
    s_add_u32 s{T0}, s{sC}, {L_GA}
    """)
    for kp in range(4):
        a(f"""
        v_xor_b32 v6, {kp}, v4
        v_lshl_add_u32 v6, v6, 6, v5
        v_lshl_add_u32 v{16+kp}, v{vI}, 10, v6
        v_lshl_add_u32 v6, v{vI}, 8, v6
        v_add_u32 v{20+kp}, s{T0}, v6
        """)
    GF, XFB, ACC = 32, 64, 128
    gf = lambda typ, kp: GF + (typ * 4 + kp) * 4
    xf = lambda b, Q, tau: XFB + b * 32 + (Q * 2 + tau) * 4
    acc = lambda Q, tau, typ: ACC + ((Q * 2 + tau) * 2 + typ) * 4
    CSA = 192
    for r in range(4):
        a(f"v_mov_b32 v{216+r}, s{sONES}")
    SIG, C1, S1, CSM = 200, 202, 204, 206
    a(f"""
    v_and_b32 v4, 1, v{vI}
    v_lshlrev_b32 v5, 31, v4
    v_or_b32 v{SIG}, 1.0, v5
    v_and_b32 v5, 2, v{vI}
    v_lshlrev_b32 v5, 30, v5
    v_or_b32 v5, 1.0, v5
    v_cmp_eq_u32 vcc, 0, v4
    v_mov_b32 v{SIG+1}, v{SIG}
    v_and_b32 v6, 3, v{vI}
    v_cndmask_b32 v{C1}, 0, v5, vcc
    v_cndmask_b32 v{S1}, v5, 0, vcc
    v_cmp_eq_u32 vcc, 0, v6
    v_mov_b32 v{C1+1}, v{C1}
    v_mov_b32 v{S1+1}, v{S1}
    v_cndmask_b32 v{CSM}, 0, 4.0, vcc
    """)
    a(f"""
    v_lshlrev_b32 v9, 4, v{vG}
    v_add_u32 v9, {L_SA}, v9
    s_lshl_b32 s{T0}, s{sE4}, 2
    s_add_u32 s{T0}, s{T0}, s{sW}
    s_lshl_b32 s{T0}, s{T0}, 14
    s_lshl_b32 s{T1}, s{sSB}, 8
    s_add_u32 s{T0}, s{T0}, s{T1}
    v_lshl_add_u32 v12, v{vI}, 4, s{T0}
    v_lshl_add_u32 v12, v{vG}, 18, v12
    v_or_b32 v13, s{sSB}, v{vG}
    v_cmp_eq_u32 s[{sM}:{sM+1}], 0, v13
    v_mov_b32 v220, 0x3b000000
    v_mov_b32 v221, 0x3b000000
    v_mov_b32 v222, 0x3727c5ac
    v_mov_b32 v223, 0x3727c5ac
    """)
    a.vwait("A")
    a("s_barrier")
    a.stamp()
    for typ in range(2):
        for kp in range(4):
            a(f"ds_read_b128 {vr(gf(typ,kp),4)}, v{20+kp} offset:{typ*4096}")

    def xreads(kp):
        for Q in range(4):
            for tau in range(2):
                a(f"ds_read_b128 {vr(xf(kp&1,Q,tau),4)}, v{16+kp} offset:{L_XA + Q*256 + tau*16384}")

    xreads(0)
    for kp in range(4):
        a("s_waitcnt lgkmcnt(0)")
        if kp < 3:
            xreads(kp + 1)
        if kp == 3:
            a.stamp()
            a("s_barrier")
            a("ds_read_b128 v[88:91], v9")
            a("ds_read_b128 v[92:95], v9 offset:64")
            a("ds_read_b128 v[80:83], v9 offset:128")
            a("ds_read_b128 v[84:87], v9 offset:192")
        fill = []
        if kp == 3:
            fill = ["s_nop 0"] * 9 + ["s_waitcnt lgkmcnt(0)"]
            for r in range(0, 8, 2):
                fill.append(f"v_pk_mul_f32 {vr(88+r,2)}, {vr(88+r,2)}, v[220:221]")
            for r in range(0, 8, 2):
                fill.append(f"v_pk_fma_f32 {vr(80+r,2)}, {vr(80+r,2)}, v[220:221], v[222:223]")
            for r in range(0, 8, 2):
                fill.append(f"v_pk_fma_f32 {vr(80+r,2)}, {vr(88+r,2)}, {vr(88+r,2)}, {vr(80+r,2)} neg_lo:[1,0,0] neg_hi:[1,0,0]")
            for r in range(8):
                fill.append(f"v_max_f32 v{80+r}, v222, v{80+r}")
            for r in range(8):
                fill.append(f"v_rsq_f32 v{80+r}, v{80+r}")
            fill += ["v_mov_b32 v73, v81", "v_mov_b32 v75, v83",
                     f"v_cndmask_b32 v81, v81, 0, s[{sM}:{sM+1}]", f"v_cndmask_b32 v83, v83, 0, s[{sM}:{sM+1}]"]
        per = (len(fill) + 15) // 16
        for typ in range(2):
            mfma(a, vr(CSA + 4 * typ, 4), "v[216:219]", vr(gf(typ, kp), 4), "0" if kp == 0 else None)
        for Q in range(4):
            for tau in range(2):
                for typ in range(2):
                    mfma(a, vr(acc(Q, tau, typ), 4), vr(xf(kp & 1, Q, tau), 4), vr(gf(typ, kp), 4), "0" if kp == 0 else None)
                    for _ in range(per):
                        if fill:
                            f = fill.pop(0)
                            if f != "s_nop 0":
                                a(f)
    sig(a, F_PAUSE, vF, vONE)
    a(f"v_mul_f32 v{CSA}, v{CSM}, v{CSA}")
    a(f"v_mul_f32 v{CSA+4}, v{CSM}, v{CSA+4}")
    a.stamp()
    KK, MM, KT = 80, 88, 72
    a.nop(4)
    for tau in range(2):
        for r in (0, 2):
            C = [acc(Q, tau, 0) + r for Q in range(4)]
            I = [acc(Q, tau, 1) + r for Q in range(4)]
            t0, t1, t2, t3 = 208, 210, 212, 214
            a(f"""
            v_pk_fma_f32 {vr(C[0],2)}, {vr(SIG,2)}, {vr(C[2],2)}, {vr(C[0],2)}
            v_pk_fma_f32 {vr(I[0],2)}, {vr(SIG,2)}, {vr(I[2],2)}, {vr(I[0],2)}
            v_pk_add_f32 {vr(t0,2)}, {vr(C[1],2)}, {vr(C[3],2)}
            v_pk_add_f32 {vr(t1,2)}, {vr(I[1],2)}, {vr(I[3],2)} neg_lo:[0,1] neg_hi:[0,1]
            v_pk_add_f32 {vr(t2,2)}, {vr(I[1],2)}, {vr(I[3],2)}
            v_pk_add_f32 {vr(t3,2)}, {vr(C[3],2)}, {vr(C[1],2)} neg_lo:[0,1] neg_hi:[0,1]
            v_pk_fma_f32 {vr(C[0],2)}, {vr(C1,2)}, {vr(t0,2)}, {vr(C[0],2)}
            v_pk_fma_f32 {vr(I[0],2)}, {vr(C1,2)}, {vr(t2,2)}, {vr(I[0],2)}
            v_pk_fma_f32 {vr(C[0],2)}, {vr(S1,2)}, {vr(t1,2)}, {vr(C[0],2)}
            v_pk_fma_f32 {vr(I[0],2)}, {vr(S1,2)}, {vr(t3,2)}, {vr(I[0],2)}
            """)
    OZ = 100
    for tau in range(2):
        for typ in range(2):
            d = acc(0, tau, typ)
            for r in range(4):
                a(f"v_fma_f32 v{d+r}, -v{MM+4*tau+r}, v{CSA+4*typ}, v{d+r}")
            sg = "-" if typ else ""
            e, f = 108, 109
            a(f"""
            v_mul_f32 v{e}, v{KK+4*tau}, v{d}
            v_mul_f32 v{f}, v{KK+4*tau+2}, v{d+2}
            v_fma_f32 v{e}, {sg}v{KK+4*tau+1}, v{d+1}, v{e}
            v_fma_f32 v{f}, {sg}v{KK+4*tau+3}, v{d+3}, v{f}
            v_add_f32 v{OZ+(typ*2+0)*2+tau}, v{e}, v{f}
            v_sub_f32 v{OZ+(typ*2+1)*2+tau}, v{e}, v{f}
            """)
    for arr in range(4):
        a(f"v_cvt_pk_bf16_f32 v{112+arr}, v{OZ+2*arr}, v{OZ+2*arr+1}")
    a.nop(2)
    transpose4(a, 112, 113, 114, 115)
    a.nop(1)
    a.vmem("SZ", f"buffer_store_dwordx4 v[112:115], v12, {R(R_ZA)}, 0 offen sc1")
    a(f"""
    s_cmp_lg_u32 s{sSB}, 0
    s_cbranch_scc1 L_noex
    v_mul_f32 v108, v{KT+1}, v{acc(0,0,0)+1}
    v_mul_f32 v109, v{KT+1}, v{acc(0,0,1)+1}
    v_fma_f32 v108, v{KT+3}, v{acc(0,0,0)+3}, v108
    v_fma_f32 v109, -v{KT+3}, v{acc(0,0,1)+3}, v109
    s_lshl_b32 s{T0}, s{sE4}, 8
    s_lshl_b32 s{T1}, s{sW}, 6
    s_add_u32 s{T0}, s{T0}, s{T1}
    v_lshl_add_u32 v110, v{vI}, 2, s{T0}
    s_mov_b64 exec, 0xffff
    buffer_store_dword v108, v110, {R(R_Z5)}, 0 offen sc1
    buffer_store_dword v109, v110, {R(R_Z5)}, 0 offen offset:1024 sc1
    s_mov_b64 exec, -1
    """)
    a.label("L_noex")
    a.stamp()
    a(f"""
    s_cmp_lg_u32 s{sW}, 0
    s_cbranch_scc1 L_rdy_done
    v_mov_b32 v4, 0
    s_mov_b64 exec, 1
    s_mov_b32 s{T0}, 0
    """)
    a.label("L_rdy_loop")
    a(f"""
    buffer_load_dword v5, v4, {R(R_DBG)}, 0 offen sc1
    s_add_u32 s{T0}, s{T0}, 1
    s_cmp_ge_u32 s{T0}, 0x40000
    s_cbranch_scc1 L_rdy_exit
    s_waitcnt vmcnt(0)
    v_cmp_eq_u32 vcc, 0, v5
    s_cbranch_vccnz L_rdy_loop
    """)
    a.label("L_rdy_exit")
    a("s_mov_b64 exec, -1")
    a.label("L_rdy_done")
    a(f"""
    v_lshrrev_b32 v4, 2, v{vI}
    v_and_b32 v5, 3, v{vI}
    v_xor_b32 v5, v5, v{vG}
    v_lshlrev_b32 v5, 4, v5
    v_lshl_add_u32 v5, v{vI}, 10, v5
    s_mul_i32 s{T0}, s{sA}, {32768+16384}
    s_add_u32 s{T0}, s{T0}, {L_TR}
    s_lshl_b32 s{T1}, s{sA}, 15
    s_sub_u32 s{T1}, 16384, s{T1}
    v_add_u32 v5, s{T0}, v5
    """)
    for k3 in range(4):
        a(f"""
        v_xor_b32 v6, {k3}, v4
        v_lshl_add_u32 v{8+k3}, v6, 6, v5
        v_add_u32 v{16+k3}, s{T1}, v{8+k3}
        """)
    a(f"""
    s_lshl_b32 s{T0}, s{sA}, 12
    s_add_u32 s{T0}, s{T0}, {L_XT}
    v_lshl_add_u32 v4, v{vI}, 8, s{T0}
    s_lshl_b32 s{T1}, s{sB}, 5
    v_lshl_add_u32 v5, v{vG}, 3, s{T1}
    v_lshlrev_b32 v7, 4, v{vI}
    v_xor_b32 v6, v5, v7
    v_add_u32 v20, v4, v6
    v_sub_u32 v6, {64+56}, v5
    v_xor_b32 v6, v6, v7
    v_add_u32 v21, v4, v6
    v_sub_u32 v6, {64+64}, v5
    v_cmp_eq_u32 s[{sM}:{sM+1}], 0, v{vJ2}
    v_mov_b32 v23, {9*16}
    s_nop 0
    v_cndmask_b32 v6, v6, v23, s[{sM}:{sM+1}]
    v_xor_b32 v6, v6, v7
    v_add_u32 v22, v4, v6
    """)
    a.vwait_all()
    a.stamp()
    arrive(a, "L_ar1", vC1a, 4, "0xf", F_AR1, vF, vONE)
    a(f"s_lshl_b32 s{T0}, s{sW}, 2")
    a(f"v_add_u32 v{vFw}, s{T0}, v{vF}")
    a.stamp()
    waitf(a, "L_wtrig", F_TRIG, vF, 4, 256)
    a.stamp()
    XR = 36
    for mir in range(2):
        a(f"ds_read_b64 {vr(XR+6*mir,2)}, v20 offset:{mir*8192}")
        a(f"ds_read_b64 {vr(XR+6*mir+2,2)}, v21 offset:{mir*8192}")
        a(f"ds_read_u16 v{XR+6*mir+4}, v22 offset:{mir*8192}")
    TF = 128
    tf = lambda tl, ks: TF + (tl * 16 + ks) * 4
    for ks in range(16):
        for tl in range(2):
            base = (8 if tl == 0 else 16) + (ks & 3)
            a(f"ds_read_b128 {vr(tf(tl,ks),4)}, v{base} offset:{(ks>>2)*256}")
    XU = 48
    a("s_waitcnt lgkmcnt(15)")
    for mir in range(2):
        b, x = XU + mir * 8, XR + 6 * mir
        a(f"""
        v_lshlrev_b32 v{b}, 16, v{x}
        v_and_b32 v{b+1}, s{sHI}, v{x}
        v_lshlrev_b32 v{b+2}, 16, v{x+1}
        v_and_b32 v{b+3}, s{sHI}, v{x+1}
        v_lshlrev_b32 v{b+4}, 16, v{x+4}
        v_and_b32 v{b+5}, s{sHI}, v{x+3}
        v_lshlrev_b32 v{b+6}, 16, v{x+3}
        v_and_b32 v{b+7}, s{sHI}, v{x+2}
        """)
    a(f"""
    v_lshlrev_b32 v{CF0}, 16, v{CF0}
    v_lshlrev_b32 v{CF1}, 16, v{CF1}
    s_lshl_b32 s{T0}, s{sA}, 1
    s_add_u32 s{T0}, s{T0}, s{sP}
    s_lshl_b32 s{T0}, s{T0}, 18
    s_lshl_b32 s{T1}, s{sE}, 1
    s_add_u32 s{T1}, s{T1}, s{sB}
    s_lshl_b32 s{T2}, s{T1}, 14
    s_add_u32 s{T0}, s{T0}, s{T2}
    v_add_u32 v8, s{T0}, v{vL16}
    v_lshlrev_b32 v9, 1, v{vJ2}
    s_lshl_b32 s{T0}, s{sP}, 10
    v_add_u32 v9, s{T0}, v9
    v_mov_b32 v32, 0xbf803f80
    v_mov_b32 v33, 0xbf803f80
    v_mov_b32 v34, 0xbf803f80
    v_mov_b32 v35, 0xbf803f80
    s_lshl_b32 s{T0}, s{sPT}, 16
    s_lshl_b32 s{T2}, s{sA}, 14
    s_add_u32 s{T0}, s{T0}, s{T2}
    s_lshl_b32 s{T2}, s{T1}, 10
    s_add_u32 s{T0}, s{T0}, s{T2}
    v_add_u32 v10, s{T0}, v{vL16}
    s_lshl_b32 s{T0}, s{sPT}, 13
    s_lshl_b32 s{T2}, s{sA}, 11
    s_add_u32 s{T0}, s{T0}, s{T2}
    s_lshl_b32 s{T1}, s{T1}, 7
    s_add_u32 s{T0}, s{T0}, s{T1}
    v_lshrrev_b32 v11, 1, v{vG}
    v_and_b32 v12, 1, v{vG}
    v_lshlrev_b32 v11, 12, v11
    v_lshl_add_u32 v11, v12, 2, v11
    v_lshl_add_u32 v11, v{vI}, 3, v11
    v_add_u32 v11, s{T0}, v11
    s_lshl_b32 s{T0}, s{sW}, 10
    s_add_u32 s{T0}, s{T0}, {L_BX}
    v_add_u32 v12, s{T0}, v{vL16}
    s_xor_b32 s{T0}, s{T0}, 0x800
    v_add_u32 v13, s{T0}, v{vL16}
    s_cmp_eq_u32 s{sP}, 0
    s_cselect_b32 s{sC}, 1.0, -1.0
    s_cmp_eq_u32 s{sA}, 0
    s_cselect_b32 s{sD}, 1.0, -1.0
    s_mov_b32 s{sG}, 0x8000
    s_waitcnt lgkmcnt(0)
    """)
    sig(a, F_TC, vF, vONE)
    a(f"v_xor_b32 v16, 8, v{vFw}")
    a.stamp()
    poll(a, "L_p1", vC1p, 4, "0xf", 16, F_GO1, vF, vONE)
    if cfg["pb"]:
        sig(a, F_PAUSE, vF, vONE)
    a.stamp()
    ZF, Z5 = 64, 20
    for ks in range(16):
        so = "0" if ks < 4 else f"s{sK4 - 1 + ks//4}"
        a.vmem(f"Z{ks}", f"buffer_load_dwordx4 {vr(ZF+4*ks,4)}, v8, {R(R_ZA)}, {so} offen offset:{(ks%4)*1024} sc1")
    a.vmem("Z5", f"buffer_load_dwordx4 {vr(Z5,4)}, v9, {R(R_Z5)}, 0 offen sc1")
    BA0, BA1, BAX = 36, 40, 44
    for ks in range(16):
        a.vwait(f"Z{ks}")
        c0 = "0" if ks == 0 else None
        mfma(a, vr(BA1, 4), vr(ZF + 4 * ks, 4), vr(tf(1, ks), 4), c0)
        mfma(a, vr(BA0, 4), vr(ZF + 4 * ks, 4), vr(tf(0, ks), 4), c0)
        mfma(a, vr(BAX, 4), vr(ZF + 4 * ks, 4), "v[32:35]", c0)
    if not cfg["pb"]:
        sig(a, F_PAUSE, vF, vONE)
    waitf(a, "L_wtc", F_TC, vF, 4, 256)
    a(f"ds_write_b128 v12, {vr(BA1,4)}")
    a("s_waitcnt lgkmcnt(0)")
    sig(a, F_X, vFw, vONE)
    a.vwait("Z5")
    EX0, EX1, OT, Y = 64, 68, 72, 76
    for r in range(4):
        a(f"v_mul_f32 v{EX0+r}, v{CF0}, v{Z5+r}")
        a(f"v_mul_f32 v{EX1+r}, v{CF1}, v{Z5+r}")
    a(f"""
    v_cmp_eq_u32 vcc, 0, v{vT}
    """)
    waitf(a, "L_wx", F_X, 16, 4, 64)
    a(f"""
    ds_read_b128 {vr(OT,4)}, v13
    s_waitcnt lgkmcnt(0)
    """)
    a.stamp()
    for r in range(4):
        a(f"v_sub_f32 v{Y+r}, v{BA0+r}, v{OT+r}")
        a(f"v_add_f32 v{Y+4+r}, v{BA0+r}, v{OT+r}")
    for r in range(4):
        a(f"v_mul_f32 v{Y+r}, s{sD}, v{Y+r}")
        a(f"v_cndmask_b32 v{Y+8+r}, v{Y+4+r}, v{BAX+r}, vcc")
    for r in range(4):
        a(f"v_cndmask_b32 v{Y+12+r}, v{Y+r}, v{BAX+r}, vcc")
    for r in range(4):
        a(f"v_fmac_f32 v{Y+r}, s{sC}, v{EX0+r}")
        a(f"v_add_f32 v{Y+4+r}, v{Y+4+r}, v{EX0+r}")
        a(f"v_add_f32 v{Y+8+r}, v{Y+8+r}, v{EX1+r}")
        a(f"v_fmac_f32 v{Y+12+r}, s{sC}, v{EX1+r}")
    a(f"v_cndmask_b32 v{Y}, v{Y}, 0, s[{sM}:{sM+1}]")
    a(f"v_cndmask_b32 v{Y+8}, v{Y+8}, 0, s[{sM}:{sM+1}]")
    for r in range(0, 16, 2):
        a(f"v_pk_add_f32 {vr(Y+r,2)}, {vr(Y+r,2)}, {vr(XU+r,2)}")
    HP, S = 92, 100
    for r in range(8):
        a(f"v_cvt_pk_bf16_f32 v{HP+r}, v{Y+2*r}, v{Y+2*r+1}")
    for r in range(4):
        a(f"v_mov_b32 v{S+r}, 0")
    a.vmem("SH", f"buffer_store_dwordx4 {vr(HP,4)}, v10, {R(R_H)}, 0 offen sc1")
    a.vmem("SH", f"buffer_store_dwordx4 {vr(HP+4,4)}, v10, {R(R_H)}, s{sG} offen sc1")
    for mir in range(2):
        for d in range(4):
            a(f"v_dot2c_f32_bf16 v{S+2*mir}, s{sONES}, v{HP+4*mir+d}")
            a(f"v_dot2c_f32_bf16 v{S+2*mir+1}, v{HP+4*mir+d}, v{HP+4*mir+d}")
    a.nop(3)
    treduce4(a, S, S + 1, S + 2, S + 3)
    a.vmem("SH", f"buffer_store_dword v{S}, v11, {R(R_ST)}, 0 offen sc1")
    a.stamp()
    a(f"""
    s_and_b32 s{sA}, s{sC16}, 1
    v_add_u32 v24, {8*7168}, v{vL16}
    s_lshl_b32 s{T0}, s{sRB}, 17
    s_lshl_b32 s{T1}, s{sW}, 15
    s_add_u32 s{T0}, s{T0}, s{T1}
    v_add_u32 v10, s{T0}, v{vL16}
    v_add_u32 v11, 0x4000, v10
    s_lshl_b32 s{T0}, s{sRB}, 14
    s_lshl_b32 s{T1}, s{sW}, 12
    s_add_u32 s{T0}, s{T0}, s{T1}
    v_lshl_add_u32 v12, v{vI}, 3, s{T0}
    v_lshl_add_u32 v12, v{vG}, 9, v12
    v_lshlrev_b32 v13, 4, v{vG}
    v_add_u32 v13, {L_CS}, v13
    """)
    a.vwait_all()
    a.stamp()
    arrive(a, "L_ar2", vC2, 4, "1", F_AR2, vF, vONE)
    a.stamp()
    waitf(a, "L_ww1", F_W1, vF, 4, 256)
    a.stamp()
    poll(a, "L_p2", vC2, 4, "1", 16, F_GO2, vF, vONE)
    if cfg["pc"]:
        sig(a, F_PAUSE, vF, vONE)
    a.stamp()
    AC1, AC2, WF, HF = 36, 68, 92, 124
    cacc = lambda u, mt: (AC1 + (u * 2 + mt) * 4) if u < 4 else (AC2 + ((u - 4) * 2 + mt) * 4)
    wf = lambda b, u: WF + (b * 4 + (u % 4)) * 4
    hf = lambda mt, ks: HF + (ks * 2 + mt) * 4
    STT = AC2
    MEAN, RSTD = 16, 20

    def wread(ks, u):
        a(f"ds_read_b128 {vr(wf(ks&1,u),4)}, v{vL16 if ks < 8 else 24} offset:{(ks%8)*7168+u*1024}")

    def hload(ks, mts=(0, 1)):
        if mts[0] == 0:
            a(f"s_add_u32 s{sCUR}, s{sRC}, {ks}\ns_and_b32 s{sCUR}, s{sCUR}, 15\ns_lshl_b32 s{sCUR}, s{sCUR}, 10")
        for mt in mts:
            a.vmem(f"H{ks}", f"buffer_load_dwordx4 {vr(hf(mt,ks),4)}, v{10+mt}, {R(R_H)}, s{sCUR} offen sc1")

    HD = cfg["hdepth"]
    for ks in range(HD):
        hload(ks)
    for u in range(4):
        wread(0, u)
    a(f"""
    s_lshl_b32 s{T0}, s{sRB}, 3
    s_lshl_b32 s{T1}, s{sW}, 1
    s_add_u32 s{T0}, s{T0}, s{T1}
    s_mul_i32 s{T0}, s{T0}, 57344
    s_mul_i32 s{T1}, s{sC16}, 7
    s_add_u32 s{T2}, s{T1}, s{sA}
    s_lshl_b32 s{T2}, s{T2}, 9
    s_add_u32 s{T2}, s{T2}, s{T0}
    v_add_u32 v8, s{T2}, v{vL16}
    s_cmp_eq_u32 s{sA}, 0
    s_cselect_b32 s{T2}, 6, 0
    s_add_u32 s{T1}, s{T1}, s{T2}
    s_lshr_b32 s{T2}, s{T1}, 1
    s_lshl_b32 s{T2}, s{T2}, 10
    s_and_b32 s{T1}, s{T1}, 1
    s_lshl_b32 s{T1}, s{T1}, 3
    s_add_u32 s{T2}, s{T2}, s{T1}
    s_add_u32 s{T2}, s{T2}, s{T0}
    v_add_u32 v9, s{T2}, v{vL16}
    s_mov_b32 s{sG}, 57344
    s_mul_i32 s{sF}, s{sW}, {DSTR}
    v_add_u32 v{vC2}, {16*256}, v{vC2}
    """)

    def cpass(us, first):
        n = len(us)
        for ks in range(16):
            nxt = ks + 1
            if first:
                a.vwait(f"H{ks}")
                if cfg.get("fine") and ks in (0, 8):
                    a.stamp()
            for i, u in enumerate(us):
                if nxt < 16:
                    wread(nxt, u)
                    a(f"s_waitcnt lgkmcnt({n})")
                else:
                    a(f"s_waitcnt lgkmcnt({n-1-i})")
                for mt in range(2):
                    mfma(a, vr(cacc(u, mt), 4), vr(wf(ks & 1, u), 4), vr(hf(mt, ks), 4), "0" if ks == 0 else None)
                if first and i in (0, 2) and ks + HD < 16:
                    hload(ks + HD, (0,) if i == 0 else (1,))
                if first and i == 3 and ks + HD == 16:
                    for mt in range(2):
                        for pp in range(4):
                            a.vmem("ST", f"buffer_load_dwordx2 {vr(STT+mt*8+pp*2,2)}, v12, {R(R_ST)}, 0 offen offset:{mt*2048+pp*128} sc1")
            if not first and ks == cfg["ar3a"]:
                a.vwait("S1a")
                arrive(a, "L_ar3", vC2, 4, "1", F_AR3, vF, vONE)
                a(f"v_add_u32 v{vC2}, {16*256}, v{vC2}")

    def cepi(groups, tmp, outs, tag):
        tiles = [u for g in groups for u in g[1]]
        for i, u in enumerate(tiles):
            for v in range(4):
                a(f"ds_read_b128 {vr(tmp+(i*4+v)*4,4)}, v13 offset:{v*448+u*64}")
        return tiles

    cpass((0, 1, 2, 3), True)
    if not cfg["pc"]:
        sig(a, F_PAUSE, vF, vONE)
    a.vwait("ST")
    for mt in range(2):
        b = STT + mt * 8
        a(f"""
        v_pk_add_f32 {vr(b,2)}, {vr(b,2)}, {vr(b+2,2)}
        v_pk_add_f32 {vr(b+4,2)}, {vr(b+4,2)}, {vr(b+6,2)}
        v_pk_add_f32 {vr(b,2)}, {vr(b,2)}, {vr(b+4,2)}
        """)
    for i in range(2):
        for v in range(4):
            a(f"ds_read_b128 {vr(WF+(i*4+v)*4,4)}, v13 offset:{v*448+i*64}")
    allreduce_g(a, [STT, STT + 1, STT + 8, STT + 9], [STT + 2, STT + 3, STT + 10, STT + 11])
    for mt in range(2):
        b = STT + mt * 8
        a(f"""
        v_mul_f32 v{MEAN+2*mt}, 0xbb000000, v{b}
        v_mul_f32 v{b+1}, 0x3b000000, v{b+1}
        v_fma_f32 v{b+1}, -v{MEAN+2*mt}, v{MEAN+2*mt}, v{b+1}
        v_max_f32 v{b+1}, 0, v{b+1}
        v_add_f32 v{b+1}, 0x3727c5ac, v{b+1}
        v_rsq_f32 v{RSTD+2*mt}, v{b+1}
        v_mov_b32 v{MEAN+2*mt+1}, v{MEAN+2*mt}
        """)
    a(f"v_mov_b32 v{RSTD+1}, v{RSTD}")
    a(f"v_mov_b32 v{RSTD+3}, v{RSTD+2}")
    a.stamp()

    def csum_reduce(t):
        for r in (0, 2):
            a(f"v_pk_add_f32 {vr(t+r,2)}, {vr(t+r,2)}, {vr(t+4+r,2)}")
            a(f"v_pk_add_f32 {vr(t+8+r,2)}, {vr(t+8+r,2)}, {vr(t+12+r,2)}")
            a(f"v_pk_add_f32 {vr(t+r,2)}, {vr(t+r,2)}, {vr(t+8+r,2)}")

    def finish(v, us, cs, outs, tag):
        for mt in range(2):
            o = outs[mt]
            for n, u in enumerate(us):
                d, c = cacc(u, mt), cs[n]
                a(f"v_pk_fma_f32 {vr(d,2)}, {vr(MEAN+2*mt,2)}, {vr(c,2)}, {vr(d,2)}")
                a(f"v_pk_fma_f32 {vr(d+2,2)}, {vr(MEAN+2*mt,2)}, {vr(c+2,2)}, {vr(d+2,2)}")
                a(f"v_pk_mul_f32 {vr(d,2)}, {vr(d,2)}, {vr(RSTD+2*mt,2)}")
                a(f"v_pk_mul_f32 {vr(d+2,2)}, {vr(d+2,2)}, {vr(RSTD+2*mt,2)}")
                a(f"v_cvt_pk_bf16_f32 v{o+2*n}, v{d}, v{d+1}")
                a(f"v_cvt_pk_bf16_f32 v{o+2*n+1}, v{d+2}, v{d+3}")
                a(f"v_pk_max_i16 v{o+2*n}, v{o+2*n}, 0")
                a(f"v_pk_max_i16 v{o+2*n+1}, v{o+2*n+1}, 0")
            so = "0" if mt == 0 else f"s{sG}"
            if v < 3:
                a.vmem(tag, f"buffer_store_dwordx4 {vr(o,4)}, v8, {R(R_H1)}, {so} offen offset:{v*1024} sc1")
            else:
                a.vmem(tag, f"buffer_store_dwordx2 {vr(o,2)}, v9, {R(R_H1)}, {so} offen sc1")

    a("s_waitcnt lgkmcnt(0)")
    csum_reduce(WF)
    csum_reduce(WF + 16)
    a(f"v_mov_b32 v{AC2}, v{WF}\nv_mov_b32 v{AC2+1}, v{WF+1}\nv_mov_b32 v{AC2+2}, v{WF+2}\nv_mov_b32 v{AC2+3}, v{WF+3}")
    a(f"v_mov_b32 v{AC2+4}, v{WF+16}\nv_mov_b32 v{AC2+5}, v{WF+17}\nv_mov_b32 v{AC2+6}, v{WF+18}\nv_mov_b32 v{AC2+7}, v{WF+19}")
    for i in range(2):
        for v in range(4):
            a(f"ds_read_b128 {vr(WF+(i*4+v)*4,4)}, v13 offset:{v*448+(2+i)*64}")
    finish(0, (0, 1), (AC2, AC2 + 4), (AC2 + 8, AC2 + 12), "S1a")
    a("s_waitcnt lgkmcnt(0)")
    csum_reduce(WF)
    csum_reduce(WF + 16)
    finish(1, (2, 3), (WF, WF + 16), (AC1, AC1 + 4), "S1a")
    a.stamp()
    for u in (4, 5, 6):
        wread(0, u)
    cpass((4, 5, 6), False)
    sig(a, F_PAUSE, vF, vONE)
    for i in range(3):
        for v in range(4):
            a(f"ds_read_b128 {vr(HF+(i*4+v)*4,4)}, v13 offset:{v*448+(4+i)*64}")
    a("s_waitcnt lgkmcnt(0)")
    sig(a, F_CD, vF, vONE)
    a.stamp()
    for i in range(3):
        csum_reduce(HF + 16 * i)
    finish(2, (4, 5), (HF, HF + 16), (HF + 48, HF + 52), "S1b")
    finish(3, (6,), (HF + 32,), (HF + 56, HF + 60), "S1b")
    a.stamp()
    for lm in range(4):
        a(f"""
        s_xor_b32 s{T0}, s{sW}, {lm}
        s_lshl_b32 s{T1}, s{sPT}, 2
        s_add_u32 s{T0}, s{T0}, s{T1}
        s_mul_i32 s{T0}, s{T0}, 57344
        s_mul_i32 s{T1}, s{sW}, {14*1024}
        s_add_u32 s{T0}, s{T0}, s{T1}
        v_add_u32 v{8+lm}, s{T0}, v{vL16}
        """)
    a(f"""
    v_lshrrev_b32 v4, 2, v{vL}
    v_bfe_u32 v5, v{vL}, 3, 2
    v_and_b32 v6, 3, v{vL}
    v_lshl_add_u32 v4, v4, 7, s{sF}
    v_lshl_add_u32 v4, v6, 3, v4
    """)
    for u in range(4):
        a(f"v_xor_b32 v6, {u}, v5")
        a(f"v_lshl_add_u32 v{32+u}, v6, 5, v4")
    a(f"""
    s_lshl_b32 s{T0}, s{sPT}, 2
    s_add_u32 s{T0}, s{T0}, s{sW}
    s_lshl_b32 s{T0}, s{T0}, 14
    v_lshl_add_u32 v16, v{vI}, 4, s{T0}
    s_cmp_ge_u32 s{sE}, 4
    s_cbranch_scc1 L_res_mirror
    s_lshl_b32 s{T0}, s{sE}, 12
    v_lshl_add_u32 v17, v{vG}, 8, v16
    v_add_u32 v17, s{T0}, v17
    v_mov_b32 v18, {OOB}
    v_mov_b32 v19, {OOB}
    s_branch L_res_done
    """)
    a.label("L_res_mirror")
    a(f"""
    s_lshl_b32 s{T0}, s{sE}, 2
    s_sub_u32 s{T0}, 28, s{T0}
    s_lshl_b32 s{T0}, s{T0}, 10
    s_add_u32 s{T0}, s{T0}, 8
    v_sub_u32 v18, 3, v{vG}
    v_lshl_add_u32 v17, v18, 8, v16
    v_add_u32 v17, s{T0}, v17
    v_add_u32 v18, 256, v17
    v_add_u32 v19, {256+3072}, v17
    v_add_u32 v22, 8, v16
    v_or_b32 v23, s{sE}, v{vL16}
    v_and_b32 v23, 0x307, v23
    v_cmp_eq_u32 vcc, 4, v23
    s_nop 1
    v_cndmask_b32 v19, v19, v22, vcc
    """)
    a.label("L_res_done")
    RES, RE1 = 36, 44
    for up in range(4):
        a.vmem("RES", f"buffer_load_dwordx2 {vr(RES+2*up,2)}, v17, {R(R_H)}, 0 offen offset:{up*1024} sc1")
    for up in range(3):
        a.vmem("RES", f"buffer_load_ushort v{RE1+up}, v18, {R(R_H)}, 0 offen offset:{up*1024} sc1")
    a.vmem("RES", f"buffer_load_ushort v{RE1+3}, v19, {R(R_H)}, 0 offen sc1")
    a(f"""
    s_lshl_b32 s{T0}, s{sT}, 6
    s_add_u32 s{T0}, s{T0}, s{sP}
    s_and_b32 s{T1}, s{sW}, 1
    s_lshl_b32 s{T1}, s{T1}, 5
    s_add_u32 s{T0}, s{T0}, s{T1}
    v_lshl_add_u32 v20, v{vI}, 1, s{T0}
    v_cmp_eq_u32 vcc, 0, v20
    v_sub_u32 v21, 0x800, v20
    v_mov_b32 v22, 0x400
    s_cmp_ge_u32 s{sW}, 2
    s_cselect_b64 s[{sM}:{sM+1}], -1, 0
    v_cndmask_b32 v21, v21, v22, vcc
    v_cndmask_b32 v20, v20, v21, s[{sM}:{sM+1}]
    s_lshl_b32 s{T0}, s{sE}, 7
    v_lshl_add_u32 v21, v{vG}, 5, s{T0}
    v_lshl_add_u32 v20, v20, 10, v21
    """)
    a.vwait("RES")
    DACC, DWF, H1F = 48, 112, 144
    NR = cfg["h1ring"]
    dacc = lambda u, lm: DACC + (u * 4 + lm) * 4
    dwf = lambda b, u: DWF + (b * 4 + u) * 4
    h1f = lambda lm, ks: H1F + ((ks % NR) * 4 + lm) * 4
    a(f"""
    s_cmp_ge_u32 s{sE}, 4
    s_cbranch_scc1 L_unp_mirror
    """)
    for u in range(4):
        s, d = RES + 2 * u, dacc(u, 0)
        a(f"""
        v_lshlrev_b32 v{d}, 16, v{s}
        v_and_b32 v{d+1}, s{sHI}, v{s}
        v_lshlrev_b32 v{d+2}, 16, v{s+1}
        v_and_b32 v{d+3}, s{sHI}, v{s+1}
        """)
    a("s_branch L_unp_done")
    a.label("L_unp_mirror")
    for u in range(4):
        s, d = RES + 2 * (3 - u), dacc(u, 0)
        a(f"""
        v_lshlrev_b32 v{d}, 16, v{RE1+3-u}
        v_and_b32 v{d+1}, s{sHI}, v{s+1}
        v_lshlrev_b32 v{d+2}, 16, v{s+1}
        v_and_b32 v{d+3}, s{sHI}, v{s}
        """)
    a.label("L_unp_done")
    a.stamp()
    arrive(a, "L_ar4", vC2, 4, "1", F_AR4, vF, vONE)
    a.stamp()
    waitf(a, "L_wd1", F_D1, vFw, 4, 64)
    a.stamp()
    waitf(a, "L_wg3", F_GO3, vF, 4, 64)
    a.stamp()

    def h1load(ks, lms=(0, 1, 2, 3)):
        if lms[0] == 0:
            if ks == 8 - cfg["probe"]:
                a.vmem("P4", f"buffer_load_dword v25, v{vC2}, {R(R_CNT)}, 0 offen sc1")
            if ks == 8:
                a.vwait("P4")
                a(f"""
                v_cmp_gt_u32 vcc, 16, v25
                s_mov_b32 s{T0}, 0
                s_cbranch_vccz L_p4_ok
                """)
                a.label("L_p4_loop")
                a(f"""
                buffer_load_dword v25, v{vC2}, {R(R_CNT)}, 0 offen sc1
                s_add_u32 s{T0}, s{T0}, 1
                s_cmp_ge_u32 s{T0}, 0x40000
                s_cbranch_scc1 L_p4_ok
                s_waitcnt vmcnt(0)
                v_cmp_gt_u32 vcc, 16, v25
                s_cbranch_vccnz L_p4_loop
                """)
                a.label("L_p4_ok")
            pk = DPERM[ks]
            a(f"s_{'add' if pk < 7 else 'sub'}_u32 s{sCUR}, {pk}, s{sRD}\ns_lshl_b32 s{sCUR}, s{sCUR}, 10")
        for lm in lms:
            a.vmem(f"G{ks}", f"buffer_load_dwordx4 {vr(h1f(lm,ks),4)}, v{8+lm}, {R(R_H1)}, s{sCUR} offen sc1")

    def dtr(ks, u):
        off = (ks % DSL) * 4096
        a(f"ds_read_b64_tr_b16 {vr(dwf(ks&1,u),2)}, v{32+u} offset:{off}")
        a(f"ds_read_b64_tr_b16 {vr(dwf(ks&1,u)+2,2)}, v{32+u} offset:{off+2048}")

    DD = cfg["ddepth"]
    assert DD < NR
    for ks in range(DD):
        h1load(ks)
    for u in range(4):
        dtr(0, u)
    lag = [0]
    for ks in range(14):
        nxt = ks + 1
        if ks != 14 - DSL:
            lag[0] = 0
        if ks == DSL - 1:
            waitf(a, "L_wd2", F_D2, vFw, 4, 64)
        a.vwait(f"G{ks}")
        if cfg.get("fine") and ks in (0, 1, 3, 4, 6, 9, 12):
            a.stamp()
        for u in range(4):
            if nxt < 14:
                dtr(nxt, u)
                a(f"s_waitcnt lgkmcnt({8 + lag[0]})")
            else:
                a(f"s_waitcnt lgkmcnt({6-2*u})")
            for lm in (1, 2, 3, 0):
                mfma(a, vr(dacc(u, lm), 4), vr(dwf(ks & 1, u), 4), vr(h1f(lm, ks), 4), "0" if (ks == 0 and lm) else None)
            if ks + DD < 14:
                h1load(ks + DD, (u,))
        if ks == 13 - DSL:
            sig(a, F_S, vFw, vONE)
            lag[0] = 1
    a.stamp()
    a(f"v_add_u32 v16, s{sF}, v{vL16}")
    for lm in range(1, 4):
        a(f"""
        s_xor_b32 s{T0}, s{sW}, {lm}
        s_mul_i32 s{T0}, s{T0}, {DSTR}
        s_add_u32 s{T0}, s{T0}, {(lm-1)*4096}
        v_add_u32 v{16+lm}, s{T0}, v{vL16}
        """)
    for lm in range(1, 4):
        for u in range(4):
            a(f"ds_write_b128 v16, {vr(dacc(u,lm),4)} offset:{(lm-1)*4096+u*1024}")
    a("""
    s_waitcnt lgkmcnt(0)
    s_barrier
    """)
    RD = 144
    for lm in range(1, 4):
        for u in range(4):
            a(f"ds_read_b128 {vr(RD+((lm-1)*4+u)*4,4)}, v{16+lm} offset:{u*1024}")
    for lm in range(1, 4):
        a(f"s_waitcnt lgkmcnt({8-4*(lm-1)})")
        for u in range(4):
            for r in (0, 2):
                a(f"v_pk_add_f32 {vr(dacc(u,0)+r,2)}, {vr(dacc(u,0)+r,2)}, {vr(RD+((lm-1)*4+u)*4+r,2)}")
    O = 112
    for u in range(4):
        a(f"v_cvt_pk_bf16_f32 v{O+2*u}, v{dacc(u,0)}, v{dacc(u,0)+1}")
        a(f"v_cvt_pk_bf16_f32 v{O+2*u+1}, v{dacc(u,0)+2}, v{dacc(u,0)+3}")
    a.nop(2)
    for d in range(2):
        a(f"v_permlane32_swap_b32 v{O+d}, v{O+4+d}")
        a(f"v_permlane32_swap_b32 v{O+2+d}, v{O+6+d}")
    a.nop(2)
    for d in range(2):
        a(f"v_permlane16_swap_b32 v{O+d}, v{O+2+d}")
        a(f"v_permlane16_swap_b32 v{O+4+d}, v{O+6+d}")
    a.nop(2)
    a(f"buffer_store_dwordx4 {vr(O,4)}, v20, {R(R_OUT)}, 0 offen nt")
    a(f"buffer_store_dwordx4 {vr(O+4,4)}, v20, {R(R_OUT)}, 0 offen offset:16 nt")
    stamp_out(a, 0)
    a("s_branch L_end")


def helper(a, cfg):
    a.label("L_helper")
    a.vm = []
    a.nstamp = 1
    a.sstamp = R_H1
    a(f"""
    s_lshl_b32 s{T0}, s{sE4}, 6
    s_lshl_b32 s{T1}, s{sW}, 4
    s_add_u32 s{T0}, s{T0}, s{T1}
    """)
    for n in range(4):
        a(f"""
        v_add_u32 v4, {4*n}, v{vG}
        v_xor_b32 v5, v4, v{vI}
        v_add_u32 v4, s{T0}, v4
        v_lshlrev_b32 v5, 4, v5
        v_lshl_add_u32 v{8+n}, v4, 10, v5
        """)
        if n == 0:
            a(f"""
            v_cmp_eq_u32 vcc, 0, v4
            v_add_u32 v12, 0x40000, v8
            s_nop 0
            v_cndmask_b32 v12, v8, v12, vcc
            """)
    a("s_waitcnt lgkmcnt(0)")
    a.stamp()
    srd(a, R_DI, P_DI, P_DI + 1, 512 * 1024)
    srd(a, R_DR, P_DR, P_DR + 1, 512 * 1024)
    for typ in range(2):
        for n in range(4):
            a(f"s_add_u32 m0, s{sC}, {L_GA + typ*4096 + n*1024}")
            a("s_nop 0")
            v = 12 if (typ == 0 and n == 0) else 8 + n
            a.vmem("A", f"buffer_load_dwordx4 v{v}, {R(R_DI if typ else R_DR)}, 0 offen lds")
    late_setup(a, cfg["rot"])
    a(f"""
    s_lshl_b32 s{T3}, s2, 2
    s_add_u32 s{T3}, s{T3}, s{sW}
    s_cmp_lg_u32 s{T3}, 3
    s_cbranch_scc1 L_noleader2
    v_lshlrev_b32 v4, 8, v{vL}
    v_mov_b32 v5, 0
    s_mov_b32 s{T0}, 16384
    buffer_store_dword v5, v4, {R(R_CNT)}, 0 offen sc1
    buffer_store_dword v5, v4, {R(R_CNT)}, s{T0} offen sc1
    s_waitcnt vmcnt(0)
    v_mov_b32 v4, 1
    s_mov_b64 exec, 1
    buffer_store_dword v4, v5, {R(R_DBG)}, 0 offen sc1
    s_mov_b64 exec, -1
    """)
    a.label("L_noleader2")
    a(f"""
    s_lshl_b32 s{T0}, s{sT}, 6
    s_add_u32 s{T0}, s{T0}, s{sP}
    s_and_b32 s{T1}, s{sW}, 1
    s_lshl_b32 s{T1}, s{T1}, 5
    s_add_u32 s{sA}, s{T0}, s{T1}
    s_lshl_b32 s{sD}, s{sA}, 12
    s_lshl_b32 s{sF}, s{sW}, 14
    s_cmp_ge_u32 s{sW}, 2
    s_cselect_b32 s{R_DR}, s{R_CI}, s{R_CR}
    s_cselect_b32 s{R_DR+1}, s{R_CI+1}, s{R_CR+1}
    s_mov_b32 s{R_DR+2}, {2048*4096}
    """)

    def trig_dma(q):
        a(f"""
        s_add_u32 s{T0}, s{sD}, {q*8192}
        s_add_u32 m0, s{sF}, {L_TR + q*1024}
        v_xor_b32 v4, {q*16}, v{vL16}
        """)
        a.vmem("T", f"buffer_load_dwordx4 v4, {R(R_DR)}, s{T0} offen lds")

    a(f"""
    s_lshl_b32 s{T0}, s{sE}, 6
    s_sub_u32 s{T1}, {960-64}, s{T0}
    s_cmp_ge_u32 s{sW}, 2
    s_cselect_b64 s[{sM}:{sM+1}], -1, 0
    """)
    for n in range(4):
        a(f"""
        v_add_u32 v4, {4*n}, v{vG}
        v_xor_b32 v5, v4, v{vI}
        v_lshl_add_u32 v4, v4, 1, s{sA}
        v_sub_u32 v6, 0x800, v4
        v_cmp_eq_u32 vcc, 0, v4
        v_mov_b32 v7, 0x400
        v_lshlrev_b32 v13, 4, v5
        v_cndmask_b32 v6, v6, v7, vcc
        v_cndmask_b32 v4, v4, v6, s[{sM}:{sM+1}]
        v_add_u32 v6, s{T0}, v13
        v_add_u32 v7, s{T1}, v13
        v_cmp_lt_u32 vcc, 3, v5
        v_mov_b32 v13, 512
        s_nop 0
        v_cndmask_b32 v6, v6, v7, vcc
        v_cmp_lt_u32 vcc, 8, v5
        s_nop 1
        v_cndmask_b32 v6, v6, v13, vcc
        v_lshl_add_u32 v{8+n}, v4, 10, v6
        """)
    a(f"s_lshl_b32 s{sB}, s{sW}, 12")

    def xt_dma(n):
        a(f"s_add_u32 m0, s{sB}, {L_XT + n*1024}")
        a("s_nop 0")
        a.vmem("T", f"buffer_load_dwordx4 v{8+n}, {R(R_X)}, 0 offen lds")

    a(f"""
    v_mul_u32_u24 v4, 0x4925, v{vL}
    v_lshrrev_b32 v4, 18, v4
    v_mul_u32_u24 v5, 14, v4
    v_sub_u32 v5, v{vL}, v5
    s_mul_i32 s{T0}, s{sC16}, 224
    v_lshl_add_u32 v5, v5, 4, s{T0}
    v_mul_u32_u24 v6, 3584, v4
    v_add_u32 v14, v5, v6
    v_sub_u32 v15, {3*3584}, v6
    v_add_u32 v15, v5, v15
    v_sub_u32 v16, {256*3584}, v6
    v_cmp_eq_u32 vcc, 0, v4
    v_add_u32 v16, v5, v16
    s_mul_i32 s{sH}, s{sW}, 7168
    s_add_u32 s{sG}, s{sRC}, s{sW}
    v_cndmask_b32 v16, v16, v5, vcc
    s_and_b32 s{T2}, s{sC16}, 1
    s_lshl_b32 s{T0}, s{T2}, 5
    s_cmp_eq_u32 s{T2}, 0
    s_cselect_b32 s{T1}, 192, 0
    s_add_u32 s{T0}, s{T0}, s{sH}
    s_add_u32 s{T1}, s{T1}, s{sH}
    v_lshrrev_b32 v4, 2, v{vL}
    v_mul_u32_u24 v4, 224, v4
    v_and_b32 v5, 3, v{vL}
    v_lshl_add_u32 v4, v5, 3, v4
    v_add_u32 v19, s{T0}, v4
    v_add_u32 v20, s{T1}, v4
    v_add_u32 v21, s{sH}, v{vL16}
    v_add_u32 v22, {8*7168}, v19
    v_add_u32 v23, {8*7168}, v20
    v_add_u32 v24, {8*7168}, v21
    s_mul_i32 s{T0}, s{sW}, 448
    s_add_u32 s{T0}, s{T0}, {L_CS}
    v_lshl_add_u32 v25, v{vG}, 4, s{T0}
    """)
    RLF, CSV, ONE = 196, 224, 252
    for r in range(4):
        a(f"v_mov_b32 v{ONE+r}, s{sONES}")

    W1S = 132

    def w1_dma(n, q):
        toreg = n >= 2
        dst = (vr(W1S + ((n - 2) * 8 + q) * 4, 4) + ", ") if toreg else ""
        sfx = "" if toreg else " lds"
        if q == 0:
            a(f"""
            s_add_u32 s{T2}, s{sG}, {4*n}
            s_and_b32 s{T2}, s{T2}, 15
            s_mul_i32 s{sCUR}, s{T2}, {16*3584}
            """)
        a(f"s_mov_b64 exec, s[{sEX}:{sEX+1}]")
        if not toreg:
            a(f"s_add_u32 m0, s{sH}, {n*4*7168 + q*896}")
        if q < 4:
            a(f"s_add_u32 s{T0}, s{sCUR}, {4*q*3584}")
            a.vmem(f"W1_{n}", f"buffer_load_dwordx4 {dst}v14, {R(R_W1)}, s{T0} offen{sfx}")
        elif q == 4:
            a(f"""
            s_sub_u32 s{T0}, {509*3584}, s{sCUR}
            s_cmp_eq_u32 s{sCUR}, 0
            s_cselect_b32 s{T0}, {256*3584}, s{T0}
            s_cselect_b64 s[{sM}:{sM+1}], -1, 0
            v_cndmask_b32 v4, v15, v16, s[{sM}:{sM+1}]
            """)
            a.vmem(f"W1_{n}", f"buffer_load_dwordx4 {dst}v4, {R(R_W1)}, s{T0} offen{sfx}")
        else:
            a(f"s_sub_u32 s{T0}, {(509-4*(q-4))*3584}, s{sCUR}")
            a.vmem(f"W1_{n}", f"buffer_load_dwordx4 {dst}v15, {R(R_W1)}, s{T0} offen{sfx}")
        a("s_mov_b64 exec, -1")

    def w1_unstage(n):
        a.vwait(f"W1_{n}")
        a(f"s_mov_b64 exec, s[{sEX}:{sEX+1}]")
        for q in range(8):
            a(f"ds_write_b128 v24, {vr(W1S+((n-2)*8+q)*4,4)} offset:{(n-2)*4*7168+q*896}")
        a("s_mov_b64 exec, -1")
        a("s_waitcnt lgkmcnt(0)")

    first_rl = [True]

    def relayout(n):
        a.vwait(f"W1_{n}")
        hi3 = 3 if n >= 2 else 0
        off0 = (n % 2) * 4 * 7168
        for u in range(7):
            base = (19 if u < 6 else 20) + hi3
            off = off0 + (u * 32 if u < 6 else 0)
            a(f"ds_read_b64_tr_b16 {vr(RLF+4*u,2)}, v{base} offset:{off}")
            a(f"ds_read_b64_tr_b16 {vr(RLF+4*u+2,2)}, v{base} offset:{off+3584}")
        a("s_waitcnt lgkmcnt(0)")
        for u in range(7):
            a(f"ds_write_b128 v{21+hi3}, {vr(RLF+4*u,4)} offset:{off0+u*1024}")
            mfma(a, vr(CSV + 4 * u, 4), vr(RLF + 4 * u, 4), vr(ONE, 4), "0" if first_rl[0] else None)
        first_rl[0] = False
        a("s_waitcnt lgkmcnt(0)")

    a(f"""
    v_bfe_u32 v4, v{vL}, 1, 2
    v_xor_b32 v4, v4, v{vG}
    v_and_b32 v5, 1, v{vL}
    v_lshl_or_b32 v4, v4, 1, v5
    v_lshrrev_b32 v5, 3, v{vL}
    v_lshlrev_b32 v5, 10, v5
    v_lshl_add_u32 v4, v4, 4, v5
    s_lshl_b32 s{T0}, s{sE}, 7
    s_mul_i32 s{T1}, s{sW}, {448*1024}
    s_add_u32 s{T0}, s{T0}, s{T1}
    v_add_u32 v17, s{T0}, v4
    s_mul_i32 s{T0}, s{sW}, {DSTR}
    v_add_u32 v18, s{T0}, v{vL16}
    v_mov_b32 v{hF}, {L_F}
    v_mov_b32 v{hONE}, 1
    s_lshl_b32 s{T0}, s{sW}, 2
    v_add_u32 v{hFw}, s{T0}, v{hF}
    v_lshl_add_u32 v4, v{vL}, 2, v{hF}
    v_mov_b32 v5, 0
    ds_write_b32 v4, v5
    """)
    W2B = 32

    def w2_load(i):
        if i % 4 == 0:
            pk = DPERM[i // 4]
            a(f"s_{'add' if pk < 7 else 'sub'}_u32 s{sA}, {pk}, s{sRD}\ns_lshl_b32 s{sA}, s{sA}, 15")
        a(f"s_add_u32 s{T1}, s{sA}, {(i%4)*8192}")
        a.vmem(f"W2_{i//4}", f"buffer_load_dwordx4 {vr(W2B+4*i,4)}, v17, {R(R_W2)}, s{T1} offen")

    W2SAFE = (RLF - W2B) // 4
    lo = [lambda i=i: w2_load(i) for i in range(56)]
    nlo = [0]

    npz = [0]

    def pause():
        if cfg["pause"]:
            npz[0] += 1
            waitf(a, f"L_hp{npz[0]}", F_PAUSE, hF, 31, 0, cmp="eq")

    def fill(n, limit=56):
        for k in range(n):
            if lo and nlo[0] < limit:
                if k % cfg["pchk"] == 0:
                    pause()
                lo.pop(0)()
                nlo[0] += 1

    def w1_slot(n):
        for qq in range(8):
            if qq % cfg["pchk"] == 0:
                pause()
            w1_dma(n, qq)

    q = cfg["q"]
    a(f"""
    v_lshrrev_b32 v4, 2, v{vI}
    v_and_b32 v5, 3, v{vI}
    v_xor_b32 v5, v5, v{vG}
    v_lshlrev_b32 v5, 4, v5
    v_lshl_add_u32 v5, v{vI}, 10, v5
    s_and_b32 s{T0}, s{sW}, 1
    s_lshl_b32 s{T1}, s{T0}, 14
    v_add_u32 v5, s{T1}, v5
    """)
    for k3 in range(4):
        a(f"v_xor_b32 v6, {k3}, v4")
        a(f"v_lshl_add_u32 v{100+k3}, v6, 6, v5")
    a(f"""
    s_lshl_b32 s{T0}, s{T0}, 6
    s_add_u32 s{T0}, s{T0}, {L_SA}
    v_lshl_add_u32 v104, v{vG}, 4, s{T0}
    v_lshl_add_u32 v105, v{vI}, 2, s{T0}
    v_cmp_eq_u32 s[{R_ST}:{R_ST+1}], v4, v{vG}
    v_and_b32 v106, 3, v{vI}
    """)
    a.stamp()
    for k in range(q[0]):
        trig_dma(k)
    a.vwait("A")
    a("s_waitcnt lgkmcnt(0)")
    a.stamp()
    a("s_barrier")
    a.stamp()
    for ks in range(16):
        a(f"ds_read_b128 {vr(32+4*ks,4)}, v{100+(ks&3)} offset:{L_XA + (ks>>2)*256}")
    a(f"""
    s_cmp_ge_u32 s{sW}, 2
    s_cbranch_scc1 L_h_sq
    """)
    for ks in range(16):
        a(f"s_waitcnt lgkmcnt({min(15, 15-ks)})")
        mfma(a, "v[96:99]", vr(32 + 4 * ks, 4), vr(ONE, 4), "0" if ks == 0 else None)
    a.nop(8)
    a("""
    s_mov_b32 exec_lo, 0x00010001
    s_mov_b32 exec_hi, 0x00010001
    ds_write_b128 v104, v[96:99]
    s_branch L_h_stat_done
    """)
    a.label("L_h_sq")
    for ks in range(16):
        a(f"s_waitcnt lgkmcnt({min(15, 15-ks)})")
        mfma(a, "v[96:99]", vr(32 + 4 * ks, 4), vr(32 + 4 * ks, 4), "0" if ks == 0 else None)
    a(f"""
    v_cmp_eq_u32 vcc, 1, v106
    v_cmp_eq_u32 s[{sM}:{sM+1}], 2, v106
    v_cmp_eq_u32 s[{R_ST+2}:{R_ST+3}], 3, v106
    """)
    a.nop(6)
    a(f"""
    v_cndmask_b32 v96, v96, v97, vcc
    v_cndmask_b32 v96, v96, v98, s[{sM}:{sM+1}]
    v_cndmask_b32 v96, v96, v99, s[{R_ST+2}:{R_ST+3}]
    s_mov_b64 exec, s[{R_ST}:{R_ST+1}]
    ds_write_b32 v105, v96 offset:128
    """)
    a.label("L_h_stat_done")
    a("s_mov_b64 exec, -1")
    for k in range(q[0], q[0] + q[1]):
        trig_dma(k)
    a("s_waitcnt lgkmcnt(0)")
    a.stamp()
    a("s_barrier")
    a.stamp()
    for k in range(q[0] + q[1], 16):
        trig_dma(k)
    for n in range(4):
        xt_dma(n)
    for qq in range(q[2]):
        w1_dma(0, qq)
    a.vwait("T")
    sig(a, F_TRIG, hF, hONE)
    a.stamp()
    if cfg["touch"] & 2:
        touch(a, R_W2, 26)
    for qq in range(q[2], 8):
        if qq % cfg["pchk"] == 0:
            pause()
        w1_dma(0, qq)
    w1_slot(1)
    w1_slot(2)
    w1_slot(3)
    a.stamp()
    W2S1 = (W1S - W2B) // 4
    relayout(0)
    fill(q[3], W2S1)
    relayout(1)
    fill(q[4], W2S1)
    a.stamp()
    waitf(a, "L_htc", F_TC, hF, 31, 256)
    a.stamp()
    w1_unstage(2)
    relayout(2)
    w1_unstage(3)
    relayout(3)
    a.nop(4)
    a("s_mov_b32 exec_lo, 0x00010001")
    a("s_mov_b32 exec_hi, 0x00010001")
    for u in range(7):
        a(f"ds_write_b128 v25, {vr(CSV+4*u,4)} offset:{u*64}")
    a("s_mov_b64 exec, -1")
    a("s_waitcnt lgkmcnt(0)")
    sig(a, F_W1, hF, hONE)
    a.stamp()
    fill(100)
    a.stamp()
    waitf(a, "L_hcd", F_CD, hF, 31, 256)
    a.stamp()

    def dump(ks):
        a.vwait(f"W2_{ks}")
        for p in range(4):
            a(f"ds_write_b128 v18, {vr(W2B+4*(ks*4+p),4)} offset:{(ks%DSL)*4096+p*1024}")

    for ks in range(DSL):
        dump(ks)
    a("s_waitcnt lgkmcnt(0)")
    sig(a, F_D1, hFw, hONE)
    a.stamp()
    a(f"""
    s_cmp_ge_u32 s{sW}, 1
    s_cbranch_scc1 L_hp3_done
    s_lshl_b32 s{T0}, s{sW}, 4
    s_add_u32 s{T0}, s{T0}, s{sRB}
    s_add_u32 s{T0}, s{T0}, 80
    s_lshl_b32 s{T0}, s{T0}, 8
    v_mov_b32 v4, s{T0}
    s_mul_i32 s{T0}, s{sW}, {4*(F_GO4-F_GO3)}
    v_add_u32 v5, s{T0}, v{hF}
    s_mov_b64 exec, 1
    s_mov_b32 s{T0}, 0
    """)
    a.label("L_hp3_loop")
    a(f"""
    buffer_load_dword v31, v4, {R(R_CNT)}, 0 offen sc1
    s_add_u32 s{T0}, s{T0}, 1
    s_cmp_ge_u32 s{T0}, 0x40000
    s_cbranch_scc1 L_hp3_exit
    s_waitcnt vmcnt(0)
    v_cmp_gt_u32 vcc, 16, v31
    s_cbranch_vccnz L_hp3_loop
    """)
    a.label("L_hp3_exit")
    a("s_mov_b64 exec, -1")
    sig(a, F_GO3, 5, hONE)
    a.label("L_hp3_done")
    waitf(a, "L_hs", F_S, hFw, 31, 64)
    for ks in range(DSL, 14):
        dump(ks)
    a("s_waitcnt lgkmcnt(0)")
    sig(a, F_D2, hFw, hONE)
    stamp_out(a, 4)


HEADER2 = """; FNet (real part of the 2-D DFT token mixing) + ReLU FFN block, both pre-LN with residuals, for gfx950 (MI355X).
; Hand-designed assembly emitted by a generator script (no compiler output).
;
;   C: relu(LN2(h) @ w1)  (LN applied algebraically in the epilogue, two column halves)  -> h1 (ws)
;   D: h + h1 @ w2                                                 -> out
; Hand-offs between workgroups: write-through (sc1) stores, drained, then agent-scope counter adds; consumers poll
"""


def main():
    cfg = {"hdepth": 4, "ddepth": 3, "h1ring": 7, "dump1": 8, "rot": 1, "diag": 0, "q": [2, 2, 4, 4, 4], "touch": 0, "probe": 2, "pb": 0, "pc": 0, "pause": 0, "pchk": 4, "ar3a": 6}
    out = f"cdna_kernels/{NAME}.s"
    for arg in sys.argv[1:]:
        if "=" in arg:
            k, v = arg.split("=")
            cfg[k] = [int(x) for x in v.split(",")] if k == "q" else int(v)
        else:
            out = arg
    USE_PAUSE[0] = cfg["pause"]
    a = Asm()
    a.diag = cfg["diag"]
    a.vstamp = 27
    a.sstamp = R_H1
    if a.diag:
        def stamp():
            n = a.nstamp
            a.nstamp += 1
            a(f"s_memtime s[{a.sstamp}:{a.sstamp+1}]")
            a("s_waitcnt lgkmcnt(0)")
            a(f"v_writelane_b32 v{a.vstamp}, s{a.sstamp}, {n}")
        a.stamp = stamp
    kname = NAME + "_kernel"
    a.raw(HEADER2.rstrip("\n"))
    a.raw(f"; @launch grid=(256,1,1) block=(512,1,1) lds={LDS_TOTAL}")
    a.raw('.amdgcn_target "amdgcn-amd-amdhsa--gfx950"')
    a.raw(".text")
    a.raw(f".globl {kname}")
    a.raw(".p2align 8")
    a.raw(f".type {kname},@function")
    a.label(kname)
    prologue(a, cfg['rot'])
    compute(a, cfg)
    helper(a, cfg)
    a.label("L_end")
    a("s_endpgm")
    a.raw('.section .rodata,"a"')
    a.raw(".p2align 6")
    a.raw(f""".amdhsa_kernel {kname}
  .amdhsa_next_free_vgpr 256
  .amdhsa_next_free_sgpr 102
  .amdhsa_accum_offset 256
  .amdhsa_group_segment_fixed_size 0
  .amdhsa_kernarg_size 88
  .amdhsa_user_sgpr_count 2
  .amdhsa_user_sgpr_kernarg_segment_ptr 1
  .amdhsa_system_sgpr_workgroup_id_x 1
.end_amdhsa_kernel""")
    open(out, "w").write(a.text())


if __name__ == "__main__":
    main()
```
